```python
import torch

def _softmax(x, axis=-1):
    return torch.softmax(x, dim=axis)

def _gelu(x):
    return torch.nn.functional.gelu(x, approximate='tanh')

def _silu(x):
    return torch.nn.functional.silu(x)

def _sigmoid(x):
    return torch.sigmoid(x)

def _layernorm(x, axis=-1, eps=1e-05):
    m = x.mean(dim=axis, keepdim=True)
    v = x.var(dim=axis, keepdim=True, unbiased=False)
    return (x - m) / torch.sqrt(v + eps)

def _scatter_add(tgt, idx, src, axis=0):
    return tgt.clone().index_add_(axis, idx, src)

def _segment_sum(src, seg, n):
    out = torch.zeros((n,) + src.shape[1:], dtype=src.dtype)
    return out.index_add_(0, seg, src)

def _pad(x, pw):
    flat = tuple((v for pair in reversed(pw) for v in pair))
    return torch.nn.functional.pad(x, flat)
kernel_name = 'adaLN_cond__mha_block_cached__glu_gated_swiglu__decode'

def setup_inputs():

    _w = lambda a: (lambda t: t.to(torch.bfloat16) if t.is_floating_point() else t)(torch.as_tensor(a))

    def _A_setup():
        B, Sq, D = (2, 1, 512)
        H, Sk, Dh = (32, 8192, 128)
        return {'x': _w((lambda *s: torch.randn(*s, dtype=torch.bfloat16) * 0.1)(B, Sq, D)), 'k_cache': _w((lambda *s: torch.randn(*s, dtype=torch.bfloat16) * 0.8)(B, H, Sk, Dh)), 'v_cache': _w((lambda *s: torch.randn(*s, dtype=torch.bfloat16) * 3.2)(B, H, Sk, Dh)), 'wq': _w((lambda *s: torch.randn(*s, dtype=torch.bfloat16) * 0.8)(D, H * Dh) * D ** (-0.5)), 'wo': _w((lambda *s: torch.randn(*s, dtype=torch.bfloat16) * 3.2)(H * Dh, D) * (H * Dh) ** (-0.5))}
    _A_in = _A_setup()

    def _B_setup():
        B, S, D, F = (2, 1, 512, 1376)
        return {'x': _w((lambda *s: torch.randn(*s, dtype=torch.bfloat16) * 0.1)(B, S, D)), 'w1': _w((lambda *s: torch.randn(*s, dtype=torch.bfloat16) * 3.2)(D, F) * (2.0 / D) ** 0.5), 'w3': _w((lambda *s: torch.randn(*s, dtype=torch.bfloat16) * 3.2)(D, F) * (2.0 / D) ** 0.5), 'w2': _w((lambda *s: torch.randn(*s, dtype=torch.bfloat16) * 3.2)(F, D) * (2.0 / F) ** 0.5)}
    _B_in = _B_setup()
    return {'A_x': _A_in['x'], 'A_k_cache': _A_in['k_cache'], 'A_v_cache': _A_in['v_cache'], 'A_wq': _A_in['wq'], 'A_wo': _A_in['wo'], 'B_x': _B_in['x'], 'B_w1': _B_in['w1'], 'B_w3': _B_in['w3'], 'B_w2': _B_in['w2'], 'c': _w((lambda *s: torch.randn(*s, dtype=torch.bfloat16) * 0.2)(2, 512) * 8.0), 'w_mod': _w((lambda *s: torch.randn(*s, dtype=torch.bfloat16) * 0.2)(512, 6 * 512) * 512 ** (-0.5) * 8.0)}

def reference(A_x, A_k_cache, A_v_cache, A_wq, A_wo, B_x, B_w1, B_w3, B_w2, c, w_mod):

    def _A_ref(x, k_cache, v_cache, wq, wo):
        B, Sq, D = x.shape
        H, Dh = (32, 128)
        q = (lambda x, *d: x.permute(*d))((x @ wq).reshape(B, Sq, H, Dh), 0, 2, 1, 3)
        scores = torch.einsum('bhqd,bhkd->bhqk', q, k_cache) * Dh ** (-0.5)
        p = _softmax(scores, axis=-1)
        o = torch.einsum('bhqk,bhkd->bhqd', p, v_cache)
        return (lambda x, *d: x.permute(*d))(o, 0, 2, 1, 3).reshape(B, Sq, H * Dh) @ wo

    def _B_ref(x, w1, w3, w2):
        gate = torch.einsum('bsd,df->bsf', x, w1)
        up = torch.einsum('bsd,df->bsf', x, w3)
        h = _silu(gate) * up
        out = torch.einsum('bsf,fd->bsd', h, w2)
        return out
    x = A_x
    mod = (_silu(c) @ w_mod).reshape(c.shape[0], 6, 1, -1)
    sa, ca, ga, sb, cb, gb = (mod[:, 0].clone(), mod[:, 1].clone(), mod[:, 2].clone(), mod[:, 3].clone(), mod[:, 4].clone(), mod[:, 5].clone())
    h = _layernorm(x, axis=-1) * (1 + ca) + sa
    x = x + ga * _A_ref(h, A_k_cache, A_v_cache, A_wq, A_wo)
    h = _layernorm(x, axis=-1) * (1 + cb) + sb
    x = x + gb * _B_ref(h, B_w1, B_w3, B_w2)
    return x
```

```python
import re

TRANS = ("v_exp_f32", "v_log_f32", "v_rcp_f32", "v_rsq_f32", "v_sqrt_f32", "v_sin_f32", "v_cos_f32")

def regs_of(op):
    op = op.strip()
    if op.startswith("-"): op = op[1:]
    m = re.fullmatch(r"abs\((.*)\)", op)
    if m: op = m.group(1)
    m = re.fullmatch(r"([vsa])(\d+)", op)
    if m: return [(m.group(1), int(m.group(2)))]
    m = re.fullmatch(r"([vsa])\[(\d+):(\d+)\]", op)
    if m: return [(m.group(1), i) for i in range(int(m.group(2)), int(m.group(3)) + 1)]
    if op == "vcc": return [("s", 106), ("s", 107)]
    if op == "exec": return [("s", 126), ("s", 127)]
    if op == "m0": return [("s", 124)]
    return []

def split_ops(rest):
    parts, depth, cur = [], 0, ""
    for ch in rest:
        if ch in "[(": depth += 1
        if ch in "])": depth -= 1
        if ch == "," and depth == 0:
            parts.append(cur.strip()); cur = ""
        else:
            cur += ch
    parts.append(cur.strip())
    mods = ""
    if parts:
        last = parts[-1].split(None, 1)
        if len(last) > 1:
            parts[-1] = last[0]; mods = last[1]
    return parts, mods

class Ins:
    __slots__ = ("text", "mn", "kind", "wr", "rd", "dpp", "srcc", "ab", "states", "storedata")

def parse(text):
    t = text.split(";")[0].strip()
    i = Ins(); i.text = text
    sp = t.split(None, 1)
    mn = sp[0]; rest = sp[1] if len(sp) > 1 else ""
    i.mn = mn; i.wr = []; i.rd = []; i.dpp = False; i.srcc = []; i.ab = []; i.states = 1; i.storedata = []
    ops, mods = split_ops(rest) if rest else ([], "")
    R = [regs_of(o) for o in ops]
    if mn == "s_nop":
        i.kind = "salu"; i.states = int(ops[0], 0) + 1; return i
    if mn.startswith("v_mfma"):
        i.kind = "mfma"; i.wr = R[0]; i.ab = R[1] + R[2]; i.srcc = R[3]; i.rd = i.ab + i.srcc; return i
    if mn.startswith("v_"):
        i.kind = "valu"
        i.dpp = "_dpp" in mn
        if mn.startswith("v_permlane") or mn.startswith("v_swap"):
            i.wr = R[0] + R[1]; i.rd = R[0] + R[1]
        elif mn.startswith(("v_add_co", "v_sub_co", "v_addc_co", "v_subb_co")):
            i.wr = R[0] + R[1]; i.rd = sum(R[2:], [])
        else:
            i.wr = R[0]; i.rd = sum(R[1:], [])
            if i.dpp or mn.startswith(("v_fmac", "v_dot2c", "v_writelane")): i.rd = i.rd + R[0]
        return i
    if mn.startswith("ds_"):
        i.kind = "ds"
        if mn.startswith(("ds_read", "ds_bpermute", "ds_permute", "ds_swizzle")) or "_rtn" in mn:
            i.wr = R[0]; i.rd = sum(R[1:], [])
        else:
            i.rd = sum(R, [])
        return i
    if mn.startswith(("buffer_", "global_")):
        i.kind = "vmem"
        if "_load" in mn and "lds" not in mn and " lds" not in (" " + mods):
            i.wr = R[0]; i.rd = sum(R[1:], [])
        else:
            i.rd = sum(R, [])
            if "store" in mn and ("x4" in mn or "x3" in mn):
                i.storedata = R[0] if mn.startswith("buffer_") else R[1]
        return i
    i.kind = "salu"
    if R and not mn.startswith(("s_cmp", "s_cbranch", "s_branch", "s_waitcnt", "s_barrier", "s_sleep", "s_endpgm", "s_setprio")):
        i.wr = R[0]; i.rd = sum(R[1:], [])
    else:
        i.rd = sum(R, [])
    return i

def need(prod, cons):
    n = 0
    pw = set(prod.wr)
    if prod.kind == "valu":
        pv = {r for r in pw if r[0] in "va"}; ps = {r for r in pw if r[0] == "s"}
        crd = set(cons.rd)
        if cons.kind == "valu":
            if cons.dpp and pv & crd: n = max(n, 2)
            if cons.mn.startswith(("v_readlane", "v_readfirstlane")) and pv & crd: n = max(n, 1)
            if cons.mn.startswith("v_permlane") and pv & crd: n = max(n, 2)
            if ps & crd: n = max(n, 2)
            if cons.mn.startswith("v_cndmask") and ("s", 106) in ps and len(cons.rd) and "vcc" in cons.text: n = max(n, 2)
            if prod.mn.startswith(TRANS) and not cons.mn.startswith(TRANS) and pv & crd: n = max(n, 1)
            if prod.mn.startswith(TRANS) and pv & crd: n = max(n, 1)
        if cons.kind == "mfma" and pv & crd: n = max(n, 2)
        if cons.kind in ("vmem", "ds") and ps & crd: n = max(n, 5)
    if prod.kind == "mfma":
        if cons.kind == "mfma":
            if pw & set(cons.ab): n = max(n, 8)
            c = set(cons.srcc)
            if pw & c and c != pw: n = max(n, 6)
            if pw & set(cons.wr) and set(cons.wr) != pw: n = max(n, 8)
        elif cons.kind in ("valu", "vmem", "ds"):
            if pw & (set(cons.rd) | set(cons.wr)): n = max(n, 8)
        if cons.kind == "valu" and set(prod.srcc) & set(cons.wr): n = max(n, 3)
    if prod.kind == "vmem" and prod.storedata:
        if set(prod.storedata) & set(cons.wr): n = max(n, 2)
    if prod.kind == "salu" and ("s", 124) in pw and cons.kind == "vmem" and "lds" in cons.text: n = max(n, 1)
    return n

class Asm:
    def __init__(self):
        self.lines = []
        self.hist = []
        self.nl = 0
        self.nops = 0
    def raw(self, t):
        self.lines.append(t)
    def label(self, name):
        self.lines.append(name + ":")
    def newlabel(self, p="L"):
        self.nl += 1
        return f"{p}_{self.nl}"
    def __call__(self, text):
        for t in text.split("\n"):
            t = t.strip()
            if not t: continue
            if t.startswith(";"):
                self.lines.append("    " + t); continue
            if t.endswith(":"):
                self.lines.append(t); continue
            ins = parse(t)
            dist = 0; req = 0
            for p in reversed(self.hist[-12:]):
                k = need(p, ins)
                if k > dist: req = max(req, k - dist)
                dist += p.states
                if dist >= 12: break
            if req > 0:
                nop = parse(f"s_nop {req-1}")
                self.lines.append(f"    s_nop {req-1}")
                self.hist.append(nop); self.nops += 1
            self.lines.append("    " + t)
            self.hist.append(ins)
    def text(self):
        return "\n".join(self.lines) + "\n"
```

```python
import sys, json
sys.path.insert(0, "dev")
from asmlib import Asm

KNAME = "adaLN_cond__mha_block_cached__glu_gated_swiglu__decode_kernel"

WS_G, WS_ML, WS_X1, WS_MP, WS_QP, WS_Y, WS_OP = 0x1000, 0x5000, 0x6000, 0x8000, 0x10000, 0x50000, 0xd0000
WS_END = 0x130000
WS_STAMP = 0x200000
SM = 131072
L_HL, L_SC, L_Q, L_ML, L_F, L_HH, L_O, L_DUM, L_H2 = SM, SM + 256, SM + 768, SM + 1024, SM + 1056, SM + 1088, SM + 1280, SM + 2368, SM + 2880
LDS_BYTES = SM + 2880 + 2048
OSTR = 272
LOG2E = 0x3fb8aa3b
SCALE = 0x3db504f3
EPS = 0x3727c5ac
OOB = 0x7ff00000
TMO = 1 << 18

def gen(R=51, CAP0=6, CAP=6, diag=False, kvpol="nt", sleep_tail=0, wpol="", tpol="", prio=3, NBH=128):
    A = Asm()
    NBL = 256 - NBH
    NP = 4 * ((NBL + 3) // 4)
    NS = (NP + 15) // 16
    def stamp(idx):
        if not diag: return
        A("s_memrealtime s[78:79]\ns_waitcnt lgkmcnt(0)")
        A(f"s_mov_b32 s{80+idx}, s78")
    def srd(d, base, nrec, off_lo=None):
        if off_lo is None:
            A(f"s_mov_b32 s{d}, s{base}\ns_mov_b32 s{d+1}, s{base+1}")
        else:
            A(f"s_add_u32 s{d}, s{base}, {off_lo}\ns_addc_u32 s{d+1}, s{base+1}, 0")
        A(f"s_mov_b32 s{d+2}, {nrec if isinstance(nrec, str) else hex(nrec)}\ns_mov_b32 s{d+3}, 0x20000")
    def finish():
        A("s_branch L_dump" if diag else "s_endpgm")
    def poll_tail(lbl, cnt="s70", sleep=0):
        A(f"s_sub_u32 {cnt}, {cnt}, 1\ns_cbranch_scc1 L_bail")
        if sleep:
            ok = A.newlabel("L_ok")
            A(f"s_cbranch_vccz {ok}\ns_sleep {sleep}\ns_branch {lbl}\n{ok}:")
        else:
            A(f"s_cbranch_vccnz {lbl}")
    def unpack(lo, hi, src):
        A(f"v_lshlrev_b32 v{lo}, 16, v{src}\nv_and_b32 v{hi}, 0xffff0000, v{src}")
    def allreduce(op, regs, full=True):
        for c in ("row_ror:8", "row_ror:4", "row_ror:2", "row_ror:1"):
            for r in regs:
                A(f"{op}_dpp v{r}, v{r}, v{r} {c} row_mask:0xf bank_mask:0xf")
        for r in regs:
            A(f"{op}_dpp v{r}, v{r}, v{r} row_bcast:15 row_mask:0xa bank_mask:0xf")
        if full:
            for r in regs:
                A(f"{op}_dpp v{r}, v{r}, v{r} row_bcast:31 row_mask:0xc bank_mask:0xf")
    def mfma32(D, a, b, first):
        A(f"v_mfma_f32_16x16x32_bf16 v[{D}:{D+3}], v[{a}:{a+3}], v[{b}:{b+3}], " + ("0" if first else f"v[{D}:{D+3}]"))
    def tagcheck16(regs, tagv, first=True):
        for i, rr in enumerate(regs):
            if i == 0 and first:
                A(f"v_cmp_ne_u32 vcc, v{tagv}, v{rr}")
            else:
                A(f"v_cmp_ne_u32 s[66:67], v{tagv}, v{rr}\ns_or_b64 vcc, vcc, s[66:67]")
    def tagcheck_lb(bases, tagv, t0, selA, selB):
        for i, b in enumerate(bases):
            A(f"v_perm_b32 v{t0}, v{b+1}, v{b}, {selA}\nv_perm_b32 v{t0+1}, v{b+3}, v{b+2}, {selB}\nv_or_b32 v{t0}, v{t0}, v{t0+1}")
            if i == 0:
                A(f"v_cmp_ne_u32 vcc, v{tagv}, v{t0}")
            else:
                A(f"v_cmp_ne_u32 s[66:67], v{tagv}, v{t0}\ns_or_b64 vcc, vcc, s[66:67]")
    def roles():
        A("""s_lshl_b32 s12, s8, 3
s_and_b32 s13, s9, 1
s_lshl_b32 s13, s13, 2
s_add_u32 s12, s12, s13
s_and_b32 s13, s5, 3
s_add_u32 s12, s12, s13
s_lshl_b32 s77, s4, 4
s_add_u32 s77, s77, s12
s_mov_b32 s76, 3
s_cmp_ge_u32 s9, 2""")
        l = A.newlabel("L_role"); l2 = A.newlabel("L_role")
        A(f"""s_cbranch_scc1 {l}
s_cmp_ge_u32 s12, 11
s_cbranch_scc1 {l2}
s_mul_i32 s77, s4, 11
s_add_u32 s77, s77, s12
s_cmp_lt_u32 s77, 86
s_cselect_b32 s76, 1, 0
s_branch {l}
{l2}:
s_lshl_b32 s77, s4, 2
s_add_u32 s77, s77, s12
s_sub_u32 s77, s77, 11
s_cmp_lt_u32 s12, 15
s_cselect_b32 s76, 2, 0
{l}:""")
    def layernorm8(X, T, eps_s):
        A(f"""v_add_f32 v{T}, v{X}, v{X+1}
v_add_f32 v{T+1}, v{X+2}, v{X+3}
v_add_f32 v{T+2}, v{X+4}, v{X+5}
v_add_f32 v{T+3}, v{X+6}, v{X+7}
v_add_f32 v{T}, v{T}, v{T+1}
v_add_f32 v{T+2}, v{T+2}, v{T+3}
v_add_f32 v{T}, v{T}, v{T+2}""")
        allreduce("v_add_f32", [T])
        A(f"v_readlane_b32 s71, v{T}, 63")
        A(f"v_mov_b32 v{T+1}, 0x3b000000\nv_mul_f32 v{T}, s71, v{T+1}")
        A(f"v_cvt_pk_bf16_f32 v{T+2}, v{T}, v{T}")
        for k in range(8):
            A(f"v_sub_f32 v{T+4+k}, v{X+k}, v{T}")
        A(f"v_and_b32 v{T+2}, 0xffff0000, v{T+2}")
        A(f"v_mul_f32 v{T+3}, v{T+4}, v{T+4}\nv_mul_f32 v{T}, v{T+5}, v{T+5}")
        for k in range(2, 8, 2):
            A(f"v_fmac_f32 v{T+3}, v{T+4+k}, v{T+4+k}\nv_fmac_f32 v{T}, v{T+5+k}, v{T+5+k}")
        A(f"v_add_f32 v{T+3}, v{T+3}, v{T}")
        steps = ["row_ror:8 row_mask:0xf", "row_ror:4 row_mask:0xf", "row_ror:2 row_mask:0xf", "row_ror:1 row_mask:0xf", "row_bcast:15 row_mask:0xa", "row_bcast:31 row_mask:0xc"]
        fill = [f"v_sub_f32 v{X+k}, v{X+k}, v{T+2}" for k in range(8)] + [f"v_cvt_pk_bf16_f32 v{T+4+k}, v{X+2*k}, v{X+2*k+1}" for k in range(4)]
        for si, st in enumerate(steps):
            A(fill[2 * si]); A(fill[2 * si + 1])
            A(f"v_add_f32_dpp v{T+3}, v{T+3}, v{T+3} {st} bank_mask:0xf")
        unpack(X, X + 1, T + 4)
        A(f"v_readlane_b32 s71, v{T+3}, 63")
        unpack(X + 2, X + 3, T + 5)
        A(f"v_mul_f32 v{T}, s71, v{T+1}")
        unpack(X + 4, X + 5, T + 6)
        A(f"v_cvt_pk_bf16_f32 v{T}, v{T}, v{T}")
        unpack(X + 6, X + 7, T + 7)
        A(f"v_and_b32 v{T}, 0xffff0000, v{T}")
        A(f"v_add_f32 v{T}, {eps_s}, v{T}")
        A(f"v_cvt_pk_bf16_f32 v{T}, v{T}, v{T}\nv_and_b32 v{T}, 0xffff0000, v{T}")
        A(f"v_sqrt_f32 v{T}, v{T}")
        A(f"v_cvt_pk_bf16_f32 v{T}, v{T}, v{T}\nv_and_b32 v{T}, 0xffff0000, v{T}")
        A(f"v_rcp_f32 v{T}, v{T}")
        for k in range(8):
            A(f"v_mul_f32 v{X+k}, v{X+k}, v{T}")
        for k in range(4):
            A(f"v_cvt_pk_bf16_f32 v{T+4+k}, v{X+2*k}, v{X+2*k+1}")
        for k in range(4):
            unpack(X + 2 * k, X + 2 * k + 1, T + 4 + k)
    def resid4(S, G, X, P):
        A(f"v_cvt_pk_bf16_f32 v{P}, v{S}, v{S+1}\nv_cvt_pk_bf16_f32 v{P+1}, v{S+2}, v{S+3}")
        unpack(S, S + 1, P); unpack(S + 2, S + 3, P + 1)
        for k in range(4): A(f"v_mul_f32 v{S+k}, v{S+k}, v{G+k}")
        A(f"v_cvt_pk_bf16_f32 v{P}, v{S}, v{S+1}\nv_cvt_pk_bf16_f32 v{P+1}, v{S+2}, v{S+3}")
        unpack(S, S + 1, P); unpack(S + 2, S + 3, P + 1)
        for k in range(4): A(f"v_add_f32 v{S+k}, v{S+k}, v{X+k}")
        A(f"v_cvt_pk_bf16_f32 v{P}, v{S}, v{S+1}\nv_cvt_pk_bf16_f32 v{P+1}, v{S+2}, v{S+3}")

    hdr = open("adaLN_cond__mha_block_cached__glu_gated_swiglu__decode.s.ref").read().split("\n")
    for l in hdr:
        if l.startswith("; @launch"): break
        A.raw(l)
    A.raw(f"; @launch grid=(256,1,1) block=(512,1,1) lds={LDS_BYTES}")
    A.raw('.amdgcn_target "amdgcn-amd-amdhsa--gfx950"\n.text')
    A.raw(f".globl {KNAME}\n.p2align 8\n.type {KNAME},@function\n{KNAME}:")
    A("s_cmp_ge_u32 s2, 256\ns_cbranch_scc1 L_bail")
    A("s_load_dwordx16 s[16:31], s[0:1], 0\ns_load_dwordx8 s[32:39], s[0:1], 64\ns_load_dwordx4 s[40:43], s[0:1], 96")
    if diag:
        for i in range(12): A(f"s_mov_b32 s{80+i}, 0")
        A("s_memrealtime s[78:79]")
    A("v_and_b32 v1, 63, v0\nv_lshrrev_b32 v2, 6, v0")
    A("v_readfirstlane_b32 s3, v2")
    A("""s_and_b32 s4, s2, 7
s_lshr_b32 s5, s2, 3
s_and_b32 s6, s5, 3
s_lshl_b32 s6, s6, 3
s_add_u32 s6, s6, s4
s_lshr_b32 s7, s5, 2
s_lshr_b32 s8, s7, 2
s_and_b32 s9, s7, 3
v_and_b32 v2, 15, v1
v_lshrrev_b32 v3, 4, v1
v_bfe_u32 v4, v1, 2, 2
v_and_b32 v5, 3, v1
s_cmp_ge_u32 s3, 4
s_cbranch_scc1 L_service""")
    RING = 256 - 4 * R
    QOP, MSK, DB, OA, SR = 8, 24, 28, 36, 40
    assert RING >= SR + NS
    VK, VV = 6, 7
    A(f"""s_lshl_b32 s12, s3, 12
v_lshlrev_b32 v{VK}, 8, v4
v_lshl_add_u32 v{VK}, v3, 6, v{VK}
v_lshl_add_u32 v{VK}, v5, 4, v{VK}
v_add_u32 v{VK}, s12, v{VK}
v_lshlrev_b32 v{VV}, 4, v1
v_add_u32 v{VV}, s12, v{VV}
s_lshl_b32 s13, s8, 5
s_add_u32 s13, s13, s6
s_lshl_b32 s13, s13, 21
s_mul_i32 s14, s9, {NBL*4096}
s_min_u32 s15, s9, 2
s_mul_i32 s15, s15, {(NBL-NBH)*4096}
s_sub_u32 s14, s14, s15
s_add_u32 s13, s13, s14
s_cmp_ge_u32 s9, 2
s_cselect_b32 s75, {NBL-NBH}, 0
s_add_u32 s75, s75, {NBH}
s_lshl_b32 s74, s75, 12
s_mov_b32 s64, 0
s_mov_b32 s65, 0
s_waitcnt lgkmcnt(0)""")
    if diag: A("s_mov_b32 s80, s78")
    srd(44, 18, "s74", "s13")
    srd(48, 20, "s74", "s13")
    def kv_load(i):
        slot = RING + 4 * (i % R)
        j = i % NP
        if i < NP:
            A(f"buffer_load_dwordx4 v[{slot}:{slot+3}], v{VK}, s[44:47], s64 offen offset:{(j&3)*1024} {kvpol}")
            if j & 3 == 3 and j != NP - 1: A("s_addk_i32 s64, 0x4000")
        else:
            A(f"buffer_load_dwordx4 v[{slot}:{slot+3}], v{VV}, s[48:51], s65 offen offset:{(j&3)*1024} {kvpol}")
            if j & 3 == 3 and j != NP - 1: A("s_addk_i32 s65, 0x4000")
    for i in range(CAP0):
        kv_load(i)
    A("s_load_dword s11, s[42:43], 0")
    A(f"""v_and_b32 v28, 1, v1
v_cmp_eq_u32 vcc, 1, v28
v_mov_b32 v29, 0xffff
v_mov_b32 v30, 0xffff0000
v_cndmask_b32 v29, v29, v30, vcc
v_lshrrev_b32 v28, 1, v2""")
    for r in range(4):
        A(f"v_cmp_eq_u32 vcc, {r}, v28\nv_cndmask_b32 v{MSK+r}, 0, v29, vcc")
    srd(52, 42, WS_END)
    roles()
    A(f"v_lshrrev_b32 v37, 2, v2\nv_lshlrev_b32 v36, 6, v3\nv_lshl_add_u32 v36, v37, 4, v36\nv_add_u32 v36, {L_Q}, v36")
    for i in range(CAP0, R):
        A(f"s_waitcnt vmcnt({CAP0-1})")
        kv_load(i)
    A("s_waitcnt lgkmcnt(0)")
    A("s_add_u32 s10, s11, 0x9e3779b9")
    stamp(1)
    A("s_barrier")
    stamp(2)
    A(f"ds_read_b128 v[{DB}:{DB+3}], v36")
    A("s_waitcnt lgkmcnt(0)")
    for t in range(4):
        A(f"v_cmp_eq_u32 vcc, {t}, v5")
        for r in range(4):
            A(f"v_cndmask_b32 v{QOP+4*t+r}, 0, v{DB+r}, vcc")
    def post_ops(G):
        u = G & 3; S = SR + (G >> 2); D = DB + 4 * (G & 1)
        ops = [f"v_mov_b32_dpp v{S}, v{D+u} quad_perm:[0,1,2,3] row_mask:0xf bank_mask:{1<<u:#x}"]
        for b in range(4):
            if b == u: continue
            rot = 4 * ((u - b) % 4)
            ops.append(f"v_add_f32_dpp v{S}, v{D+b}, v{S} row_ror:{rot} row_mask:0xf bank_mask:{1<<u:#x}")
        return ops
    TOT = 2 * NP
    def nwait(i):
        issued = min(i + R, TOT)
        return min(issued - (i + 1), CAP - 1)
    for i in range(NP):
        slot = RING + 4 * (i % R)
        G = i >> 2; t = i & 3; D = DB + 4 * (G & 1)
        A(f"s_waitcnt vmcnt({nwait(i)})")
        mfma32(D, slot, QOP + 4 * t, t == 0)
        po = post_ops(G - 1) if (G > 0 and t >= 2) else None
        if po: A(po[2 * (t - 2)])
        kv_load(i + R)
        if po: A(po[2 * (t - 2) + 1])
    for o in post_ops(NP // 4 - 1): A(o)
    stamp(3)
    T0 = 8
    A(f"s_mov_b32 s12, {SCALE:#x}\ns_mov_b32 s13, {LOG2E:#x}")
    def round_pairs():
        for k in range(0, NS, 2):
            k2 = min(k + 1, NS - 1)
            A(f"v_cvt_pk_bf16_f32 v{T0+k//2}, v{SR+k}, v{SR+k2}")
        for k in range(0, NS, 2):
            if k + 1 < NS: unpack(SR + k, SR + k + 1, T0 + k // 2)
            else: A(f"v_lshlrev_b32 v{SR+k}, 16, v{T0+k//2}")
    round_pairs()
    for k in range(NS):
        A(f"v_mul_f32 v{SR+k}, s12, v{SR+k}")
    round_pairs()
    if NBH != 128 or NP % 16:
        A(f"v_and_b32 v{T0}, 12, v2\nv_add_u32 v{T0}, s3, v{T0}\nv_mov_b32 v{T0+1}, 0xff800000")
        for k in range(NS):
            if 16 * k + 15 >= NBH:
                A(f"s_sub_i32 s14, s75, {16*k}\nv_cmp_gt_i32 vcc, s14, v{T0}\nv_cndmask_b32 v{SR+k}, v{T0+1}, v{SR+k}, vcc")
    A(f"v_max3_f32 v{T0}, v{SR}, v{SR+1}, v{SR+2}\nv_max3_f32 v{T0+1}, v{SR+3}, v{SR+4}, v{SR+5}\nv_max3_f32 v{T0}, v{T0}, v{SR+6}, v{SR+7}")
    if NS > 8: A(f"v_max_f32 v{T0+1}, v{T0+1}, v{SR+8}")
    A(f"v_max_f32 v{T0}, v{T0}, v{T0+1}")
    allreduce("v_max_f32", [T0])
    A(f"v_readlane_b32 s14, v{T0}, 63")
    for k in range(NS): A(f"v_subrev_f32 v{SR+k}, s14, v{SR+k}")
    for k in range(NS): A(f"v_mul_f32 v{SR+k}, s13, v{SR+k}")
    for k in range(NS): A(f"v_exp_f32 v{SR+k}, v{SR+k}")
    A(f"""v_add_f32 v{T0}, v{SR}, v{SR+1}
v_add_f32 v{T0+1}, v{SR+2}, v{SR+3}
v_add_f32 v{T0+2}, v{SR+4}, v{SR+5}
v_add_f32 v{T0+3}, v{SR+6}, v{SR+7}
v_add_f32 v{T0}, v{T0}, v{T0+1}
v_add_f32 v{T0+2}, v{T0+2}, v{T0+3}""")
    if NS > 8: A(f"v_add_f32 v{T0}, v{T0}, v{SR+8}")
    A(f"v_add_f32 v{T0+1}, v{T0}, v{T0+2}")
    for k in range(NS): A(f"v_cvt_pk_bf16_f32 v{SR+k}, v{SR+k}, v{SR+k}")
    allreduce("v_add_f32", [T0 + 1])
    A(f"""v_mov_b32 v{T0}, s14
s_lshl_b32 s12, s3, 3
s_add_u32 s12, s12, {L_ML}
v_mov_b32 v{T0+2}, s12
v_lshlrev_b32 v{T0+3}, 3, v1
v_add_u32 v{T0+3}, {L_DUM}, v{T0+3}
v_cmp_eq_u32 vcc, 63, v1
v_cndmask_b32 v{T0+2}, v{T0+3}, v{T0+2}, vcc
ds_write_b64 v{T0+2}, v[{T0}:{T0+1}]""")
    A(f"""s_mul_i32 s12, s3, {OSTR}
s_add_u32 s12, s12, {L_O}
v_lshlrev_b32 v28, 4, v2
v_lshl_add_u32 v28, v3, 3, v28
v_add_u32 v28, s12, v28
v_cmp_gt_u32 vcc, 32, v1
v_cndmask_b32 v28, v{T0+3}, v28, vcc
s_lshl_b32 s12, s3, 2
s_add_u32 s12, s12, {L_F}
v_mov_b32 v29, s12""")
    stamp(4)
    AB = 8
    def sel(i):
        P = SR + (i >> 4); c = i & 15; a = AB + 4 * (i & 1)
        for r in range(4):
            A(f"v_and_b32_dpp v{a+r}, v{P}, v{MSK+r} row_newbcast:{c} row_mask:0xf bank_mask:0xf")
    sel(0)
    for i in range(NP):
        gi = NP + i
        slot = RING + 4 * (gi % R); a = AB + 4 * (i & 1)
        A(f"s_waitcnt vmcnt({nwait(gi)})")
        mfma32(OA, a, slot, i == 0)
        if i < NP - 1: sel(i + 1)
        if gi + R < TOT: kv_load(gi + R)
        if i == NP - 12:
            A(f"s_mov_b32 s70, {TMO}")
            A("L_fpoll:")
            A("ds_read_b32 v30, v29\ns_waitcnt lgkmcnt(0)\nv_cmp_eq_u32 vcc, -1, v30")
            poll_tail("L_fpoll", sleep=1)
    for r in range(4):
        A(f"v_mul_f32 v{OA+r}, v30, v{OA+r}")
    A(f"v_cvt_pk_bf16_f32 v32, v{OA}, v{OA+1}\nv_cvt_pk_bf16_f32 v33, v{OA+2}, v{OA+3}")
    A("ds_write_b64 v28, v[32:33]\ns_waitcnt lgkmcnt(0)")
    stamp(5)
    A("s_barrier")
    stamp(6)
    A("""s_cmp_eq_u32 s3, 0
s_cbranch_scc1 L_stepB
s_cmp_eq_u32 s3, 3
s_cbranch_scc1 L_stepD
s_cmp_lg_u32 s76, 1
s_cbranch_scc1 L_fin""")
    SB, C1, X, WA, HB = 16, 24, 32, 64, 128
    A(f"""s_sub_u32 s13, s3, 1
s_lshl_b32 s14, s13, 11
s_add_u32 s14, s14, {WS_G + 4096}
s_add_u32 s15, s14, 4096
v_lshlrev_b32 v8, 5, v1
s_mov_b32 s70, {TMO}
v_lshlrev_b32 v9, 8, v3
v_lshl_add_u32 v9, v4, 5, v9
v_and_b32 v10, 1, v5
v_lshl_add_u32 v9, v10, 3, v9
v_lshrrev_b32 v10, 1, v5
v_lshl_add_u32 v9, v10, 15, v9
s_lshl_b32 s12, s13, 4
v_add_u32 v9, s12, v9
v_mov_b32 v10, s10""")
    A("L_c_sbcb:")
    A("""buffer_load_dwordx4 v[40:43], v8, s[52:55], s14 offen sc1
buffer_load_dwordx4 v[44:47], v8, s[52:55], s14 offen offset:16 sc1
buffer_load_dwordx4 v[48:51], v8, s[52:55], s15 offen sc1
buffer_load_dwordx4 v[52:55], v8, s[52:55], s15 offen offset:16 sc1
s_waitcnt vmcnt(0)""")
    tagcheck16([42, 43, 46, 47, 50, 51, 54, 55], 10)
    poll_tail("L_c_sbcb", sleep=1)
    for ks in range(16):
        for jh in range(2):
            A(f"ds_read_b64_tr_b16 v[{WA+4*ks+2*jh}:{WA+4*ks+2*jh+1}], v9 offset:{ks*1024+jh*128}")
    for k, rr in enumerate((40, 41, 44, 45)): unpack(SB + 2 * k, SB + 2 * k + 1, rr)
    for k, rr in enumerate((48, 49, 52, 53)): unpack(C1 + 2 * k, C1 + 2 * k + 1, rr)
    for k in range(8): A(f"v_add_f32 v{C1+k}, 1.0, v{C1+k}")
    for k in range(4): A(f"v_cvt_pk_bf16_f32 v{40+k}, v{C1+2*k}, v{C1+2*k+1}")
    for k in range(4): unpack(C1 + 2 * k, C1 + 2 * k + 1, 40 + k)
    A(f"""s_lshl_b32 s14, s13, 10
s_add_u32 s15, s14, {L_H2}
s_add_u32 s14, s14, {WS_X1}
v_lshlrev_b32 v8, 4, v1
v_add_u32 v10, s15, v8
v_and_b32 v11, 1, v1
v_lshlrev_b32 v12, 10, v11
v_lshl_add_u32 v12, v3, 4, v12
v_add_u32 v12, {L_H2}, v12
v_lshlrev_b32 v13, 5, v11
v_and_b32 v14, 1, v3
v_lshl_add_u32 v13, v14, 3, v13
v_lshrrev_b32 v14, 1, v3
v_lshl_add_u32 v13, v14, 2, v13
s_add_u32 s12, s12, {L_HH}
v_add_u32 v13, s12, v13
v_lshlrev_b32 v14, 2, v1
v_add_u32 v14, {L_DUM}, v14
v_cmp_gt_u32 vcc, 2, v2
v_cndmask_b32 v13, v14, v13, vcc
s_mov_b32 s68, {EPS:#x}
s_mov_b32 s69, {LOG2E:#x}
s_mov_b32 s70, {TMO}
s_waitcnt lgkmcnt(0)""")
    stamp(7)
    A("L_c_x1:")
    A("buffer_load_dwordx4 v[40:43], v8, s[52:55], s14 offen sc1\ns_waitcnt vmcnt(0)")
    A("v_max3_u32 v44, v40, v41, v42\nv_max_u32 v44, v44, v43\nv_cmp_eq_u32 vcc, -1, v44")
    poll_tail("L_c_x1", sleep=sleep_tail)
    stamp(8)
    for k in range(4): unpack(X + 2 * k, X + 2 * k + 1, 40 + k)
    layernorm8(X, 44, "s68")
    for k in range(8): A(f"v_mul_f32 v{X+k}, v{X+k}, v{C1+k}")
    for k in range(4): A(f"v_cvt_pk_bf16_f32 v{44+k}, v{X+2*k}, v{X+2*k+1}")
    for k in range(4): unpack(X + 2 * k, X + 2 * k + 1, 44 + k)
    for k in range(8): A(f"v_add_f32 v{X+k}, v{X+k}, v{SB+k}")
    for k in range(4): A(f"v_cvt_pk_bf16_f32 v{44+k}, v{X+2*k}, v{X+2*k+1}")
    A("ds_write_b128 v10, v[44:47]\ns_waitcnt lgkmcnt(0)\ns_barrier")
    for ks in range(16):
        A(f"ds_read_b128 v[{HB+4*ks}:{HB+4*ks+3}], v12 offset:{ks*64}")
    for ks in range(16):
        A(f"s_waitcnt lgkmcnt({15-ks})")
        mfma32(40, WA + 4 * ks, HB + 4 * ks, ks == 0)
    A("v_permlane32_swap_b32 v40, v42\nv_permlane32_swap_b32 v41, v43")
    A("v_cvt_pk_bf16_f32 v44, v40, v41\nv_cvt_pk_bf16_f32 v45, v42, v43")
    unpack(40, 41, 44); unpack(42, 43, 45)
    A("""v_mul_f32 v44, s69, v40
v_mul_f32 v45, s69, v41
v_exp_f32 v44, -v44
v_exp_f32 v45, -v45
v_add_f32 v44, 1.0, v44
v_add_f32 v45, 1.0, v45
v_rcp_f32 v44, v44
v_rcp_f32 v45, v45
v_mul_f32 v40, v40, v44
v_mul_f32 v41, v41, v45
v_cvt_pk_bf16_f32 v44, v40, v41""")
    unpack(40, 41, 44)
    A("""v_mul_f32 v40, v40, v42
v_mul_f32 v41, v41, v43
v_cvt_pk_bf16_f32 v44, v40, v41
ds_write_b32 v13, v44
s_waitcnt lgkmcnt(0)
s_barrier""")
    stamp(9)
    A("L_fin:")
    finish()
    A("L_stepB:")
    srd(56, 16, 2048)
    A(f"""s_lshl_b32 s14, s2, 4
s_add_u32 s14, s14, {WS_G}
s_lshl_b32 s15, s2, 3
s_lshl_b32 s66, s2, 11
s_add_u32 s72, s66, {WS_Y}
s_add_u32 s73, s15, {WS_X1}
v_mov_b32 v8, 0
v_lshlrev_b32 v9, 4, v1
v_mov_b32 v10, {OOB:#x}
v_cmp_eq_u32 vcc, 63, v1
v_cndmask_b32 v10, v10, v8, vcc
v_mov_b32 v11, s10
s_mov_b32 s70, {TMO}
buffer_load_dwordx2 v[16:17], v8, s[56:59], s15 offen""")
    A("L_b_ga:")
    A("buffer_load_dwordx4 v[12:15], v8, s[52:55], s14 offen sc1\ns_waitcnt vmcnt(0)")
    tagcheck16([14, 15], 11)
    poll_tail("L_b_ga", sleep=1)
    unpack(20, 21, 12); unpack(22, 23, 13)
    unpack(24, 25, 16); unpack(26, 27, 17)
    A(f"s_mov_b32 s70, {TMO}")
    stamp(7)
    A("L_b_y:")
    A("""buffer_load_dwordx4 v[28:31], v9, s[52:55], s72 offen sc1
buffer_load_dwordx4 v[32:35], v9, s[52:55], s72 offen offset:1024 sc1
s_waitcnt vmcnt(0)
v_max3_u32 v36, v28, v29, v30
v_max3_u32 v37, v31, v32, v33
v_add_f32 v28, v28, v32
v_max3_u32 v36, v36, v34, v35
v_add_f32 v29, v29, v33
v_max_u32 v36, v36, v37
v_add_f32 v30, v30, v34
v_cmp_eq_u32 vcc, -1, v36
v_add_f32 v31, v31, v35""")
    poll_tail("L_b_y", sleep=sleep_tail)
    stamp(8)
    allreduce("v_add_f32", [28, 29, 30, 31])
    resid4(28, 20, 24, 32)
    A("v_min_u32 v32, -2, v32\nv_min_u32 v33, -2, v33")
    A("buffer_store_dwordx2 v[32:33], v10, s[52:55], s73 offen sc1")
    stamp(9)
    finish()
    A("L_stepD:")
    A("s_cmp_lg_u32 s76, 3\ns_cbranch_scc1 L_fin")
    srd(56, 38, 2048)
    A(f"""s_lshl_b32 s14, s77, 5
s_add_u32 s14, s14, {WS_G + 3*4096}
s_lshl_b32 s15, s77, 4
s_add_u32 s73, s15, {WS_X1}
s_mul_i32 s72, s77, 3072
s_add_u32 s72, s72, {WS_OP}
v_lshrrev_b32 v8, 5, v1
v_lshlrev_b32 v9, 4, v8
v_lshlrev_b32 v10, 3, v8
v_mul_u32_u24 v11, 1536, v8
v_and_b32 v12, 31, v1
v_lshl_add_u32 v11, v12, 4, v11
v_mov_b32 v13, {OOB:#x}
v_cmp_gt_u32 vcc, 22, v12
v_cndmask_b32 v14, v13, v11, vcc
v_cmp_eq_u32 vcc, 31, v12
v_cndmask_b32 v15, v13, v10, vcc
v_cmp_eq_u32 vcc, 0, v1
v_cndmask_b32 v13, v13, v1, vcc
v_mov_b32 v12, s10
s_mov_b32 s70, {TMO}""")
    A("L_d_pre:")
    A("""buffer_load_dwordx4 v[16:19], v9, s[52:55], s14 offen sc1
buffer_load_dwordx2 v[20:21], v10, s[52:55], s73 offen sc1
s_waitcnt vmcnt(0)
v_max_u32 v22, v20, v21""")
    tagcheck16([18, 19], 12)
    A("v_cmp_eq_u32 s[66:67], -1, v22\ns_or_b64 vcc, vcc, s[66:67]")
    poll_tail("L_d_pre", sleep=1)
    unpack(24, 25, 16); unpack(26, 27, 17)
    unpack(28, 29, 20); unpack(30, 31, 21)
    A(f"s_mov_b32 s70, {TMO}")
    stamp(7)
    A("L_d_op:")
    A("""buffer_load_dwordx4 v[32:35], v11, s[52:55], s72 offen sc1
buffer_load_dwordx4 v[36:39], v11, s[52:55], s72 offen offset:512 sc1
buffer_load_dwordx4 v[40:43], v14, s[52:55], s72 offen offset:1024 sc1
s_waitcnt vmcnt(1)
v_max3_u32 v44, v32, v33, v34
v_max3_u32 v45, v35, v36, v37
v_add_f32 v32, v32, v36
v_add_f32 v33, v33, v37
v_max3_u32 v44, v44, v38, v39
v_add_f32 v34, v34, v38
v_add_f32 v35, v35, v39
s_waitcnt vmcnt(0)
v_max3_u32 v45, v45, v40, v41
v_add_f32 v32, v32, v40
v_max3_u32 v44, v44, v42, v43
v_add_f32 v33, v33, v41
v_max_u32 v44, v44, v45
v_add_f32 v34, v34, v42
v_cmp_eq_u32 vcc, -1, v44
v_add_f32 v35, v35, v43""")
    poll_tail("L_d_op", sleep=sleep_tail)
    stamp(8)
    allreduce("v_add_f32", [32, 33, 34, 35], full=False)
    resid4(32, 24, 28, 36)
    A("buffer_store_dwordx2 v[36:37], v15, s[56:59], s15 offen")
    A("s_cmp_lg_u32 s77, 0\ns_cbranch_scc1 L_fin3")
    A("buffer_store_dword v12, v13, s[52:55], 0 offen sc1")
    A("L_fin3:")
    stamp(9)
    finish()
    A("L_service:")
    if prio: A(f"s_setprio {prio}")
    W, TT, BB = 64, 192, 32
    roles()
    A(f"""s_mov_b32 s73, s12
s_sub_u32 s12, s3, 4
s_lshl_b32 s13, s12, 15
v_lshlrev_b32 v7, 4, v1
v_mov_b32 v13, v7
v_add_u32 v7, s13, v7
v_lshlrev_b32 v6, 13, v3
v_lshl_add_u32 v6, v2, 4, v6
v_lshlrev_b32 v8, 11, v3
v_lshl_add_u32 v8, v4, 8, v8
v_lshl_add_u32 v8, v5, 3, v8
v_add_u32 v8, s13, v8
v_and_b32 v10, 1, v1
v_mov_b32 v31, {OOB:#x}
s_mov_b32 s68, {EPS:#x}
s_mov_b32 s69, {LOG2E:#x}
s_waitcnt lgkmcnt(0)""")
    if diag: A("s_mov_b32 s80, s78")
    A("s_load_dword s11, s[42:43], 0")
    srd(44, 22, 512 * 8192)
    srd(48, 36, 512 * 6144)
    srd(52, 42, WS_END)
    srd(56, 16, 2048)
    srd(60, 34, 2048)
    A("""s_cmp_eq_u32 s3, 4
s_cbranch_scc1 L_s_q
s_cmp_eq_u32 s3, 5
s_cbranch_scc1 L_s_warm
s_cmp_eq_u32 s3, 6
s_cbranch_scc1 L_s_bar1
s_cmp_lg_u32 s76, 3
s_cbranch_scc1 L_s_bar1
s_cmp_ge_u32 s73, 8
s_cbranch_scc1 L_s_bar1""")
    A("""s_lshl_b32 s72, s4, 3
s_add_u32 s72, s72, s73
s_lshr_b32 s13, s72, 2
s_and_b32 s14, s72, 3
s_mov_b32 s15, 1""")
    A("L_modjob:")
    A(f"""s_lshl_b32 s65, s13, 7
s_mul_i32 s64, s14, {128*6144}
s_add_u32 s65, s65, s64
s_lshl_b32 s64, s14, 8
v_lshrrev_b32 v9, 3, v1
v_mul_u32_u24 v9, 6144, v9
v_and_b32 v11, 7, v1
v_lshl_add_u32 v9, v11, 4, v9
v_lshrrev_b32 v11, 5, v1
v_and_b32 v12, 31, v1
v_lshlrev_b32 v12, 3, v12
v_lshl_add_u32 v14, v11, 10, v12
v_lshl_add_u32 v15, v11, 8, v12
v_add_u32 v15, {L_SC}, v15
v_lshlrev_b32 v11, 10, v3
v_lshl_add_u32 v11, v4, 7, v11
v_lshl_add_u32 v11, v5, 3, v11
v_add_u32 v11, {3*32768}, v11
v_lshlrev_b32 v12, 8, v10
v_lshl_add_u32 v12, v3, 4, v12
v_add_u32 v12, {L_SC}, v12""")
    for k in range(16): A(f"v_mov_b32 v{48+k}, 0")
    A("L_modloop:")
    A("buffer_load_dwordx2 v[16:17], v14, s[60:63], s64 offen")
    for i in range(16):
        A(f"buffer_load_dwordx4 v[{TT+4*i}:{TT+4*i+3}], v9, s[48:51], s65 offen {tpol}")
        A(f"s_add_u32 s65, s65, {8*6144:#x}")
    A("s_addk_i32 s64, 0x100\ns_waitcnt vmcnt(16)")
    unpack(20, 21, 16); unpack(22, 23, 17)
    for k in range(4): A(f"v_mul_f32 v{24+k}, s69, v{20+k}")
    for k in range(4): A(f"v_exp_f32 v{24+k}, -v{24+k}")
    for k in range(4): A(f"v_add_f32 v{24+k}, 1.0, v{24+k}")
    for k in range(4): A(f"v_rcp_f32 v{24+k}, v{24+k}")
    for k in range(4): A(f"v_mul_f32 v{20+k}, v{20+k}, v{24+k}")
    A("v_cvt_pk_bf16_f32 v16, v20, v21\nv_cvt_pk_bf16_f32 v17, v22, v23\nds_write_b64 v15, v[16:17]")
    for ks in range(4):
        A(f"ds_read_b128 v[{BB+4*ks}:{BB+4*ks+3}], v12 offset:{ks*64}")
    for ks in range(4):
        for i in range(4 * ks, 4 * ks + 4):
            A(f"s_waitcnt vmcnt({15 - i})")
            A(f"ds_write_b128 v7, v[{TT+4*i}:{TT+4*i+3}] offset:{i*1024}")
        for tt in range(4):
            for jh in range(2):
                d = TT + (ks * 4 + tt) * 4 + jh * 2
                A(f"ds_read_b64_tr_b16 v[{d}:{d+1}], v11 offset:{ks*4096+jh*512+tt*32}")
    for ks in range(4):
        A(f"s_waitcnt lgkmcnt({0 if ks == 3 else 12})")
        for tt in range(4):
            mfma32(48 + 4 * tt, TT + (ks * 4 + tt) * 4, BB + 4 * ks, False)
    A("s_sub_u32 s15, s15, 1\ns_cmp_lg_u32 s15, 0\ns_cbranch_scc1 L_modloop")
    A("s_add_u32 s10, s11, 0x9e3779b9")
    A("v_bfe_u32 v9, v1, 1, 2")
    for tt in range(1, 4):
        A(f"v_cmp_eq_u32 vcc, {tt}, v9")
        for r in range(4): A(f"v_cndmask_b32 v{48+r}, v{48+r}, v{48+4*tt+r}, vcc")
    A("v_lshlrev_b32 v9, 6, v9\nv_lshl_add_u32 v9, v3, 4, v9\nv_cmp_gt_u32 vcc, 8, v2")
    A("s_cmp_eq_u32 s76, 2\ns_cbranch_scc1 L_modblk")
    A(f"""v_lshl_add_u32 v9, v10, 8, v9
v_cndmask_b32 v9, v31, v9, vcc
v_mov_b32 v11, 0xffffff00
s_lshr_b32 s13, s10, 8
s_lshr_b32 s14, s10, 16
s_lshr_b32 s15, s10, 24
v_bfi_b32 v48, v11, v48, s10
v_bfi_b32 v49, v11, v49, s13
v_bfi_b32 v50, v11, v50, s14
v_bfi_b32 v51, v11, v51, s15
s_lshl_b32 s13, s72, 9
s_add_u32 s13, s13, {WS_MP}
buffer_store_dwordx4 v[48:51], v9, s[52:55], s13 offen sc1""")
    stamp(1)
    A(f"""s_branch L_s_bar1
L_modblk:
v_lshl_add_u32 v9, v10, 11, v9
v_cndmask_b32 v9, v31, v9, vcc
v_cvt_pk_bf16_f32 v48, v48, v49
v_cvt_pk_bf16_f32 v49, v50, v51
v_mov_b32 v50, s10
v_mov_b32 v51, s10
s_lshr_b32 s13, s77, 3
s_lshl_b32 s13, s13, 12
s_and_b32 s14, s77, 7
s_lshl_b32 s14, s14, 8
s_add_u32 s13, s13, s14
s_add_u32 s13, s13, {WS_G}
buffer_store_dwordx4 v[48:51], v9, s[52:55], s13 offen sc1
s_branch L_s_wo""")
    A(f"""L_s_warm:
s_getpc_b64 s[66:67]
L_pc:
s_sub_u32 s66, s66, L_pc-{KNAME}
s_subb_u32 s67, s67, 0
s_lshl_b32 s13, s5, 10
v_add_u32 v14, s13, v13
v_min_u32 v14, L_codeend-{KNAME}-16, v14
global_load_dwordx4 v[20:23], v14, s[66:67]
s_branch L_s_bar1""")
    A("L_s_q:")
    A(f"""s_lshl_b32 s64, s6, 8
s_lshl_b32 s13, s7, 19
s_add_u32 s64, s64, s13
buffer_load_dwordx4 v[24:27], v13, s[56:59], 0 offen
buffer_load_dwordx4 v[28:31], v13, s[56:59], 0 offen offset:1024""")
    for i in range(16):
        A(f"buffer_load_dwordx4 v[{W+4*i}:{W+4*i+3}], v6, s[44:47], s64 offen {tpol}")
        if i < 15: A("s_add_u32 s64, s64, 0x8000")
    A(f"""v_mov_b32 v14, -1
v_lshlrev_b32 v15, 2, v2
v_add_u32 v15, {L_ML}, v15
ds_write_b32 v15, v14
v_lshrrev_b32 v9, 1, v2""")
    A("v_mov_b32 v63, v9")
    A(f"""v_lshlrev_b32 v9, 6, v9
v_lshl_add_u32 v9, v10, 9, v9
v_lshl_add_u32 v9, v3, 4, v9
v_lshrrev_b32 v16, 5, v1
v_and_b32 v17, 31, v1
v_lshlrev_b32 v14, 14, v16
v_lshl_add_u32 v14, v17, 4, v14
v_lshlrev_b32 v6, 10, v16
v_lshl_add_u32 v6, v17, 4, v6
v_lshlrev_b32 v23, 3, v17
v_lshl_add_u32 v23, v16, 2, v23
v_add_u32 v23, {L_Q}, v23
v_lshlrev_b32 v18, 3, v2
v_lshl_add_u32 v18, v16, 2, v18
v_and_b32 v19, 1, v3
v_lshl_add_u32 v11, v19, 7, v18
v_add_u32 v11, {L_HL}, v11
v_lshl_add_u32 v15, v19, 10, v18
s_lshl_b32 s13, s7, 7
s_add_u32 s13, s13, {L_H2}
v_add_u32 v15, s13, v15
v_lshlrev_b32 v12, 7, v10
v_lshl_add_u32 v12, v3, 4, v12
v_add_u32 v12, {L_HL}, v12
s_waitcnt vmcnt(16)""")
    for b in range(2):
        for k in range(4): unpack(BB + 2 * k, BB + 2 * k + 1, 24 + 4 * b + k)
        layernorm8(BB, BB + 8, "s68")
        A(f"v_add_u32 v16, {L_H2 + 1024*b}, v13\nds_write_b128 v16, v[{BB+12}:{BB+15}]")
    A(f"ds_read_b32 v22, v15\nv_mov_b32 v31, {OOB:#x}")
    for i in range(16):
        A(f"s_waitcnt vmcnt({15 - i})")
        A(f"ds_write_b128 v7, v[{W+4*i}:{W+4*i+3}] offset:{i*1024}")
    for tt in range(8):
        for ks in range(2):
            for jh in range(2):
                d = W + (tt * 2 + ks) * 4 + jh * 2
                A(f"ds_read_b64_tr_b16 v[{d}:{d+1}], v8 offset:{ks*8192+jh*1024+tt*32}")
    A(f"""s_waitcnt lgkmcnt(0)
s_add_u32 s10, s11, 0x9e3779b9
s_lshl_b32 s13, s7, 11
s_add_u32 s13, s13, {WS_MP}
s_mov_b32 s14, 0x0c0c0400
s_mov_b32 s15, 0x04000c0c
v_mov_b32 v24, s10
v_mov_b32 v25, 0xffffff00
s_lshr_b32 s92, s10, 8
s_lshr_b32 s93, s10, 16
s_lshr_b32 s94, s10, 24
s_lshl_b32 s95, s6, 13
s_add_u32 s95, s95, {WS_QP}
s_lshl_b32 s64, s7, 10
s_add_u32 s64, s64, s95
s_lshl_b32 s65, s8, 9
s_add_u32 s95, s95, s65
s_add_u32 s65, s95, 4096
s_mov_b32 s70, {TMO}""")
    unpack(26, 27, 22)
    stamp(1)
    A("L_q_mp:")
    for rq in range(4):
        A(f"buffer_load_dwordx4 v[{BB+4*rq}:{BB+4*rq+3}], v14, s[52:55], s13 offen offset:{rq*512} sc1")
    A("s_waitcnt vmcnt(0)")
    tagcheck_lb([BB, BB + 4, BB + 8, BB + 12], 24, 16, "s14", "s15")
    poll_tail("L_q_mp")
    stamp(2)
    for r in range(4): A(f"v_add_f32 v{BB+r}, v{BB+r}, v{BB+4+r}")
    for r in range(4): A(f"v_add_f32 v{BB+8+r}, v{BB+8+r}, v{BB+12+r}")
    for r in range(4): A(f"v_add_f32 v{BB+r}, v{BB+r}, v{BB+8+r}")
    A(f"v_permlane32_swap_b32 v{BB}, v{BB+2}\nv_permlane32_swap_b32 v{BB+1}, v{BB+3}")
    A(f"v_cvt_pk_bf16_f32 v20, v{BB}, v{BB+1}\nv_cvt_pk_bf16_f32 v21, v{BB+2}, v{BB+3}")
    unpack(18, 19, 21)
    unpack(16, 17, 20)
    A("v_add_f32 v18, 1.0, v18\nv_add_f32 v19, 1.0, v19\nv_cvt_pk_bf16_f32 v21, v18, v19")
    unpack(18, 19, 21)
    A("v_mul_f32 v18, v18, v26\nv_mul_f32 v19, v19, v27\nv_cvt_pk_bf16_f32 v21, v18, v19")
    unpack(18, 19, 21)
    A("v_add_f32 v18, v18, v16\nv_add_f32 v19, v19, v17\nv_cvt_pk_bf16_f32 v21, v18, v19")
    A("ds_write_b32 v11, v21")
    A(f"ds_read_b128 v[{BB}:{BB+3}], v12\nds_read_b128 v[{BB+4}:{BB+7}], v12 offset:64")
    for ks in range(2):
        A(f"s_waitcnt lgkmcnt({1-ks})")
        for tt in range(8):
            mfma32(TT + 4 * tt, W + (tt * 2 + ks) * 4, BB + 4 * ks, ks == 0)
    A("v_cmp_eq_u32 s[66:67], 1, v63")
    for tt in range(1, 8):
        cur = "s[66:67]" if tt & 1 else "vcc"
        nxt = "vcc" if tt & 1 else "s[66:67]"
        if tt < 7: A(f"v_cmp_eq_u32 {nxt}, {tt+1}, v63")
        for r in range(4):
            A(f"v_cndmask_b32 v{TT+r}, v{TT+r}, v{TT+4*tt+r}, {cur}")
    A(f"""v_bfi_b32 v{TT}, v25, v{TT}, s10
v_bfi_b32 v{TT+1}, v25, v{TT+1}, s92
v_bfi_b32 v{TT+2}, v25, v{TT+2}, s93
v_bfi_b32 v{TT+3}, v25, v{TT+3}, s94
buffer_store_dwordx4 v[{TT}:{TT+3}], v9, s[52:55], s64 offen sc1
s_mov_b32 s70, {TMO}""")
    stamp(3)
    A("L_q_qp:")
    for m in range(4):
        A(f"buffer_load_dwordx4 v[{BB+4*m}:{BB+4*m+3}], v6, s[52:55], {'s95' if m < 2 else 's65'} offen offset:{(m&1)*2048} sc1")
    A("s_waitcnt vmcnt(0)")
    tagcheck_lb([BB, BB + 4, BB + 8, BB + 12], 24, 16, "s14", "s15")
    poll_tail("L_q_qp")
    stamp(4)
    for r in range(4): A(f"v_add_f32 v{BB+r}, v{BB+r}, v{BB+4+r}")
    for r in range(4): A(f"v_add_f32 v{BB+8+r}, v{BB+8+r}, v{BB+12+r}")
    for r in range(4): A(f"v_add_f32 v{BB+r}, v{BB+r}, v{BB+8+r}")
    A(f"v_permlane32_swap_b32 v{BB}, v{BB+2}\nv_permlane32_swap_b32 v{BB+1}, v{BB+3}")
    A(f"v_add_f32 v{BB}, v{BB}, v{BB+2}\nv_add_f32 v{BB+1}, v{BB+1}, v{BB+3}\nv_cvt_pk_bf16_f32 v20, v{BB}, v{BB+1}")
    A("ds_write_b32 v23, v20")
    A("L_s_bar1:")
    A("s_waitcnt lgkmcnt(0)\ns_add_u32 s10, s11, 0x9e3779b9")
    A("s_barrier")
    A(f"""s_cmp_lg_u32 s3, 7
s_cbranch_scc1 L_s_nomb
s_cmp_lg_u32 s76, 2
s_cbranch_scc1 L_s_wo
s_add_u32 s13, s77, 16
s_mov_b32 s14, 0
s_mov_b32 s15, 4
s_branch L_modjob
L_s_nomb:
s_cmp_lg_u32 s3, 5
s_cbranch_scc1 L_s_wo
v_mov_b32 v16, -1
v_mov_b32 v17, -1
v_mov_b32 v18, -1
v_mov_b32 v19, -1
v_lshlrev_b32 v14, 11, v1
s_lshl_b32 s13, s6, 2
s_add_u32 s13, s13, s9
s_lshl_b32 s13, s13, 4
s_lshl_b32 s14, s8, 18
s_add_u32 s13, s13, s14
s_add_u32 s13, s13, {WS_Y}
s_waitcnt vmcnt(0)
buffer_store_dwordx4 v[16:19], v14, s[52:55], s13 offen sc1
s_add_u32 s13, s13, 0x20000
buffer_store_dwordx4 v[16:19], v14, s[52:55], s13 offen sc1
v_cmp_eq_u32 vcc, 0, v1
v_cndmask_b32 v14, v31, v1, vcc
s_lshl_b32 s13, s2, 3
s_add_u32 s13, s13, {WS_X1}
buffer_store_dwordx2 v[16:17], v14, s[52:55], s13 offen sc1
s_cmp_lg_u32 s76, 1
s_cbranch_scc1 L_s_noclrh
v_mul_u32_u24 v15, 1536, v1
s_lshl_b32 s13, s77, 4
s_add_u32 s13, s13, {WS_OP}""")
    for i in range(4):
        A(f"buffer_store_dwordx4 v[16:19], v15, s[52:55], s13 offen sc1\ns_add_u32 s13, s13, {64*1536:#x}")
    A("L_s_noclrh:")
    srd(56, 40, 256)
    A("""v_mov_b32 v16, 1
s_waitcnt vmcnt(0)
buffer_store_byte v16, v14, s[56:59], s2 offen sc1""")
    A("L_s_wo:")
    srd(44, 24, 4096 * 1024)
    A(f"""v_lshlrev_b32 v14, 10, v3
v_lshl_add_u32 v14, v2, 4, v14
s_lshl_b32 s64, s6, 17
s_lshl_b32 s13, s12, 8
s_add_u32 s64, s64, s13
v_lshlrev_b32 v30, 11, v3
v_cmp_eq_u32 vcc, 0, v2
v_cndmask_b32 v30, v31, v30, vcc
s_lshl_b32 s74, s8, 18
s_lshl_b32 s13, s12, 16
s_add_u32 s74, s74, s13
s_lshl_b32 s13, s6, 2
s_add_u32 s13, s13, s9
s_lshl_b32 s13, s13, 4
s_add_u32 s74, s74, s13
s_add_u32 s74, s74, {WS_Y}
s_waitcnt vmcnt(0)""")
    for i in range(32):
        A(f"buffer_load_dwordx4 v[{W+4*i}:{W+4*i+3}], v14, s[44:47], s64 offen {wpol}")
        if i < 31: A("s_addk_i32 s64, 0x1000")
    for i in range(32):
        A(f"s_waitcnt vmcnt({31 - i})")
        A(f"ds_write_b128 v7, v[{W+4*i}:{W+4*i+3}] offset:{i*1024}")
    for tt in range(8):
        for ks in range(4):
            for jh in range(2):
                d = W + (tt * 4 + ks) * 4 + jh * 2
                A(f"ds_read_b64_tr_b16 v[{d}:{d+1}], v8 offset:{ks*8192+jh*1024+tt*32}")
    A("s_waitcnt lgkmcnt(0)")
    stamp(5)
    W2 = 240
    A("s_cmp_lg_u32 s76, 1\ns_cbranch_scc1 L_s_ffndone")
    srd(44, 32, 1376 * 1024)
    A("""s_lshl_b32 s64, s77, 14
s_lshl_b32 s13, s12, 8
s_add_u32 s64, s64, s13
v_lshlrev_b32 v15, 10, v3
v_lshl_add_u32 v15, v4, 8, v15
v_lshl_add_u32 v15, v5, 3, v15
s_lshl_b32 s13, s12, 15
v_add_u32 v15, s13, v15""")
    for i in range(4):
        A(f"buffer_load_dwordx4 v[{TT+4*i}:{TT+4*i+3}], v14, s[44:47], s64 offen {tpol}\ns_addk_i32 s64, 0x1000")
    for i in range(4):
        A(f"s_waitcnt vmcnt({3 - i})\nds_write_b128 v7, v[{TT+4*i}:{TT+4*i+3}] offset:{i*1024}")
    for tt in range(8):
        A(f"ds_read_b64_tr_b16 v[{W2+2*tt}:{W2+2*tt+1}], v15 offset:{tt*32}")
    A(f"""v_mul_u32_u24 v29, 1536, v3
s_mov_b32 s13, {128*1536}
v_mul_lo_u32 v15, v10, s13
v_add_u32 v29, v29, v15
v_cmp_gt_u32 vcc, 2, v2
v_cndmask_b32 v29, v31, v29, vcc
s_mul_i32 s75, s12, {32*1536}
s_lshl_b32 s13, s77, 4
s_add_u32 s75, s75, s13
s_add_u32 s75, s75, {WS_OP}
v_lshlrev_b32 v28, 5, v10
v_lshl_add_u32 v28, v3, 3, v28
v_add_u32 v28, {L_HH}, v28
s_waitcnt lgkmcnt(0)
s_cmp_ge_u32 s3, 6
s_cbranch_scc1 L_s_ffndone
s_cmp_eq_u32 s3, 4
s_cselect_b32 s44, s28, s30
s_cselect_b32 s45, s29, s31
s_mov_b32 s46, {512*2752:#x}
s_mov_b32 s47, 0x20000
v_lshrrev_b32 v14, 1, v1
v_mul_u32_u24 v14, 2752, v14
v_lshl_add_u32 v14, v10, 4, v14
s_lshl_b32 s65, s77, 5""")
    for half in range(2):
        for k in range(8):
            A(f"buffer_load_dwordx4 v[{TT+4*k}:{TT+4*k+3}], v14, s[44:47], s65 offen {wpol}\ns_add_u32 s65, s65, {32*2752:#x}")
        for k in range(8):
            A(f"s_waitcnt vmcnt({7 - k})\nds_write_b128 v7, v[{TT+4*k}:{TT+4*k+3}] offset:{(8*half+k)*1024}")
    A("L_s_ffndone:")
    A(f"""s_cmp_lg_u32 s3, 5
s_cbranch_scc1 L_s_noflag
v_lshlrev_b32 v14, 2, v1
s_mov_b32 s70, {TMO}
s_mov_b32 s13, 0x01010101
L_s_flag:
buffer_load_dword v16, v14, s[56:59], 0 offen sc1
s_waitcnt vmcnt(0)
v_cmp_ne_u32 vcc, s13, v16""")
    poll_tail("L_s_flag", sleep=4)
    A(f"""L_s_noflag:
s_cmp_lg_u32 s3, 4
s_cbranch_scc1 L_s_noml
v_lshlrev_b32 v14, 3, v5
v_add_u32 v14, {L_ML}, v14
s_mov_b32 s70, {TMO*4}
L_s_ml:
ds_read_b64 v[16:17], v14
s_waitcnt lgkmcnt(0)
v_cmp_eq_u32 vcc, -1, v17""")
    poll_tail("L_s_ml", sleep=8)
    def quad_red(op, d, s):
        A(f"{op}_dpp v{d}, v{s}, v{s} quad_perm:[1,0,3,2] row_mask:0xf bank_mask:0xf")
        A(f"{op}_dpp v{d}, v{d}, v{d} quad_perm:[2,3,0,1] row_mask:0xf bank_mask:0xf")
    quad_red("v_max_f32", 20, 16)
    A("v_sub_f32 v18, v16, v20\nv_mul_f32 v18, s69, v18\nv_exp_f32 v18, v18\nv_mul_f32 v18, v18, v17")
    quad_red("v_add_f32", 22, 18)
    A(f"""v_mov_b32 v21, s10
v_mov_b32 v23, s10
v_mov_b32 v24, s10
s_lshl_b32 s13, s8, 5
s_add_u32 s13, s13, s6
s_lshl_b32 s13, s13, 6
s_add_u32 s13, s13, {WS_ML}
s_lshl_b32 s14, s9, 4
s_add_u32 s14, s14, s13
v_cmp_eq_u32 vcc, 0, v1
v_cndmask_b32 v14, v31, v1, vcc
v_lshlrev_b32 v15, 4, v5
buffer_store_dwordx4 v[20:23], v14, s[52:55], s14 offen sc1
s_mov_b32 s70, {TMO}
L_s_ml2:
buffer_load_dwordx4 v[32:35], v15, s[52:55], s13 offen sc1
s_waitcnt vmcnt(0)""")
    tagcheck16([33, 35], 24)
    poll_tail("L_s_ml2", sleep=4)
    quad_red("v_max_f32", 20, 32)
    A("v_sub_f32 v18, v32, v20\nv_mul_f32 v18, s69, v18\nv_exp_f32 v18, v18\nv_mul_f32 v18, v18, v34")
    quad_red("v_add_f32", 22, 18)
    A(f"""v_rcp_f32 v22, v22
v_sub_f32 v18, v16, v20
v_mul_f32 v18, s69, v18
v_exp_f32 v18, v18
v_lshlrev_b32 v14, 2, v5
v_add_u32 v14, {L_F}, v14
v_mul_f32 v18, v18, v22
v_min_u32 v18, -2, v18
ds_write_b32 v14, v18
L_s_noml:""")
    A(f"""v_mul_u32_u24 v14, {OSTR}, v5
v_lshl_add_u32 v14, v3, 4, v14
v_add_u32 v14, {L_O}, v14
s_waitcnt vmcnt(0) lgkmcnt(0)""")
    stamp(6)
    A("s_barrier")
    stamp(7)
    OB, DY = 192, 32
    for ks in range(4):
        A(f"ds_read_b128 v[{OB+4*ks}:{OB+4*ks+3}], v14 offset:{ks*64}")
    def ypost(tt):
        D = DY + 4 * tt
        ops = [f"v_add_f32_dpp v{D+r}, v{D+r}, v{D+r} quad_perm:[1,0,3,2] row_mask:0xf bank_mask:0xf" for r in range(4)]
        ops += [f"v_add_f32_dpp v{D+r}, v{D+r}, v{D+r} quad_perm:[2,3,0,1] row_mask:0xf bank_mask:0xf" for r in range(4)]
        ops += [f"buffer_store_dwordx4 v[{D}:{D+3}], v30, s[52:55], s74 offen sc1" + ("\ns_addk_i32 s74, 0x2000" if tt < 7 else "")]
        return ops
    for tt in range(8):
        D = DY + 4 * tt
        for ks in range(4):
            if tt == 0: A(f"s_waitcnt lgkmcnt({3-ks})")
            mfma32(D, W + (tt * 4 + ks) * 4, OB + 4 * ks, ks == 0)
            if tt >= 2:
                po = ypost(tt - 2)
                for o in po[2 * ks: 2 * ks + 2]: A(o)
                if ks == 3: A(po[8])
    for tt in (6, 7):
        for o in ypost(tt): A(o)
    stamp(8)
    A("s_cmp_lg_u32 s76, 1\ns_cbranch_scc1 L_fin2")
    A("s_barrier\ns_barrier")
    stamp(9)
    A("ds_read_b64 v[16:17], v28\ns_waitcnt lgkmcnt(0)")
    for tt in range(8):
        A(f"v_mfma_f32_16x16x16_bf16 v[{W+4*tt}:{W+4*tt+3}], v[{W2+2*tt}:{W2+2*tt+1}], v[16:17], 0")
        if tt >= 3:
            A(f"buffer_store_dwordx4 v[{W+4*(tt-3)}:{W+4*(tt-3)+3}], v29, s[52:55], s75 offen sc1\ns_addk_i32 s75, 0x1800")
    for tt in range(5, 8):
        A(f"buffer_store_dwordx4 v[{W+4*tt}:{W+4*tt+3}], v29, s[52:55], s75 offen sc1\ns_addk_i32 s75, 0x1800")
    stamp(10)
    A("L_fin2:")
    finish()
    if diag:
        A("L_dump:")
        A("s_memrealtime s[78:79]\ns_waitcnt lgkmcnt(0)\ns_mov_b32 s91, s78")
        A("v_mov_b32 v8, 0")
        for i in range(12):
            A(f"v_writelane_b32 v8, s{80+i}, {i}")
        A(f"""s_lshl_b32 s12, s2, 3
s_add_u32 s12, s12, s3
s_lshl_b32 s12, s12, 8
s_add_u32 s12, s12, {WS_STAMP}
s_mov_b32 s54, 0x300000
v_lshlrev_b32 v9, 2, v1
buffer_store_dword v8, v9, s[52:55], s12 offen""")
    A("L_bail:\ns_endpgm")
    A.raw("L_codeend:")
    A.raw(f""".section .rodata,"a"
.p2align 6
.amdhsa_kernel {KNAME}
  .amdhsa_next_free_vgpr 256
  .amdhsa_next_free_sgpr 102
  .amdhsa_accum_offset 256
  .amdhsa_group_segment_fixed_size 0
  .amdhsa_kernarg_size 112
  .amdhsa_user_sgpr_count 2
  .amdhsa_user_sgpr_kernarg_segment_ptr 1
  .amdhsa_system_sgpr_workgroup_id_x 1
  .amdhsa_float_denorm_mode_32 3
.end_amdhsa_kernel""")
    return A.text()

if __name__ == "__main__":
    out = sys.argv[1]
    kw = json.loads(sys.argv[2]) if len(sys.argv) > 2 else {}
    open(out, "w").write(gen(**kw))
```

```python
import sys, json
sys.path.insert(0, "dev")
from asmlib import Asm

KNAME = "adaLN_cond__mha_block_cached__glu_gated_swiglu__decode_kernel"

WS_G, WS_X1, WS_ML, WS_QP, WS_QP8, WS_Y, WS_OP, WS_MP = 0x1000, 0x6000, 0x8000, 0x10000, 0x50000, 0x70000, 0xf0000, 0x150000
WS_END = 0x180000
WS_STAMP = 0x200000
OSTR = 272
LOG2E = 0x3fb8aa3b
SCALE = 0x3db504f3
EPS = 0x3727c5ac
OOB = 0x7ff00000
TMO = 1 << 18

def gen(R=48, X=28, CAP0=6, CAP=6, diag=False, NB=(128, 128, 128, 128), SD=3, SMD=8, SQ=16, FP=60, shr=3,
        dsleep=30, wpol="nt", fpol="nt", gpol="sc1", tpol="nt", kvpol="nt", prio=3, SF=3, abl="", bsleep=0, csleep=0, cpol="sc1"):
    A = Asm()
    assert sum(NB) == 512
    NP = 4 * ((max(NB) + 3) // 4)
    NS = (NP + 15) // 16
    L_EXT = 32768
    SM = L_EXT + 4096 * X
    SM = max(SM, L_EXT + 65536)
    L_HL, L_SC, L_Q, L_HH, L_FL, L_O, L_DUM, L_H2 = SM, SM + 256, SM + 768, SM + 1024, SM + 1152, SM + 1184, SM + 2272, SM + 2784
    LDS_BYTES = L_H2 + 2048
    assert LDS_BYTES <= 163840

    def stamp(idx):
        if not diag: return
        A("s_memrealtime s[78:79]\ns_waitcnt lgkmcnt(0)")
        A(f"s_mov_b32 s{80+idx}, s78")
    def srd(d, base, nrec, off_lo=None):
        if off_lo is None:
            A(f"s_mov_b32 s{d}, s{base}\ns_mov_b32 s{d+1}, s{base+1}")
        else:
            A(f"s_add_u32 s{d}, s{base}, {off_lo}\ns_addc_u32 s{d+1}, s{base+1}, 0")
        A(f"s_mov_b32 s{d+2}, {nrec if isinstance(nrec, str) else hex(nrec)}\ns_mov_b32 s{d+3}, 0x20000")
    def finish():
        A("s_branch L_dump" if diag else "s_endpgm")
    def poll_tail(lbl, cnt="s70", sleep=0):
        A(f"s_sub_u32 {cnt}, {cnt}, 1\ns_cbranch_scc1 L_bail")
        if sleep:
            ok = A.newlabel("L_ok")
            A(f"s_cbranch_vccz {ok}\ns_sleep {sleep}\ns_branch {lbl}\n{ok}:")
        else:
            A(f"s_cbranch_vccnz {lbl}")
    def unpack(lo, hi, src):
        A(f"v_lshlrev_b32 v{lo}, 16, v{src}\nv_and_b32 v{hi}, 0xffff0000, v{src}")
    def allreduce(op, regs):
        for c in ("row_ror:8", "row_ror:4", "row_ror:2", "row_ror:1"):
            for r in regs:
                A(f"{op}_dpp v{r}, v{r}, v{r} {c} row_mask:0xf bank_mask:0xf")
        for r in regs:
            A(f"{op}_dpp v{r}, v{r}, v{r} row_bcast:15 row_mask:0xa bank_mask:0xf")
        for r in regs:
            A(f"{op}_dpp v{r}, v{r}, v{r} row_bcast:31 row_mask:0xc bank_mask:0xf")
    def mfma32(D, a, b, first):
        A(f"v_mfma_f32_16x16x32_bf16 v[{D}:{D+3}], v[{a}:{a+3}], v[{b}:{b+3}], " + ("0" if first else f"v[{D}:{D+3}]"))
    def tagcheck(regs, tagv):
        for i, rr in enumerate(regs):
            if i == 0: A(f"v_cmp_ne_u32 vcc, v{tagv}, v{rr}")
            else: A(f"v_cmp_ne_u32 s[66:67], v{tagv}, v{rr}\ns_or_b64 vcc, vcc, s[66:67]")
    def scalar_wait(lbl, soff, offs):
        A(f"s_add_u32 s96, s42, {soff}\ns_addc_u32 s97, s43, 0\ns_mov_b32 s71, 64")
        A(f"{lbl}:")
        for i, o in enumerate(offs): A(f"s_load_dword s{16+i}, s[96:97], {o} glc")
        A("s_waitcnt lgkmcnt(0)")
        for i in range(len(offs)): A(f"s_xor_b32 s{16+i}, s{16+i}, s10")
        for i in range(1, len(offs)): A(f"s_or_b32 s16, s16, s{16+i}")
        A(f"s_sub_u32 s71, s71, 1\ns_cbranch_scc1 {lbl}x\ns_cmp_lg_u32 s16, 0\ns_cbranch_scc1 {lbl}\n{lbl}x:")
    def roles():
        l = A.newlabel("L_role")
        A(f"""s_lshr_b32 s12, s2, 4
s_lshl_b32 s77, s4, 3
s_and_b32 s13, s12, 7
s_add_u32 s77, s77, s13
s_mov_b32 s72, s77
s_lshr_b32 s76, s12, 3
s_lshl_b32 s76, s76, 2
s_cmp_ge_u32 s9, 2
s_cbranch_scc1 {l}
s_lshl_b32 s72, s4, 4
s_add_u32 s72, s72, s12
s_add_u32 s72, s72, 64
s_lshr_b32 s77, s4, 1
s_mul_i32 s77, s77, 11
s_add_u32 s77, s77, s12
s_cmp_lt_u32 s77, 43
s_cselect_b32 s76, 1, 0
s_cmp_lt_u32 s12, 11
s_cselect_b32 s76, s76, 0
s_cmp_eq_u32 s9, 0
s_cselect_b32 s76, s76, 0
{l}:""")
    def layernorm8(X_, T, eps_s):
        X = X_
        A(f"""v_add_f32 v{T}, v{X}, v{X+1}
v_add_f32 v{T+1}, v{X+2}, v{X+3}
v_add_f32 v{T+2}, v{X+4}, v{X+5}
v_add_f32 v{T+3}, v{X+6}, v{X+7}
v_add_f32 v{T}, v{T}, v{T+1}
v_add_f32 v{T+2}, v{T+2}, v{T+3}
v_add_f32 v{T}, v{T}, v{T+2}""")
        allreduce("v_add_f32", [T])
        A(f"v_readlane_b32 s71, v{T}, 63")
        A(f"v_mov_b32 v{T+1}, 0x3b000000\nv_mul_f32 v{T}, s71, v{T+1}")
        A(f"v_cvt_pk_bf16_f32 v{T+2}, v{T}, v{T}")
        for k in range(8): A(f"v_sub_f32 v{T+4+k}, v{X+k}, v{T}")
        A(f"v_and_b32 v{T+2}, 0xffff0000, v{T+2}")
        A(f"v_mul_f32 v{T+3}, v{T+4}, v{T+4}\nv_mul_f32 v{T}, v{T+5}, v{T+5}")
        for k in range(2, 8, 2):
            A(f"v_fmac_f32 v{T+3}, v{T+4+k}, v{T+4+k}\nv_fmac_f32 v{T}, v{T+5+k}, v{T+5+k}")
        A(f"v_add_f32 v{T+3}, v{T+3}, v{T}")
        steps = ["row_ror:8 row_mask:0xf", "row_ror:4 row_mask:0xf", "row_ror:2 row_mask:0xf", "row_ror:1 row_mask:0xf", "row_bcast:15 row_mask:0xa", "row_bcast:31 row_mask:0xc"]
        fill = [f"v_sub_f32 v{X+k}, v{X+k}, v{T+2}" for k in range(8)] + [f"v_cvt_pk_bf16_f32 v{T+4+k}, v{X+2*k}, v{X+2*k+1}" for k in range(4)]
        for si, st in enumerate(steps):
            A(fill[2 * si]); A(fill[2 * si + 1])
            A(f"v_add_f32_dpp v{T+3}, v{T+3}, v{T+3} {st} bank_mask:0xf")
        unpack(X, X + 1, T + 4)
        A(f"v_readlane_b32 s71, v{T+3}, 63")
        unpack(X + 2, X + 3, T + 5)
        A(f"v_mul_f32 v{T}, s71, v{T+1}")
        unpack(X + 4, X + 5, T + 6)
        A(f"v_cvt_pk_bf16_f32 v{T}, v{T}, v{T}")
        unpack(X + 6, X + 7, T + 7)
        A(f"v_and_b32 v{T}, 0xffff0000, v{T}")
        A(f"v_add_f32 v{T}, {eps_s}, v{T}")
        A(f"v_cvt_pk_bf16_f32 v{T}, v{T}, v{T}\nv_and_b32 v{T}, 0xffff0000, v{T}")
        A(f"v_sqrt_f32 v{T}, v{T}")
        A(f"v_cvt_pk_bf16_f32 v{T}, v{T}, v{T}\nv_and_b32 v{T}, 0xffff0000, v{T}")
        A(f"v_rcp_f32 v{T}, v{T}")
        for k in range(8): A(f"v_mul_f32 v{X+k}, v{X+k}, v{T}")
        for k in range(4): A(f"v_cvt_pk_bf16_f32 v{T+4+k}, v{X+2*k}, v{X+2*k+1}")
        for k in range(4): unpack(X + 2 * k, X + 2 * k + 1, T + 4 + k)

    hdr = open("adaLN_cond__mha_block_cached__glu_gated_swiglu__decode.s.ref").read().split("\n")
    for l in hdr:
        if l.startswith("; @launch"): break
        A.raw(l)
    A.raw(f"; @launch grid=(256,1,1) block=(512,1,1) lds={LDS_BYTES}")
    A.raw('.amdgcn_target "amdgcn-amd-amdhsa--gfx950"\n.text')
    A.raw(f".globl {KNAME}\n.p2align 8\n.type {KNAME},@function\n{KNAME}:")
    A("s_cmp_ge_u32 s2, 256\ns_cbranch_scc1 L_bail")
    A("s_load_dwordx16 s[16:31], s[0:1], 0\ns_load_dwordx8 s[32:39], s[0:1], 64\ns_load_dwordx4 s[40:43], s[0:1], 96")
    if diag:
        for i in range(12): A(f"s_mov_b32 s{80+i}, 0")
        A("s_memrealtime s[78:79]")
    A("""v_and_b32 v1, 63, v0
v_lshrrev_b32 v2, 6, v0
v_readfirstlane_b32 s3, v2
s_and_b32 s4, s2, 7
s_lshr_b32 s5, s2, 3
s_lshr_b32 s8, s2, 7
s_lshr_b32 s6, s2, 4
s_and_b32 s6, s6, 7
s_lshl_b32 s6, s6, 2
s_bfe_u32 s7, s2, 0x20001
s_add_u32 s6, s6, s7
s_and_b32 s9, s5, 1
s_lshl_b32 s9, s9, 1
s_and_b32 s7, s2, 1
s_add_u32 s9, s9, s7
s_lshl_b32 s7, s8, 2
s_add_u32 s7, s7, s9
v_and_b32 v2, 15, v1
v_lshrrev_b32 v3, 4, v1
v_bfe_u32 v4, v1, 2, 2
v_and_b32 v5, 3, v1
s_cmp_ge_u32 s3, 4
s_cbranch_scc1 L_service""")
    RING = 256 - 4 * R
    QOP, MSK, DB, OA, SR = 8, 24, 28, 36, 40
    VF = SR + NS
    assert RING >= VF + 1
    VK, VV = 6, 7
    base = [0, NB[0], NB[0] + NB[1], NB[0] + NB[1] + NB[2]]
    A(f"""s_lshl_b32 s12, s3, 12
v_lshlrev_b32 v{VK}, 8, v4
v_lshl_add_u32 v{VK}, v3, 6, v{VK}
v_lshl_add_u32 v{VK}, v5, 4, v{VK}
v_add_u32 v{VK}, s12, v{VK}
v_lshlrev_b32 v{VV}, 4, v1
v_add_u32 v{VV}, s12, v{VV}
s_lshl_b32 s13, s2, 19
s_and_b32 s13, s13, 0xff800000
s_lshl_b32 s14, s6, 21
s_and_b32 s14, s14, 0x600000
s_add_u32 s13, s13, s14
s_mov_b32 s14, {base[0] | base[1] << 16:#x}
s_mov_b32 s15, {base[2] | base[3] << 16:#x}
s_lshl_b32 s12, s9, 4
s_lshr_b64 s[14:15], s[14:15], s12
s_and_b32 s14, s14, 0xffff
s_lshl_b32 s14, s14, 12
s_add_u32 s13, s13, s14
s_lshl_b32 s12, s9, 3
s_lshr_b32 s75, {NB[0] | NB[1] << 8 | NB[2] << 16 | NB[3] << 24:#x}, s12
s_and_b32 s75, s75, 0xff
s_lshl_b32 s74, s75, 12
s_mov_b32 s64, 0
s_mov_b32 s65, 0
s_waitcnt lgkmcnt(0)""")
    if diag: A("s_mov_b32 s80, s78")
    srd(44, 18, "s74", "s13")
    srd(48, 20, "s74", "s13")
    TOT = 2 * NP
    EXTRA = 0
    issued = []
    state = {"known": 0}
    slot_of = {}; free = [RING + 4 * k for k in range(R)][::-1]
    def kv_load(i, lds=False):
        if not lds: slot_of[i] = free.pop()
        slot = slot_of.get(i)
        if i >= TOT:
            e = i - TOT
            A(f"buffer_load_dwordx4 v[{slot}:{slot+3}], v{VF}, s[{56 + 4 * (e & 1)}:{59 + 4 * (e & 1)}], s64 offen {fpol}")
            if e & 1: A(f"s_add_u32 s64, s64, {64*2752:#x}")
        else:
            j = i % NP
            va, sr, so = (VK, 44, "s64") if i < NP else (VV, 48, "s65")
            if lds:
                if j & 3 == 0: A(f"s_add_u32 m0, s73, {(i - R) * 1024}")
                A(f"buffer_load_dwordx4 v{va}, s[{sr}:{sr+3}], {so} offen offset:{(j&3)*1024} {kvpol} lds")
            else:
                A(f"buffer_load_dwordx4 v[{slot}:{slot+3}], v{va}, s[{sr}:{sr+3}], {so} offen offset:{(j&3)*1024} {kvpol}")
            if j & 3 == 3 and j != NP - 1: A(f"s_addk_i32 {so}, 0x4000")
        issued.append(i)
    def wait_out(n):
        if len(issued) - state["known"] > n:
            A(f"s_waitcnt vmcnt({n})")
            state["known"] = len(issued) - n
    def wait_piece(p):
        wait_out(len(issued) - 1 - issued.index(p))
    assert R % 4 == 0 and X % 4 == 0
    for i in range(CAP0): kv_load(i)
    A("s_load_dword s11, s[42:43], 0")
    A(f"""v_and_b32 v28, 1, v1
v_cmp_eq_u32 vcc, 1, v28
v_mov_b32 v29, 0xffff
v_mov_b32 v30, 0xffff0000
v_cndmask_b32 v29, v29, v30, vcc
v_lshrrev_b32 v28, 1, v2""")
    for r in range(4):
        A(f"v_cmp_eq_u32 vcc, {r}, v28\nv_cndmask_b32 v{MSK+r}, 0, v29, vcc")
    srd(52, 42, WS_END)
    roles()
    A(f"""v_lshrrev_b32 v37, 2, v2
v_lshlrev_b32 v36, 6, v3
v_lshl_add_u32 v36, v37, 4, v36
v_add_u32 v36, {L_Q}, v36
s_mul_i32 s73, s3, {X*1024}
s_add_u32 s73, s73, {L_EXT}
v_lshlrev_b32 v38, 4, v1
v_add_u32 v38, s73, v38""")
    for i in range(CAP0, R + X):
        wait_out(CAP0 - 1)
        kv_load(i, lds=(i >= R))
    A("s_waitcnt lgkmcnt(0)")
    A("s_add_u32 s10, s11, 0x9e3779b9")
    stamp(1)
    A("s_barrier")
    stamp(2)
    A(f"ds_read_b128 v[{DB}:{DB+3}], v36")
    A("s_waitcnt lgkmcnt(0)")
    for t in range(4):
        A(f"v_cmp_eq_u32 vcc, {t}, v5")
        for r in range(4): A(f"v_cndmask_b32 v{QOP+4*t+r}, 0, v{DB+r}, vcc")
    def post_ops(G):
        u = G & 3; S = SR + (G >> 2); D = DB + 4 * (G & 1)
        ops = [f"v_mov_b32_dpp v{S}, v{D+u} quad_perm:[0,1,2,3] row_mask:0xf bank_mask:{1<<u:#x}"]
        for b in range(4):
            if b == u: continue
            ops.append(f"v_add_f32_dpp v{S}, v{D+b}, v{S} row_ror:{4 * ((u - b) % 4)} row_mask:0xf bank_mask:{1<<u:#x}")
        return ops
    nxt = {"n": R + X, "l": R}
    def prefill(c):
        n = nxt["n"]
        if n < TOT + EXTRA and n - c <= CAP and free:
            wait_out(CAP - 1)
            kv_load(n)
            nxt["n"] = n + 1
            nxt["done"] = c
    def refill(c):
        free.append(slot_of[c])
        n = nxt["n"]
        if nxt.get("done") == c: return
        if n < TOT + EXTRA and (n - c <= CAP or c % shr == shr - 1):
            wait_out(CAP - 1)
            kv_load(n)
            nxt["n"] = n + 1
        elif nxt["l"] < R + X and len(free) >= 2:
            p = nxt["l"]; slot = slot_of[p] = free.pop(0)
            wait_piece(p)
            A(f"ds_read_b128 v[{slot}:{slot+3}], v38 offset:{(p-R)*1024}")
            nxt["l"] = p + 1
    for i in range(NP):
        slot = slot_of[i]
        G = i >> 2; t = i & 3; D = DB + 4 * (G & 1)
        if i == R: A("s_waitcnt lgkmcnt(0)\ns_barrier"); assert nxt["l"] == R + X
        wait_piece(i)
        prefill(i)
        mfma32(D, slot, QOP + 4 * t, t == 0)
        po = post_ops(G - 1) if (G > 0 and t >= 2) else None
        if po: A(po[2 * (t - 2)])
        refill(i)
        if po: A(po[2 * (t - 2) + 1])
    for o in post_ops(NP // 4 - 1): A(o)
    stamp(3)
    T0 = 8
    A(f"s_mov_b32 s12, {SCALE:#x}\ns_mov_b32 s13, {LOG2E:#x}")
    def round_pairs():
        for k in range(0, NS, 2):
            A(f"v_cvt_pk_bf16_f32 v{T0+k//2}, v{SR+k}, v{SR+min(k+1, NS-1)}")
        for k in range(0, NS, 2):
            if k + 1 < NS: unpack(SR + k, SR + k + 1, T0 + k // 2)
            else: A(f"v_lshlrev_b32 v{SR+k}, 16, v{T0+k//2}")
    round_pairs()
    for k in range(NS): A(f"v_mul_f32 v{SR+k}, s12, v{SR+k}")
    round_pairs()
    if min(NB) < 16 * NS:
        A(f"v_and_b32 v{T0}, 12, v2\nv_add_u32 v{T0}, s3, v{T0}\nv_mov_b32 v{T0+1}, 0xff800000")
        for k in range(NS):
            if 16 * k + 15 >= min(NB):
                A(f"s_sub_i32 s14, s75, {16*k}\nv_cmp_gt_i32 vcc, s14, v{T0}\nv_cndmask_b32 v{SR+k}, v{T0+1}, v{SR+k}, vcc")
    A(f"v_max3_f32 v{T0}, v{SR}, v{SR+1}, v{SR+2}\nv_max3_f32 v{T0+1}, v{SR+3}, v{SR+4}, v{SR+5}\nv_max3_f32 v{T0}, v{T0}, v{SR+6}, v{SR+7}")
    if NS > 8: A(f"v_max_f32 v{T0+1}, v{T0+1}, v{SR+8}")
    A(f"v_max_f32 v{T0}, v{T0}, v{T0+1}")
    allreduce("v_max_f32", [T0])
    A(f"v_readlane_b32 s73, v{T0}, 63")
    for k in range(NS): A(f"v_subrev_f32 v{SR+k}, s73, v{SR+k}")
    for k in range(NS): A(f"v_mul_f32 v{SR+k}, s13, v{SR+k}")
    for k in range(NS): A(f"v_exp_f32 v{SR+k}, v{SR+k}")
    A(f"""v_add_f32 v{T0}, v{SR}, v{SR+1}
v_add_f32 v{T0+1}, v{SR+2}, v{SR+3}
v_add_f32 v{T0+2}, v{SR+4}, v{SR+5}
v_add_f32 v{T0+3}, v{SR+6}, v{SR+7}
v_add_f32 v{T0}, v{T0}, v{T0+1}
v_add_f32 v{T0+2}, v{T0+2}, v{T0+3}""")
    if NS > 8: A(f"v_add_f32 v{T0}, v{T0}, v{SR+8}")
    A(f"v_add_f32 v18, v{T0}, v{T0+2}")
    for k in range(NS): A(f"v_cvt_pk_bf16_f32 v{SR+k}, v{SR+k}, v{SR+k}")
    allreduce("v_add_f32", [18])
    A(f"""v_mov_b32 v16, s73
v_mov_b32 v17, s10
v_mov_b32 v19, s10
s_lshl_b32 s12, s8, 5
s_add_u32 s12, s12, s6
s_lshl_b32 s12, s12, 8
s_add_u32 s12, s12, {WS_ML}
s_add_u32 s96, s42, s12
s_addc_u32 s97, s43, 0
s_lshl_b32 s13, s9, 6
s_add_u32 s12, s12, s13
s_lshl_b32 s13, s3, 4
s_add_u32 s12, s12, s13
v_mov_b32 v20, {OOB:#x}
v_mov_b32 v21, 0
v_cmp_eq_u32 vcc, 63, v1
v_cndmask_b32 v20, v20, v21, vcc
v_lshlrev_b32 v22, 3, v1
v_add_u32 v22, {L_DUM}, v22
""")
    if "m" not in abl:
        A("buffer_store_dwordx4 v[16:19], v20, s[52:55], s12 offen sc1")
        issued.append("ml")
    A(f"""s_mul_i32 s12, s3, {OSTR}
s_add_u32 s12, s12, {L_O}
v_lshlrev_b32 v28, 4, v2
v_lshl_add_u32 v28, v3, 3, v28
v_add_u32 v28, s12, v28
v_cmp_gt_u32 vcc, 32, v1
v_cndmask_b32 v28, v22, v28, vcc""")
    stamp(4)
    AB = 8
    def sel(i):
        P = SR + (i >> 4); c = i & 15; a = AB + 4 * (i & 1)
        for r in range(4):
            A(f"v_and_b32_dpp v{a+r}, v{P}, v{MSK+r} row_newbcast:{c} row_mask:0xf bank_mask:0xf")
    def ml_loads(hf):
        A(f"""s_load_dwordx16 s[16:31], s[96:97], {hf*128} glc
s_load_dwordx8 s[32:39], s[96:97], {hf*128+64} glc
s_load_dwordx8 s[56:63], s[96:97], {hf*128+96} glc""")
    sel(0)
    for i in range(NP):
        gi = NP + i
        slot = slot_of[gi]; a = AB + 4 * (i & 1)
        wait_piece(gi)
        prefill(gi)
        mfma32(OA, a, slot, i == 0)
        if i < NP - 1: sel(i + 1)
        refill(gi)
        if "m" in abl: continue
        if i == NP - FP:
            A(f"s_mov_b32 s70, {TMO}\ns_mov_b32 s13, {LOG2E:#x}\nv_mov_b32 v30, s73\nv_mov_b32 v31, 0")
            ml_loads(0)
        if i in (NP - FP + 16, NP - FP + 32):
            hf = 0 if i == NP - FP + 16 else 1
            regs = [16, 20, 24, 28, 32, 36, 56, 60]
            A(f"s_branch L_fchk{hf}\nL_fpoll{hf}:")
            ml_loads(hf)
            A(f"L_fchk{hf}:\ns_waitcnt lgkmcnt(0)\ns_mov_b32 s12, 0")
            for g in regs:
                A(f"s_xor_b32 s14, s{g+1}, s10\ns_or_b32 s12, s12, s14\ns_xor_b32 s14, s{g+3}, s10\ns_or_b32 s12, s12, s14")
            A(f"s_sub_u32 s70, s70, 1\ns_cbranch_scc1 L_bail\ns_cmp_lg_u32 s12, 0\ns_cbranch_scc1 L_fpoll{hf}")
            A("v_mov_b32 v29, v30")
            for g in regs: A(f"v_max_f32 v30, s{g}, v30")
            A("v_sub_f32 v29, v29, v30")
            for k, g in enumerate(regs): A(f"v_sub_f32 v{16+k}, s{g}, v30")
            A("v_mul_f32 v29, s13, v29")
            for k in range(8): A(f"v_mul_f32 v{16+k}, s13, v{16+k}")
            A("v_exp_f32 v29, v29")
            for k in range(8): A(f"v_exp_f32 v{16+k}, v{16+k}")
            A("v_mul_f32 v31, v31, v29")
            for k, g in enumerate(regs): A(f"v_fmac_f32 v31, s{g+2}, v{16+k}")
            if hf == 0:
                ml_loads(1)
            else:
                A("""v_sub_f32 v30, s73, v30
v_rcp_f32 v31, v31
v_mul_f32 v30, s13, v30
v_exp_f32 v30, v30
s_load_dwordx2 s[16:17], s[0:1], 0
s_load_dwordx2 s[38:39], s[0:1], 88
v_mul_f32 v30, v30, v31""")
    for r in range(4): A(f"v_mul_f32 v{OA+r}, v30, v{OA+r}")
    A(f"v_cvt_pk_bf16_f32 v32, v{OA}, v{OA+1}\nv_cvt_pk_bf16_f32 v33, v{OA+2}, v{OA+3}")
    A("ds_write_b64 v28, v[32:33]\ns_waitcnt lgkmcnt(0)")
    stamp(5)
    A("s_barrier")
    stamp(6)
    if "t" in abl: A("s_branch L_fin")
    A("""s_cmp_eq_u32 s76, 4
s_cbranch_scc1 L_stepB
s_cmp_lg_u32 s76, 1
s_cbranch_scc1 L_fin""")
    WA = [64 + 4 * k for k in range(16)]; HB = [128 + 4 * k for k in range(16)]
    SB, C1, XX = 16, 24, 32
    A(f"""v_lshlrev_b32 v9, 9, v3
v_lshl_add_u32 v9, v4, 6, v9
v_and_b32 v11, 1, v1
v_lshl_add_u32 v9, v11, 3, v9
v_lshrrev_b32 v10, 1, v5
v_lshl_add_u32 v9, v10, 15, v9
s_lshl_b32 s12, s3, 4
s_add_u32 s14, s12, {L_EXT}
v_add_u32 v9, s14, v9""")
    for ks in range(16):
        for jh in range(2):
            A(f"ds_read_b64_tr_b16 v[{WA[ks]+2*jh}:{WA[ks]+2*jh+1}], v9 offset:{ks*2048+jh*256}")
    A(f"""v_mov_b32 v57, s10
v_lshlrev_b32 v12, 10, v11
v_lshl_add_u32 v12, v3, 4, v12
v_add_u32 v12, {L_H2}, v12
v_lshlrev_b32 v13, 6, v11
v_and_b32 v14, 1, v3
v_lshl_add_u32 v13, v14, 3, v13
v_lshrrev_b32 v14, 1, v3
v_lshl_add_u32 v13, v14, 2, v13
s_add_u32 s12, s12, {L_HH}
v_add_u32 v13, s12, v13
v_lshlrev_b32 v14, 2, v1
v_add_u32 v14, {L_DUM}, v14
v_cmp_gt_u32 vcc, 2, v2
v_cndmask_b32 v13, v14, v13, vcc
s_mov_b32 s68, {EPS:#x}
s_mov_b32 s69, {LOG2E:#x}
s_mov_b32 s70, {TMO*4}
v_mov_b32 v15, {L_FL}
s_lshl_b32 s12, s3, 2
s_add_u32 s12, s12, {L_FL}
v_mov_b32 v56, s12
s_sub_u32 s13, s3, 1
s_cmp_ge_u32 s13, 2
s_cbranch_scc1 L_c_h2s
s_lshl_b32 s14, s13, 11
s_add_u32 s14, s14, {WS_G + 4096}
s_add_u32 s15, s14, 4096
v_lshlrev_b32 v8, 5, v1
L_c_sbcb:""")
    for k, (so, of) in enumerate((("s14", 0), ("s14", 16), ("s15", 0), ("s15", 16))):
        A(f"buffer_load_dwordx4 v[{40+4*k}:{43+4*k}], v8, s[52:55], {so} offen offset:{of} sc1")
    A("s_waitcnt vmcnt(0)")
    tagcheck([42, 43, 46, 47, 50, 51, 54, 55], 57)
    poll_tail("L_c_sbcb", sleep=1)
    for k, rr in enumerate((40, 41, 44, 45)): unpack(SB + 2 * k, SB + 2 * k + 1, rr)
    for k, rr in enumerate((48, 49, 52, 53)): unpack(C1 + 2 * k, C1 + 2 * k + 1, rr)
    for k in range(8): A(f"v_add_f32 v{C1+k}, 1.0, v{C1+k}")
    for k in range(4): A(f"v_cvt_pk_bf16_f32 v{40+k}, v{C1+2*k}, v{C1+2*k+1}")
    for k in range(4): unpack(C1 + 2 * k, C1 + 2 * k + 1, 40 + k)
    A(f"""s_lshl_b32 s14, s13, 10
s_add_u32 s15, s14, {L_H2}
s_lshl_b32 s14, s13, 12
s_add_u32 s14, s14, {WS_X1}
v_lshlrev_b32 v8, 4, v1
v_add_u32 v10, s15, v8
v_lshrrev_b32 v8, 1, v1
v_lshlrev_b32 v8, 7, v8
v_lshl_add_u32 v8, v11, 4, v8
s_waitcnt lgkmcnt(0)""")
    stamp(7)
    A("L_c_x1:")
    A("buffer_load_dwordx4 v[40:43], v8, s[52:55], s14 offen sc1\ns_waitcnt vmcnt(0)")
    A("v_max3_u32 v44, v40, v41, v42\nv_max_u32 v44, v44, v43\nv_cmp_eq_u32 vcc, -1, v44")
    poll_tail("L_c_x1", sleep=csleep)
    stamp(8)
    for k in range(4): unpack(XX + 2 * k, XX + 2 * k + 1, 40 + k)
    layernorm8(XX, 44, "s68")
    for k in range(8): A(f"v_mul_f32 v{XX+k}, v{XX+k}, v{C1+k}")
    for k in range(4): A(f"v_cvt_pk_bf16_f32 v{44+k}, v{XX+2*k}, v{XX+2*k+1}")
    for k in range(4): unpack(XX + 2 * k, XX + 2 * k + 1, 44 + k)
    for k in range(8): A(f"v_add_f32 v{XX+k}, v{XX+k}, v{SB+k}")
    for k in range(4): A(f"v_cvt_pk_bf16_f32 v{44+k}, v{XX+2*k}, v{XX+2*k+1}")
    A("ds_write_b128 v10, v[44:47]\nds_write_b32 v56, v57\ns_branch L_c_h2")
    A("L_c_h2s:\ns_sleep 1")
    A("L_c_h2:\nds_read2_b32 v[44:45], v15 offset0:1 offset1:2\ns_waitcnt lgkmcnt(0)")
    tagcheck([44, 45], 57)
    poll_tail("L_c_h2s")
    for ks in range(16): A(f"ds_read_b128 v[{HB[ks]}:{HB[ks]+3}], v12 offset:{ks*64}")
    for ks in range(16):
        A(f"s_waitcnt lgkmcnt({15-ks})")
        mfma32(40, WA[ks], HB[ks], ks == 0)
    A("v_permlane32_swap_b32 v40, v42\nv_permlane32_swap_b32 v41, v43")
    A("v_cvt_pk_bf16_f32 v44, v40, v41\nv_cvt_pk_bf16_f32 v45, v42, v43")
    unpack(40, 41, 44); unpack(42, 43, 45)
    A("""v_mul_f32 v44, s69, v40
v_mul_f32 v45, s69, v41
v_exp_f32 v44, -v44
v_exp_f32 v45, -v45
v_add_f32 v44, 1.0, v44
v_add_f32 v45, 1.0, v45
v_rcp_f32 v44, v44
v_rcp_f32 v45, v45
v_mul_f32 v40, v40, v44
v_mul_f32 v41, v41, v45
v_cvt_pk_bf16_f32 v44, v40, v41""")
    unpack(40, 41, 44)
    A("""v_mul_f32 v40, v40, v42
v_mul_f32 v41, v41, v43
v_cvt_pk_bf16_f32 v44, v40, v41
ds_write_b32 v13, v44
ds_write_b32 v56, v57 offset:16""")
    stamp(9)
    A("L_fin:")
    finish()
    A("L_stepB:")
    A("s_cmp_lg_u32 s3, 0\ns_cbranch_scc1 L_fin")
    srd(56, 16, 2048)
    srd(60, 38, 2048)
    A(f"""s_lshl_b32 s14, s77, 6
s_add_u32 s14, s14, {WS_G}
s_add_u32 s13, s14, {3*4096}
s_lshl_b32 s15, s77, 5
s_lshl_b32 s72, s77, 13
s_add_u32 s72, s72, {WS_Y}
s_add_u32 s75, s72, 4096
s_lshl_b32 s73, s77, 7
s_add_u32 s73, s73, {WS_X1}
s_mul_i32 s74, s77, 3072
s_add_u32 s74, s74, {WS_OP}
v_lshlrev_b32 v8, 4, v5
v_lshlrev_b32 v9, 4, v1
v_lshlrev_b32 v12, 3, v5
v_lshl_add_u32 v13, v3, 1, v12
v_mov_b32 v10, {OOB:#x}
v_cmp_gt_u32 vcc, 44, v1
v_cndmask_b32 v14, v10, v9, vcc
v_cmp_gt_u32 vcc, 4, v1
v_cndmask_b32 v12, v10, v12, vcc
v_cmp_eq_u32 vcc, 0, v1
v_cndmask_b32 v10, v10, v1, vcc
v_mov_b32 v11, s10
v_and_b32 v15, 1, v3
v_lshlrev_b32 v15, 4, v15
v_sub_u32 v15, 16, v15
s_mov_b32 s12, 0x03020706
s_mov_b32 s70, {TMO}
buffer_load_ushort v16, v13, s[56:59], s15 offen""")
    A("L_b_ga:")
    A("buffer_load_dwordx4 v[20:23], v8, s[52:55], s14 offen sc1\nbuffer_load_dwordx4 v[24:27], v8, s[52:55], s13 offen sc1\ns_waitcnt vmcnt(0)")
    tagcheck([22, 23, 26, 27], 11)
    poll_tail("L_b_ga", sleep=1)
    A("""v_cmp_gt_u32 vcc, 32, v1
v_cndmask_b32 v17, v21, v20, vcc
v_cndmask_b32 v18, v25, v24, vcc
v_lshlrev_b32 v17, v15, v17
v_lshlrev_b32 v18, v15, v18
v_and_b32 v17, 0xffff0000, v17
v_and_b32 v18, 0xffff0000, v18
v_lshlrev_b32 v16, 16, v16""")
    A(f"s_mov_b32 s70, {TMO}")
    def gatherN(lbl, n, so0, so1, lastv):
        A(f"{lbl}:")
        for i in range(n):
            A(f"buffer_load_dwordx4 v[{64+4*i}:{67+4*i}], v{lastv if i == n - 1 else 9}, s[52:55], {so0 if i < 4 else so1} offen offset:{(i&3)*1024} sc1")
        for i in range(n):
            r = 64 + 4 * i
            A(f"s_waitcnt vmcnt({n-1-i})")
            if i == 0:
                A(f"v_max3_u32 v28, v{r}, v{r+1}, v{r+2}\nv_max_u32 v29, v{r+3}, v{r+3}")
            else:
                A(f"v_max3_u32 v28, v28, v{r}, v{r+1}\nv_max3_u32 v29, v29, v{r+2}, v{r+3}")
                for k in range(4): A(f"v_add_f32 v{32+k}, v{64+k if i == 1 else 32+k}, v{r+k}")
        A("v_max_u32 v28, v28, v29\nv_cmp_eq_u32 vcc, -1, v28")
        poll_tail(lbl, sleep=bsleep)
    def red16(G, Xr):
        A("""v_permlane32_swap_b32 v32, v34
v_permlane32_swap_b32 v33, v35
v_add_f32 v32, v32, v34
v_add_f32 v33, v33, v35
v_permlane16_swap_b32 v32, v33
v_add_f32 v32, v32, v33
v_add_f32_dpp v32, v32, v32 row_ror:4 row_mask:0xf bank_mask:0xf
v_add_f32_dpp v32, v32, v32 row_ror:8 row_mask:0xf bank_mask:0xf
v_cvt_pk_bf16_f32 v32, v32, v32
v_and_b32 v32, 0xffff0000, v32""")
        A(f"""v_mul_f32 v32, v32, v{G}
v_cvt_pk_bf16_f32 v32, v32, v32
v_and_b32 v32, 0xffff0000, v32
v_add_f32 v32, v32, v{Xr}
v_cvt_pk_bf16_f32 v30, v32, v32
v_mov_b32 v32, v30
v_mov_b32 v33, v30
v_permlane16_swap_b32 v32, v33
v_perm_b32 v32, v32, v33, s12
v_min_u32 v32, -2, v32
v_mov_b32 v33, v32
v_permlane32_swap_b32 v32, v33""")
    stamp(7)
    gatherN("L_b_y", 8, "s72", "s75", 9)
    stamp(8)
    red16(17, 16)
    A("buffer_store_dwordx2 v[32:33], v12, s[52:55], s73 offen sc1")
    stamp(9)
    A("v_and_b32 v16, 0xffff0000, v30")
    A(f"s_mov_b32 s70, {TMO}")
    if dsleep: A(f"s_sleep {dsleep}")
    gatherN("L_d_op", 3, "s74", "s74", 14)
    stamp(10)
    red16(18, 16)
    A("buffer_store_dwordx2 v[32:33], v12, s[60:63], s15 offen")
    A("s_cmp_lg_u32 s77, 0\ns_cbranch_scc1 L_fin3")
    A("buffer_store_dword v11, v10, s[52:55], 0 offen sc1")
    A("L_fin3:")
    finish()
    A("L_service:")
    if prio: A(f"s_setprio {prio}")
    W, TT, BB = 64, 192, 32
    roles()
    A(f"""s_sub_u32 s12, s3, 4
s_lshl_b32 s13, s12, 13
v_lshlrev_b32 v13, 4, v1
v_add_u32 v7, s13, v13
v_lshlrev_b32 v8, 11, v3
v_lshl_add_u32 v8, v4, 8, v8
v_lshl_add_u32 v8, v5, 3, v8
v_add_u32 v8, s13, v8
v_mov_b32 v31, {OOB:#x}
s_mov_b32 s68, {EPS:#x}
s_mov_b32 s69, {LOG2E:#x}
s_waitcnt lgkmcnt(0)""")
    if diag: A("s_mov_b32 s80, s78")
    A("s_load_dword s11, s[42:43], 0")
    srd(52, 42, WS_END)
    if "q" in abl: A("s_cmp_eq_u32 s3, 4\ns_cbranch_scc1 L_s_bar1")
    if "u" in abl: A("s_cmp_eq_u32 s3, 7\ns_cbranch_scc1 L_s_bar1")
    A("""s_cmp_eq_u32 s3, 4
s_cbranch_scc1 L_s_q
s_cmp_eq_u32 s3, 5
s_cbranch_scc1 L_s_warm
s_cmp_eq_u32 s3, 6
s_cbranch_scc1 L_s_bar1
s_cmp_eq_u32 s76, 4
s_cbranch_scc1 L_s_bar1""")
    srd(48, 36, 512 * 6144)
    srd(60, 34, 2048)
    A(f"""s_lshr_b32 s13, s72, 2
s_and_b32 s14, s72, 3
s_lshl_b32 s65, s13, 7
s_mul_i32 s64, s14, {128*6144}
s_add_u32 s65, s65, s64
s_lshl_b32 s64, s14, 8
v_lshrrev_b32 v9, 3, v1
v_mul_u32_u24 v9, 6144, v9
v_and_b32 v11, 7, v1
v_lshl_add_u32 v9, v11, 4, v9
v_lshrrev_b32 v11, 5, v1
v_and_b32 v12, 31, v1
v_lshlrev_b32 v12, 3, v12
v_lshl_add_u32 v14, v11, 10, v12
buffer_load_dwordx2 v[16:17], v14, s[60:63], s64 offen""")
    for i in range(16):
        if i >= SMD: A(f"s_waitcnt vmcnt({SMD-1})")
        A(f"buffer_load_dwordx4 v[{TT+4*i}:{TT+4*i+3}], v9, s[48:51], s65 offen {tpol}")
        if i < 15: A(f"s_add_u32 s65, s65, {8*6144:#x}")
        if i == min(SMD, 16) - 1:
            A(f"""v_lshl_add_u32 v15, v11, 8, v12
v_add_u32 v15, {L_SC}, v15
v_lshlrev_b32 v11, 10, v3
v_lshl_add_u32 v11, v4, 7, v11
v_lshl_add_u32 v11, v5, 3, v11
v_add_u32 v11, {3*8192}, v11
v_and_b32 v28, 1, v4
v_lshlrev_b32 v12, 8, v28
v_lshl_add_u32 v12, v3, 4, v12
v_add_u32 v12, {L_SC}, v12
s_waitcnt vmcnt({i+1})""")
            unpack(20, 21, 16); unpack(22, 23, 17)
            for k in range(4): A(f"v_mul_f32 v{24+k}, s69, v{20+k}")
            for k in range(4): A(f"v_exp_f32 v{24+k}, -v{24+k}")
            for k in range(4): A(f"v_add_f32 v{24+k}, 1.0, v{24+k}")
            for k in range(4): A(f"v_rcp_f32 v{24+k}, v{24+k}")
            for k in range(4): A(f"v_mul_f32 v{20+k}, v{20+k}, v{24+k}")
            A("v_cvt_pk_bf16_f32 v16, v20, v21\nv_cvt_pk_bf16_f32 v17, v22, v23\nds_write_b64 v15, v[16:17]")
            for ks in range(4): A(f"ds_read_b128 v[{BB+4*ks}:{BB+4*ks+3}], v12 offset:{ks*64}")
    for ks in range(4):
        for i in range(4 * ks, 4 * ks + 4):
            A(f"s_waitcnt vmcnt({15 - i})")
            A(f"ds_write_b128 v7, v[{TT+4*i}:{TT+4*i+3}] offset:{(i&7)*1024}")
        for tt in range(4):
            for jh in range(2):
                d = TT + (ks * 4 + tt) * 4 + jh * 2
                A(f"ds_read_b64_tr_b16 v[{d}:{d+1}], v11 offset:{(ks&1)*4096+jh*512+tt*32}")
    for ks in range(4):
        A(f"s_waitcnt lgkmcnt({0 if ks == 3 else 12})")
        for tt in range(4): mfma32(48 + 4 * tt, TT + (ks * 4 + tt) * 4, BB + 4 * ks, ks == 0)
    A("s_add_u32 s10, s11, 0x9e3779b9")
    for tt in range(1, 4):
        A(f"v_cmp_eq_u32 vcc, {tt}, v5")
        for r in range(4): A(f"v_cndmask_b32 v{48+r}, v{48+r}, v{48+4*tt+r}, vcc")
    A(f"""v_cmp_gt_u32 vcc, 8, v2
v_mov_b32 v52, s10
v_cndmask_b32 v48, v51, v48, vcc
v_cndmask_b32 v49, v52, v49, vcc
v_cndmask_b32 v50, v52, v50, vcc
v_mov_b32 v51, s10
s_lshl_b32 s13, s72, 10
s_add_u32 s13, s13, {WS_MP}
buffer_store_dwordx4 v[48:51], v13, s[52:55], s13 offen sc1""")
    stamp(1)
    A("s_branch L_s_bar1")
    A(f"""L_s_warm:
s_getpc_b64 s[66:67]
L_pc:
s_sub_u32 s66, s66, L_pc-{KNAME}
s_subb_u32 s67, s67, 0
s_lshl_b32 s13, s5, 10
v_add_u32 v14, s13, v13
v_min_u32 v14, L_codeend-{KNAME}-16, v14
global_load_dwordx4 v[20:23], v14, s[66:67]
s_branch L_s_bar1""")
    A("L_s_q:")
    srd(44, 22, 512 * 8192)
    srd(56, 16, 2048)
    A(f"""v_lshlrev_b32 v6, 13, v3
v_lshl_add_u32 v6, v2, 4, v6
s_lshl_b32 s64, s6, 8
s_lshl_b32 s13, s7, 19
s_add_u32 s64, s64, s13
buffer_load_dwordx4 v[24:27], v13, s[56:59], 0 offen
buffer_load_dwordx4 v[28:31], v13, s[56:59], 0 offen offset:1024""")
    for i in range(16):
        if i >= SQ: A(f"s_waitcnt vmcnt({SQ-1})")
        A(f"buffer_load_dwordx4 v[{W+4*i}:{W+4*i+3}], v6, s[44:47], s64 offen {tpol}")
        if i < 15: A("s_add_u32 s64, s64, 0x8000")
    A(f"""v_and_b32 v63, 7, v1
v_lshrrev_b32 v16, 5, v1
v_and_b32 v19, 1, v3
v_lshlrev_b32 v14, 15, v16
v_lshl_add_u32 v14, v5, 8, v14
v_lshl_add_u32 v14, v19, 6, v14
v_lshl_add_u32 v14, v4, 4, v14
v_bfe_u32 v17, v1, 3, 2
v_lshlrev_b32 v6, 10, v16
v_lshl_add_u32 v6, v17, 8, v6
v_lshl_add_u32 v6, v63, 4, v6
v_lshlrev_b32 v23, 5, v63
v_lshl_add_u32 v23, v17, 3, v23
v_lshl_add_u32 v23, v16, 2, v23
v_add_u32 v23, {L_Q}, v23
v_lshlrev_b32 v18, 3, v2
v_lshl_add_u32 v18, v16, 2, v18
v_lshl_add_u32 v11, v19, 7, v18
v_add_u32 v11, {L_HL}, v11
v_lshl_add_u32 v15, v19, 10, v18
s_lshl_b32 s13, s7, 7
s_add_u32 s13, s13, {L_H2}
v_add_u32 v15, s13, v15
v_bfe_u32 v12, v1, 3, 1
v_lshlrev_b32 v12, 7, v12
v_lshl_add_u32 v12, v3, 4, v12
v_add_u32 v12, {L_HL}, v12
s_waitcnt vmcnt(16)""")
    for b in range(2):
        for k in range(4): unpack(BB + 2 * k, BB + 2 * k + 1, 24 + 4 * b + k)
        layernorm8(BB, BB + 8, "s68")
        A(f"v_add_u32 v16, {L_H2 + 1024*b}, v13\nds_write_b128 v16, v[{BB+12}:{BB+15}]")
    A(f"ds_read_b32 v22, v15\nv_mov_b32 v31, {OOB:#x}")
    for ks in range(2):
        for i in range(8 * ks, 8 * ks + 8):
            A(f"s_waitcnt vmcnt({15 - i})")
            A(f"ds_write_b128 v7, v[{W+4*i}:{W+4*i+3}] offset:{(i&7)*1024}")
        for tt in range(8):
            for jh in range(2):
                d = W + (ks * 8 + tt) * 4 + jh * 2
                A(f"ds_read_b64_tr_b16 v[{d}:{d+1}], v8 offset:{jh*1024+tt*32}")
    A(f"""s_waitcnt lgkmcnt(0)
s_add_u32 s10, s11, 0x9e3779b9
s_lshl_b32 s13, s7, 12
s_add_u32 s13, s13, {WS_MP}
v_mov_b32 v24, s10
v_lshrrev_b32 v60, 1, v13
v_lshrrev_b32 v61, 1, v6
s_lshl_b32 s95, s6, 13
s_lshl_b32 s64, s7, 10
s_add_u32 s64, s64, s95
s_lshr_b32 s92, s64, 1
s_add_u32 s92, s92, {WS_QP8}
s_add_u32 s64, s64, {WS_QP}
s_lshl_b32 s65, s8, 7
s_add_u32 s95, s95, s65
s_lshr_b32 s93, s95, 1
s_add_u32 s93, s93, {WS_QP8}
s_add_u32 s95, s95, {WS_QP}
s_add_u32 s65, s95, 4096
s_mov_b32 s70, {TMO}""")
    unpack(26, 27, 22)
    stamp(1)
    scalar_wait("L_sp1", "s13", [c * 32768 + rq * 1024 + 780 for c in range(2) for rq in range(4)])
    A("L_q_mp:")
    for rq in range(4): A(f"buffer_load_dwordx4 v[{BB+4*rq}:{BB+4*rq+3}], v14, s[52:55], s13 offen offset:{rq*1024} {gpol}")
    for rq in range(4): A(f"buffer_load_dwordx2 v[{48+2*rq}:{49+2*rq}], v14, s[52:55], s13 offen offset:{rq*1024+128} {gpol}")
    A("s_waitcnt vmcnt(0)")
    tagcheck([BB + 3, BB + 7, BB + 11, BB + 15, 49, 51, 53, 55], 24)
    poll_tail("L_q_mp")
    stamp(2)
    def sum4():
        for r in range(3): A(f"v_add_f32 v{BB+r}, v{BB+r}, v{BB+4+r}")
        A(f"v_add_f32 v{BB+3}, v48, v50")
        for r in range(3): A(f"v_add_f32 v{BB+8+r}, v{BB+8+r}, v{BB+12+r}")
        A(f"v_add_f32 v{BB+11}, v52, v54")
        for r in range(4): A(f"v_add_f32 v{BB+r}, v{BB+r}, v{BB+8+r}")
        A(f"v_permlane32_swap_b32 v{BB}, v{BB+2}\nv_permlane32_swap_b32 v{BB+1}, v{BB+3}")
    sum4()
    A(f"v_cvt_pk_bf16_f32 v20, v{BB}, v{BB+1}\nv_cvt_pk_bf16_f32 v21, v{BB+2}, v{BB+3}")
    unpack(18, 19, 21)
    unpack(16, 17, 20)
    A("v_add_f32 v18, 1.0, v18\nv_add_f32 v19, 1.0, v19\nv_cvt_pk_bf16_f32 v21, v18, v19")
    unpack(18, 19, 21)
    A("v_mul_f32 v18, v18, v26\nv_mul_f32 v19, v19, v27\nv_cvt_pk_bf16_f32 v21, v18, v19")
    unpack(18, 19, 21)
    A("v_add_f32 v18, v18, v16\nv_add_f32 v19, v19, v17\nv_cvt_pk_bf16_f32 v21, v18, v19")
    A("ds_write_b32 v11, v21")
    A(f"ds_read_b128 v[{BB}:{BB+3}], v12\nds_read_b128 v[{BB+4}:{BB+7}], v12 offset:64")
    for ks in range(2):
        A(f"s_waitcnt lgkmcnt({1-ks})")
        for tt in range(8): mfma32(TT + 4 * tt, W + (ks * 8 + tt) * 4, BB + 4 * ks, ks == 0)
    A("v_cmp_eq_u32 s[66:67], 1, v63")
    for tt in range(1, 8):
        cur = "s[66:67]" if tt & 1 else "vcc"
        nx = "vcc" if tt & 1 else "s[66:67]"
        if tt < 7: A(f"v_cmp_eq_u32 {nx}, {tt+1}, v63")
        for r in range(4): A(f"v_cndmask_b32 v{TT+r}, v{TT+r}, v{TT+4*tt+r}, {cur}")
    A(f"""v_mov_b32 v{TT+4}, v{TT+3}
v_mov_b32 v{TT+3}, s10
v_mov_b32 v{TT+5}, s10
buffer_store_dwordx4 v[{TT}:{TT+3}], v13, s[52:55], s64 offen sc1
buffer_store_dwordx2 v[{TT+4}:{TT+5}], v60, s[52:55], s92 offen sc1
s_mov_b32 s70, {TMO}""")
    stamp(3)
    scalar_wait("L_sp2", "s95", [r * 1024 + 780 for r in range(8)])
    A("L_q_qp:")
    for m in range(4): A(f"buffer_load_dwordx4 v[{BB+4*m}:{BB+4*m+3}], v6, s[52:55], {'s95' if m < 2 else 's65'} offen offset:{(m&1)*2048} {gpol}")
    for m in range(4): A(f"buffer_load_dwordx2 v[{48+2*m}:{49+2*m}], v61, s[52:55], s93 offen offset:{m*1024} {gpol}")
    A("s_waitcnt vmcnt(0)")
    tagcheck([BB + 3, BB + 7, BB + 11, BB + 15, 49, 51, 53, 55], 24)
    poll_tail("L_q_qp")
    stamp(4)
    sum4()
    A(f"v_add_f32 v{BB}, v{BB}, v{BB+2}\nv_add_f32 v{BB+1}, v{BB+1}, v{BB+3}\nv_cvt_pk_bf16_f32 v20, v{BB}, v{BB+1}")
    A("ds_write_b32 v23, v20")
    A("L_s_bar1:")
    A("s_waitcnt lgkmcnt(0)\ns_add_u32 s10, s11, 0x9e3779b9")
    A("s_barrier\ns_barrier")
    A(f"v_lshlrev_b32 v14, 2, v1\nv_and_b32 v14, 28, v14\nv_add_u32 v14, {L_FL}, v14\nv_mov_b32 v15, s11\nds_write_b32 v14, v15")
    if "c" in abl: A("s_branch L_s_wo")
    A(f"""s_cmp_lg_u32 s76, 4
s_cbranch_scc1 L_s_wo
s_cmp_eq_u32 s3, 6
s_cbranch_scc1 {"L_s_wo" if "g" in abl else "L_s_g4"}
s_cmp_lg_u32 s3, {99 if "k" in abl else 5}
s_cbranch_scc1 L_s_wo
v_mov_b32 v16, -1
v_mov_b32 v17, -1
v_mov_b32 v18, -1
v_mov_b32 v19, -1
s_lshl_b32 s13, s77, 13
s_add_u32 s13, s13, {WS_Y}
s_mul_i32 s14, s77, 3072
s_add_u32 s14, s14, {WS_OP}""")
    for i in range(8):
        A(f"buffer_store_dwordx4 v[16:19], v13, s[52:55], s13 offen offset:{(i&3)*1024} {cpol}" + ("\ns_addk_i32 s13, 0x1000" if i == 3 else ""))
    for i in range(3):
        A(f"buffer_store_dwordx4 v[16:19], v13, s[52:55], s14 offen offset:{i*1024} {cpol}")
    A(f"""v_cmp_gt_u32 vcc, 8, v1
v_cndmask_b32 v15, v31, v13, vcc
v_cmp_eq_u32 vcc, 0, v1
v_cndmask_b32 v14, v31, v1, vcc
s_lshl_b32 s13, s77, 7
s_add_u32 s13, s13, {WS_X1}
buffer_store_dwordx4 v[16:19], v15, s[52:55], s13 offen sc1""")
    srd(56, 40, 64)
    A(f"""v_mov_b32 v24, 1
s_waitcnt vmcnt(0)
buffer_store_byte v24, v14, s[56:59], s77 offen sc1
s_branch L_s_wo
L_s_g4:
v_lshlrev_b32 v14, 15, v3
v_lshl_add_u32 v14, v4, 10, v14
v_lshl_add_u32 v14, v5, 8, v14
s_and_b32 s13, s77, 28
s_lshl_b32 s13, s13, 10
s_lshr_b32 s14, s77, 5
s_lshl_b32 s14, s14, 6
s_add_u32 s13, s13, s14
s_and_b32 s14, s77, 3
s_lshl_b32 s14, s14, 4
s_add_u32 s13, s13, s14
s_add_u32 s13, s13, {WS_MP + 65536}
v_lshlrev_b32 v15, 12, v3
v_lshl_add_u32 v15, v5, 4, v15
v_cmp_eq_u32 vcc, 0, v4
v_cndmask_b32 v15, v31, v15, vcc
s_lshl_b32 s14, s77, 6
s_add_u32 s14, s14, {WS_G}
v_mov_b32 v24, s10
s_mov_b32 s70, {TMO}
L_s_g4p:
buffer_load_dwordx4 v[16:19], v14, s[52:55], s13 offen {gpol}
buffer_load_dwordx2 v[20:21], v14, s[52:55], s13 offen offset:128 {gpol}
s_waitcnt vmcnt(0)""")
    tagcheck([19, 21], 24)
    poll_tail("L_s_g4p", sleep=8)
    for c in ("row_ror:4", "row_ror:8"):
        for r in (16, 17, 18, 20): A(f"v_add_f32_dpp v{r}, v{r}, v{r} {c} row_mask:0xf bank_mask:0xf")
    A("""v_cvt_pk_bf16_f32 v16, v16, v17
v_cvt_pk_bf16_f32 v17, v18, v20
v_mov_b32 v18, s10
v_mov_b32 v19, s10
buffer_store_dwordx4 v[16:19], v15, s[52:55], s14 offen sc1""")
    A("L_s_wo:")
    A("s_load_dwordx2 s[24:25], s[0:1], 32")
    A(f"""v_lshlrev_b32 v14, 10, v3
v_lshl_add_u32 v14, v2, 4, v14
s_lshl_b32 s64, s6, 17
s_lshl_b32 s13, s12, 8
s_add_u32 s64, s64, s13
v_lshlrev_b32 v30, 4, v3
v_cmp_eq_u32 vcc, 0, v2
v_cndmask_b32 v30, v31, v30, vcc
s_lshl_b32 s74, s8, 18
s_lshl_b32 s13, s12, 16
s_add_u32 s74, s74, s13
s_lshl_b32 s13, s6, 2
s_add_u32 s13, s13, s9
s_lshl_b32 s13, s13, 6
s_add_u32 s74, s74, s13
s_add_u32 s74, s74, {WS_Y}
s_waitcnt vmcnt(0) lgkmcnt(0)""")
    if "w" in abl: A("s_branch L_s_now")
    srd(44, 24, 4096 * 1024)
    def wo_stage(i):
        A(f"ds_write_b128 v7, v[{W+4*i}:{W+4*i+3}] offset:{(i&7)*1024}")
        if i & 7 == 7:
            ks = i >> 3
            for tt in range(8):
                for jh in range(2):
                    d = W + (ks * 8 + tt) * 4 + jh * 2
                    A(f"ds_read_b64_tr_b16 v[{d}:{d+1}], v8 offset:{jh*1024+tt*32}")
    for i in range(32):
        if i >= SD:
            A(f"s_waitcnt vmcnt({SD-1})")
        A(f"buffer_load_dwordx4 v[{W+4*i}:{W+4*i+3}], v14, s[44:47], s64 offen {wpol}")
        if i < 31: A("s_addk_i32 s64, 0x1000")
        if i >= SD: wo_stage(i - SD)
    for i in range(max(0, 32 - SD), 32):
        A(f"s_waitcnt vmcnt({31 - i})")
        wo_stage(i)
    A("L_s_now:")
    stamp(5)
    if "f" in abl: A("s_branch L_s_noffn")
    W2 = 208
    A("s_cmp_lg_u32 s76, 1\ns_cbranch_scc1 L_s_noffn")
    A("s_load_dwordx4 s[28:31], s[0:1], 48")
    srd(44, 32, 1376 * 1024)
    A("s_lshl_b32 s64, s77, 15\ns_lshl_b32 s13, s12, 8\ns_add_u32 s64, s64, s13")
    for i in range(8):
        if i >= SF: A(f"s_waitcnt vmcnt({SF-1})")
        A(f"buffer_load_dwordx4 v[{W2+4*i}:{W2+4*i+3}], v14, s[44:47], s64 offen {tpol}\ns_addk_i32 s64, 0x1000")
    A(f"""v_lshrrev_b32 v9, 2, v1
v_mul_u32_u24 v9, 2752, v9
v_lshl_add_u32 v9, v5, 4, v9
s_and_b32 s13, s12, 1
s_mul_i32 s64, s13, {256*2752}
s_lshl_b32 s14, s77, 6
s_add_u32 s64, s64, s14
s_lshl_b32 s65, s12, 14
s_add_u32 s65, s65, {L_EXT}
s_waitcnt lgkmcnt(0)
s_cmp_lt_u32 s12, 2
s_cselect_b32 s44, s28, s30
s_cselect_b32 s45, s29, s31
s_mov_b32 s46, {512*2752:#x}""")
    for i in range(8):
        A(f"s_waitcnt vmcnt({7 - i})\nds_write_b128 v7, v[{W2+4*i}:{W2+4*i+3}] offset:{i*1024}")
    for tt in range(8):
        for jh in range(2):
            A(f"ds_read_b64_tr_b16 v[{W2+4*tt+2*jh}:{W2+4*tt+2*jh+1}], v8 offset:{jh*1024+tt*32}")
    for i in range(16):
        if i >= SF: A(f"s_waitcnt vmcnt({SF-1})")
        A(f"s_mov_b32 m0, s65\nbuffer_load_dwordx4 v9, s[44:47], s64 offen {fpol} lds\ns_add_u32 s64, s64, {16*2752:#x}\ns_addk_i32 s65, 0x400")
    A("L_s_noffn:")
    if "c" in abl or "l" in abl: A("s_branch L_s_noflag")
    A(f"""s_cmp_lg_u32 s3, 5
s_cbranch_scc1 L_s_noflag
s_mov_b32 s70, {TMO}
L_s_flag:
s_load_dwordx16 s[16:31], s[40:41], 0 glc
s_waitcnt lgkmcnt(0)
s_and_b64 s[16:17], s[16:17], s[18:19]
s_and_b64 s[20:21], s[20:21], s[22:23]
s_and_b64 s[24:25], s[24:25], s[26:27]
s_and_b64 s[28:29], s[28:29], s[30:31]
s_and_b64 s[16:17], s[16:17], s[20:21]
s_and_b64 s[24:25], s[24:25], s[28:29]
s_and_b64 s[16:17], s[16:17], s[24:25]
s_and_b32 s16, s16, s17
s_sub_u32 s70, s70, 1
s_cbranch_scc1 L_bail
s_cmp_lg_u32 s16, 0x01010101
s_cbranch_scc1 L_s_flag
L_s_noflag:""")
    A(f"""v_mul_u32_u24 v15, {OSTR}, v5
v_lshl_add_u32 v15, v3, 4, v15
v_add_u32 v15, {L_O}, v15
v_and_b32 v10, 1, v1
v_lshlrev_b32 v29, 4, v3
s_mov_b32 s13, {32*3072}
v_mul_lo_u32 v11, v10, s13
v_add_u32 v29, v29, v11
v_cmp_gt_u32 vcc, 2, v2
v_cndmask_b32 v29, v31, v29, vcc
s_mul_i32 s75, s12, {8*3072}
s_lshl_b32 s13, s77, 6
s_add_u32 s75, s75, s13
s_add_u32 s75, s75, {WS_OP}
v_lshlrev_b32 v28, 6, v10
v_lshl_add_u32 v28, v3, 4, v28
v_add_u32 v28, {L_HH}, v28
v_mov_b32 v20, {L_FL}
v_mov_b32 v21, s10
s_mov_b32 s70, {TMO*4}
s_waitcnt vmcnt(0) lgkmcnt(0)""")
    stamp(6)
    A("s_barrier")
    stamp(7)
    if "t" in abl: A("s_branch L_fin2")
    OB, DY = 192, 32
    for ks in range(4): A(f"ds_read_b128 v[{OB+4*ks}:{OB+4*ks+3}], v15 offset:{ks*64}")
    def ypost(tt):
        D = DY + 4 * tt
        ops = [f"v_add_f32_dpp v{D+r}, v{D+r}, v{D+r} quad_perm:[1,0,3,2] row_mask:0xf bank_mask:0xf" for r in range(4)]
        ops += [f"v_add_f32_dpp v{D+r}, v{D+r}, v{D+r} quad_perm:[2,3,0,1] row_mask:0xf bank_mask:0xf" for r in range(4)]
        ops += [f"buffer_store_dwordx4 v[{D}:{D+3}], v30, s[52:55], s74 offen sc1" + ("\ns_addk_i32 s74, 0x2000" if tt < 7 else "")]
        return ops
    for tt in range(8):
        D = DY + 4 * tt
        for ks in range(4):
            if tt == 0: A(f"s_waitcnt lgkmcnt({3-ks})")
            mfma32(D, W + (ks * 8 + tt) * 4, OB + 4 * ks, ks == 0)
            if tt >= 2:
                po = ypost(tt - 2)
                for o in po[2 * ks: 2 * ks + 2]: A(o)
                if ks == 3: A(po[8])
    for tt in (6, 7):
        for o in ypost(tt): A(o)
    stamp(8)
    A("s_cmp_lg_u32 s76, 1\ns_cbranch_scc1 L_fin2")
    A("""L_f2:
ds_read_b128 v[24:27], v20 offset:16
ds_read_b128 v[16:19], v28
s_waitcnt lgkmcnt(0)""")
    tagcheck([24, 25, 26, 27], 21)
    poll_tail("L_f2", sleep=1)
    stamp(9)
    for tt in range(8):
        mfma32(W + 4 * tt, W2 + 4 * tt, 16, True)
        if tt >= 3:
            A(f"buffer_store_dwordx4 v[{W+4*(tt-3)}:{W+4*(tt-3)+3}], v29, s[52:55], s75 offen sc1\ns_addk_i32 s75, 0xc00")
    for tt in range(5, 8):
        A(f"buffer_store_dwordx4 v[{W+4*tt}:{W+4*tt+3}], v29, s[52:55], s75 offen sc1\ns_addk_i32 s75, 0xc00")
    stamp(10)
    A("L_fin2:")
    finish()
    if diag:
        A("L_dump:")
        A("s_memrealtime s[78:79]\ns_waitcnt lgkmcnt(0)\ns_mov_b32 s91, s78")
        A("v_mov_b32 v8, 0")
        for i in range(12): A(f"v_writelane_b32 v8, s{80+i}, {i}")
        A(f"""s_lshl_b32 s12, s2, 3
s_add_u32 s12, s12, s3
s_lshl_b32 s12, s12, 8
s_add_u32 s12, s12, {WS_STAMP}
s_mov_b32 s54, 0x300000
v_lshlrev_b32 v9, 2, v1
buffer_store_dword v8, v9, s[52:55], s12 offen""")
    A("L_bail:\ns_endpgm")
    A.raw("L_codeend:")
    A.raw(f""".section .rodata,"a"
.p2align 6
.amdhsa_kernel {KNAME}
  .amdhsa_next_free_vgpr 256
  .amdhsa_next_free_sgpr 102
  .amdhsa_accum_offset 256
  .amdhsa_group_segment_fixed_size 0
  .amdhsa_kernarg_size 112
  .amdhsa_user_sgpr_count 2
  .amdhsa_user_sgpr_kernarg_segment_ptr 1
  .amdhsa_system_sgpr_workgroup_id_x 1
  .amdhsa_float_denorm_mode_32 3
.end_amdhsa_kernel""")
    return A.text()

if __name__ == "__main__":
    out = sys.argv[1]
    kw = json.loads(sys.argv[2]) if len(sys.argv) > 2 else {}
    open(out, "w").write(gen(**kw))
```

```python
import sys, json
sys.path.insert(0, "dev")
from asmlib import Asm

KNAME = "adaLN_cond__mha_block_cached__glu_gated_swiglu__decode_kernel"

WS_G, WS_X1, WS_ML, WS_QP, WS_QP8, WS_Y, WS_OP, WS_MP = 0x1000, 0x6000, 0x8000, 0x10000, 0x50000, 0x70000, 0xf0000, 0x150000
WS_END = 0x180000
WS_STAMP = 0x200000
OSTR = 272
LOG2E = 0x3fb8aa3b
SCALE = 0x3db504f3
EPS = 0x3727c5ac
OOB = 0x7ff00000
TMO = 1 << 18

def gen(R=48, X=28, CAP0=6, CAP=6, diag=False, NB=(128, 128, 128, 128), SD=3, SMD=8, SQ=16, FP=60, shr=3,
        dsleep=30, wpol="nt", fpol="nt", gpol="sc1", tpol="nt", kvpol="nt", prio=3, SF=3, abl="", bsleep=0, csleep=0, cpol="sc1", dbg=0):
    A = Asm()
    assert sum(NB) == 512
    NP = 4 * ((max(NB) + 3) // 4)
    NS = (NP + 15) // 16
    L_EXT = 32768
    SM = L_EXT + 4096 * X
    SM = max(SM, L_EXT + 65536)
    L_HL, L_SC, L_Q, L_HH, L_FL, L_O, L_DUM, L_H2 = SM, SM + 256, SM + 768, SM + 1024, SM + 1152, SM + 1184, SM + 2272, SM + 2784
    LDS_BYTES = L_H2 + 2048
    assert LDS_BYTES <= 163840

    def stamp(idx):
        if not diag: return
        A("s_memrealtime s[78:79]\ns_waitcnt lgkmcnt(0)")
        A(f"s_mov_b32 s{80+idx}, s78")
    def srd(d, base, nrec, off_lo=None):
        if off_lo is None:
            A(f"s_mov_b32 s{d}, s{base}\ns_mov_b32 s{d+1}, s{base+1}")
        else:
            A(f"s_add_u32 s{d}, s{base}, {off_lo}\ns_addc_u32 s{d+1}, s{base+1}, 0")
        A(f"s_mov_b32 s{d+2}, {nrec if isinstance(nrec, str) else hex(nrec)}\ns_mov_b32 s{d+3}, 0x20000")
    def finish():
        A("s_branch L_dump" if diag else "s_endpgm")
    def poll_tail(lbl, cnt="s70", sleep=0):
        A(f"s_sub_u32 {cnt}, {cnt}, 1\ns_cbranch_scc1 L_bail")
        if sleep:
            ok = A.newlabel("L_ok")
            A(f"s_cbranch_vccz {ok}\ns_sleep {sleep}\ns_branch {lbl}\n{ok}:")
        else:
            A(f"s_cbranch_vccnz {lbl}")
    def unpack(lo, hi, src):
        A(f"v_lshlrev_b32 v{lo}, 16, v{src}\nv_and_b32 v{hi}, 0xffff0000, v{src}")
    def allreduce(op, regs):
        for c in ("row_ror:8", "row_ror:4", "row_ror:2", "row_ror:1"):
            for r in regs:
                A(f"{op}_dpp v{r}, v{r}, v{r} {c} row_mask:0xf bank_mask:0xf")
        for r in regs:
            A(f"{op}_dpp v{r}, v{r}, v{r} row_bcast:15 row_mask:0xa bank_mask:0xf")
        for r in regs:
            A(f"{op}_dpp v{r}, v{r}, v{r} row_bcast:31 row_mask:0xc bank_mask:0xf")
    def mfma32(D, a, b, first):
        A(f"v_mfma_f32_16x16x32_bf16 v[{D}:{D+3}], v[{a}:{a+3}], v[{b}:{b+3}], " + ("0" if first else f"v[{D}:{D+3}]"))
    def tagcheck(regs, tagv):
        for i, rr in enumerate(regs):
            if i == 0: A(f"v_cmp_ne_u32 vcc, v{tagv}, v{rr}")
            else: A(f"v_cmp_ne_u32 s[66:67], v{tagv}, v{rr}\ns_or_b64 vcc, vcc, s[66:67]")
    def scalar_wait(lbl, soff, offs):
        A(f"s_add_u32 s96, s42, {soff}\ns_addc_u32 s97, s43, 0\ns_mov_b32 s71, 64")
        A(f"{lbl}:")
        for i, o in enumerate(offs): A(f"s_load_dword s{16+i}, s[96:97], {o} glc")
        A("s_waitcnt lgkmcnt(0)")
        for i in range(len(offs)): A(f"s_xor_b32 s{16+i}, s{16+i}, s10")
        for i in range(1, len(offs)): A(f"s_or_b32 s16, s16, s{16+i}")
        A(f"s_sub_u32 s71, s71, 1\ns_cbranch_scc1 {lbl}x\ns_cmp_lg_u32 s16, 0\ns_cbranch_scc1 {lbl}\n{lbl}x:")
    def roles():
        l = A.newlabel("L_role")
        A(f"""s_lshr_b32 s12, s2, 4
s_lshl_b32 s77, s4, 3
s_and_b32 s13, s12, 7
s_add_u32 s77, s77, s13
s_mov_b32 s72, s77
s_lshr_b32 s76, s12, 3
s_lshl_b32 s76, s76, 2
s_cmp_ge_u32 s9, 2
s_cbranch_scc1 {l}
s_lshl_b32 s72, s4, 4
s_add_u32 s72, s72, s12
s_add_u32 s72, s72, 64
s_lshr_b32 s77, s4, 1
s_mul_i32 s77, s77, 11
s_add_u32 s77, s77, s12
s_cmp_lt_u32 s77, 43
s_cselect_b32 s76, 1, 0
s_cmp_lt_u32 s12, 11
s_cselect_b32 s76, s76, 0
s_cmp_eq_u32 s9, 0
s_cselect_b32 s76, s76, 0
{l}:""")
    def layernorm8(X_, T, eps_s):
        X = X_
        A(f"""v_add_f32 v{T}, v{X}, v{X+1}
v_add_f32 v{T+1}, v{X+2}, v{X+3}
v_add_f32 v{T+2}, v{X+4}, v{X+5}
v_add_f32 v{T+3}, v{X+6}, v{X+7}
v_add_f32 v{T}, v{T}, v{T+1}
v_add_f32 v{T+2}, v{T+2}, v{T+3}
v_add_f32 v{T}, v{T}, v{T+2}""")
        allreduce("v_add_f32", [T])
        A(f"v_readlane_b32 s71, v{T}, 63")
        A(f"v_mov_b32 v{T+1}, 0x3b000000\nv_mul_f32 v{T}, s71, v{T+1}")
        A(f"v_cvt_pk_bf16_f32 v{T+2}, v{T}, v{T}")
        for k in range(8): A(f"v_sub_f32 v{T+4+k}, v{X+k}, v{T}")
        A(f"v_and_b32 v{T+2}, 0xffff0000, v{T+2}")
        A(f"v_mul_f32 v{T+3}, v{T+4}, v{T+4}\nv_mul_f32 v{T}, v{T+5}, v{T+5}")
        for k in range(2, 8, 2):
            A(f"v_fmac_f32 v{T+3}, v{T+4+k}, v{T+4+k}\nv_fmac_f32 v{T}, v{T+5+k}, v{T+5+k}")
        A(f"v_add_f32 v{T+3}, v{T+3}, v{T}")
        steps = ["row_ror:8 row_mask:0xf", "row_ror:4 row_mask:0xf", "row_ror:2 row_mask:0xf", "row_ror:1 row_mask:0xf", "row_bcast:15 row_mask:0xa", "row_bcast:31 row_mask:0xc"]
        fill = [f"v_sub_f32 v{X+k}, v{X+k}, v{T+2}" for k in range(8)] + [f"v_cvt_pk_bf16_f32 v{T+4+k}, v{X+2*k}, v{X+2*k+1}" for k in range(4)]
        for si, st in enumerate(steps):
            A(fill[2 * si]); A(fill[2 * si + 1])
            A(f"v_add_f32_dpp v{T+3}, v{T+3}, v{T+3} {st} bank_mask:0xf")
        unpack(X, X + 1, T + 4)
        A(f"v_readlane_b32 s71, v{T+3}, 63")
        unpack(X + 2, X + 3, T + 5)
        A(f"v_mul_f32 v{T}, s71, v{T+1}")
        unpack(X + 4, X + 5, T + 6)
        A(f"v_cvt_pk_bf16_f32 v{T}, v{T}, v{T}")
        unpack(X + 6, X + 7, T + 7)
        A(f"v_and_b32 v{T}, 0xffff0000, v{T}")
        A(f"v_add_f32 v{T}, {eps_s}, v{T}")
        A(f"v_cvt_pk_bf16_f32 v{T}, v{T}, v{T}\nv_and_b32 v{T}, 0xffff0000, v{T}")
        A(f"v_sqrt_f32 v{T}, v{T}")
        A(f"v_cvt_pk_bf16_f32 v{T}, v{T}, v{T}\nv_and_b32 v{T}, 0xffff0000, v{T}")
        A(f"v_rcp_f32 v{T}, v{T}")
        for k in range(8): A(f"v_mul_f32 v{X+k}, v{X+k}, v{T}")
        for k in range(4): A(f"v_cvt_pk_bf16_f32 v{T+4+k}, v{X+2*k}, v{X+2*k+1}")
        for k in range(4): unpack(X + 2 * k, X + 2 * k + 1, T + 4 + k)

    hdr = open("adaLN_cond__mha_block_cached__glu_gated_swiglu__decode.s.ref").read().split("\n")
    for l in hdr:
        if l.startswith("; @launch"): break
        A.raw(l)
    A.raw(f"; @launch grid=(256,1,1) block=(512,1,1) lds={LDS_BYTES}")
    A.raw('.amdgcn_target "amdgcn-amd-amdhsa--gfx950"\n.text')
    A.raw(f".globl {KNAME}\n.p2align 8\n.type {KNAME},@function\n{KNAME}:")
    A("s_cmp_ge_u32 s2, 256\ns_cbranch_scc1 L_bail")
    A("s_load_dwordx16 s[16:31], s[0:1], 0\ns_load_dwordx8 s[32:39], s[0:1], 64\ns_load_dwordx4 s[40:43], s[0:1], 96")
    if diag:
        for i in range(12): A(f"s_mov_b32 s{80+i}, 0")
        A("s_memrealtime s[78:79]")
    A("""v_and_b32 v1, 63, v0
v_lshrrev_b32 v2, 6, v0
v_readfirstlane_b32 s3, v2
s_and_b32 s4, s2, 7
s_lshr_b32 s5, s2, 3
s_lshr_b32 s8, s2, 7
s_lshr_b32 s6, s2, 4
s_and_b32 s6, s6, 7
s_lshl_b32 s6, s6, 2
s_bfe_u32 s7, s2, 0x20001
s_add_u32 s6, s6, s7
s_and_b32 s9, s5, 1
s_lshl_b32 s9, s9, 1
s_and_b32 s7, s2, 1
s_add_u32 s9, s9, s7
s_lshl_b32 s7, s8, 2
s_add_u32 s7, s7, s9
v_and_b32 v2, 15, v1
v_lshrrev_b32 v3, 4, v1
v_bfe_u32 v4, v1, 2, 2
v_and_b32 v5, 3, v1
s_cmp_ge_u32 s3, 4
s_cbranch_scc1 L_service""")
    RING = 256 - 4 * R
    QOP, MSK, DB, OA, SR = 8, 24, 28, 36, 40
    VF = SR + NS
    assert RING >= VF + 1
    VK, VV = 6, 7
    base = [0, NB[0], NB[0] + NB[1], NB[0] + NB[1] + NB[2]]
    A(f"""s_lshl_b32 s12, s3, 12
v_lshlrev_b32 v{VK}, 8, v4
v_lshl_add_u32 v{VK}, v3, 6, v{VK}
v_lshl_add_u32 v{VK}, v5, 4, v{VK}
v_add_u32 v{VK}, s12, v{VK}
v_lshlrev_b32 v{VV}, 4, v1
v_add_u32 v{VV}, s12, v{VV}
s_lshl_b32 s13, s2, 19
s_and_b32 s13, s13, 0xff800000
s_lshl_b32 s14, s6, 21
s_and_b32 s14, s14, 0x600000
s_add_u32 s13, s13, s14
s_mov_b32 s14, {base[0] | base[1] << 16:#x}
s_mov_b32 s15, {base[2] | base[3] << 16:#x}
s_lshl_b32 s12, s9, 4
s_lshr_b64 s[14:15], s[14:15], s12
s_and_b32 s14, s14, 0xffff
s_lshl_b32 s14, s14, 12
s_add_u32 s13, s13, s14
s_lshl_b32 s12, s9, 3
s_lshr_b32 s75, {NB[0] | NB[1] << 8 | NB[2] << 16 | NB[3] << 24:#x}, s12
s_and_b32 s75, s75, 0xff
s_lshl_b32 s74, s75, 12
s_mov_b32 s64, 0
s_mov_b32 s65, 0
s_waitcnt lgkmcnt(0)""")
    if diag: A("s_mov_b32 s80, s78")
    srd(44, 18, "s74", "s13")
    srd(48, 20, "s74", "s13")
    TOT = 2 * NP
    EXTRA = 0
    issued = []
    state = {"known": 0}
    slot_of = {}; free = [RING + 4 * k for k in range(R)][::-1]
    def kv_load(i, lds=False):
        if not lds: slot_of[i] = free.pop()
        slot = slot_of.get(i)
        if i >= TOT:
            e = i - TOT
            A(f"buffer_load_dwordx4 v[{slot}:{slot+3}], v{VF}, s[{56 + 4 * (e & 1)}:{59 + 4 * (e & 1)}], s64 offen {fpol}")
            if e & 1: A(f"s_add_u32 s64, s64, {64*2752:#x}")
        else:
            j = i % NP
            va, sr, so = (VK, 44, "s64") if i < NP else (VV, 48, "s65")
            if lds:
                if j & 3 == 0: A(f"s_add_u32 m0, s73, {(i - R) * 1024}")
                A(f"buffer_load_dwordx4 v{va}, s[{sr}:{sr+3}], {so} offen offset:{(j&3)*1024} {kvpol} lds")
            else:
                A(f"buffer_load_dwordx4 v[{slot}:{slot+3}], v{va}, s[{sr}:{sr+3}], {so} offen offset:{(j&3)*1024} {kvpol}")
            if j & 3 == 3 and j != NP - 1: A(f"s_addk_i32 {so}, 0x4000")
        issued.append(i)
    def wait_out(n):
        if len(issued) - state["known"] > n:
            A(f"s_waitcnt vmcnt({n})")
            state["known"] = len(issued) - n
    def wait_piece(p):
        wait_out(len(issued) - 1 - issued.index(p))
    assert R % 4 == 0 and X % 4 == 0
    for i in range(CAP0): kv_load(i)
    A("s_load_dword s11, s[42:43], 0")
    A(f"""v_and_b32 v28, 1, v1
v_cmp_eq_u32 vcc, 1, v28
v_mov_b32 v29, 0xffff
v_mov_b32 v30, 0xffff0000
v_cndmask_b32 v29, v29, v30, vcc
v_lshrrev_b32 v28, 1, v2""")
    for r in range(4):
        A(f"v_cmp_eq_u32 vcc, {r}, v28\nv_cndmask_b32 v{MSK+r}, 0, v29, vcc")
    srd(52, 42, WS_END)
    roles()
    A(f"""v_lshrrev_b32 v37, 2, v2
v_lshlrev_b32 v36, 6, v3
v_lshl_add_u32 v36, v37, 4, v36
v_add_u32 v36, {L_Q}, v36
s_mul_i32 s73, s3, {X*1024}
s_add_u32 s73, s73, {L_EXT}
v_lshlrev_b32 v38, 4, v1
v_add_u32 v38, s73, v38""")
    for i in range(CAP0, R + X):
        wait_out(CAP0 - 1)
        kv_load(i, lds=(i >= R))
    A("s_waitcnt lgkmcnt(0)")
    A("s_add_u32 s10, s11, 0x9e3779b9")
    stamp(1)
    A("s_barrier")
    stamp(2)
    A(f"ds_read_b128 v[{DB}:{DB+3}], v36")
    A("s_waitcnt lgkmcnt(0)")
    for t in range(4):
        A(f"v_cmp_eq_u32 vcc, {t}, v5")
        for r in range(4): A(f"v_cndmask_b32 v{QOP+4*t+r}, 0, v{DB+r}, vcc")
    def post_ops(G):
        u = G & 3; S = SR + (G >> 2); D = DB + 4 * (G & 1)
        ops = [f"v_mov_b32_dpp v{S}, v{D+u} quad_perm:[0,1,2,3] row_mask:0xf bank_mask:{1<<u:#x}"]
        for b in range(4):
            if b == u: continue
            ops.append(f"v_add_f32_dpp v{S}, v{D+b}, v{S} row_ror:{4 * ((u - b) % 4)} row_mask:0xf bank_mask:{1<<u:#x}")
        return ops
    nxt = {"n": R + X, "l": R}
    def prefill(c):
        n = nxt["n"]
        if n < TOT + EXTRA and n - c <= CAP and free:
            wait_out(CAP - 1)
            kv_load(n)
            nxt["n"] = n + 1
            nxt["done"] = c
    def refill(c):
        free.append(slot_of[c])
        n = nxt["n"]
        if nxt.get("done") == c: return
        if n < TOT + EXTRA and (n - c <= CAP or c % shr == shr - 1):
            wait_out(CAP - 1)
            kv_load(n)
            nxt["n"] = n + 1
        elif nxt["l"] < R + X and len(free) >= 2:
            p = nxt["l"]; slot = slot_of[p] = free.pop(0)
            wait_piece(p)
            A(f"ds_read_b128 v[{slot}:{slot+3}], v38 offset:{(p-R)*1024}")
            nxt["l"] = p + 1
    for i in range(NP):
        slot = slot_of[i]
        G = i >> 2; t = i & 3; D = DB + 4 * (G & 1)
        if i == R: A("s_waitcnt lgkmcnt(0)\ns_barrier"); assert nxt["l"] == R + X
        wait_piece(i)
        prefill(i)
        mfma32(D, slot, QOP + 4 * t, t == 0)
        po = post_ops(G - 1) if (G > 0 and t >= 2) else None
        if po: A(po[2 * (t - 2)])
        refill(i)
        if po: A(po[2 * (t - 2) + 1])
    for o in post_ops(NP // 4 - 1): A(o)
    stamp(3)
    T0 = 8
    A(f"s_mov_b32 s12, {SCALE:#x}\ns_mov_b32 s13, {LOG2E:#x}")
    def round_pairs():
        for k in range(0, NS, 2):
            A(f"v_cvt_pk_bf16_f32 v{T0+k//2}, v{SR+k}, v{SR+min(k+1, NS-1)}")
        for k in range(0, NS, 2):
            if k + 1 < NS: unpack(SR + k, SR + k + 1, T0 + k // 2)
            else: A(f"v_lshlrev_b32 v{SR+k}, 16, v{T0+k//2}")
    round_pairs()
    for k in range(NS): A(f"v_mul_f32 v{SR+k}, s12, v{SR+k}")
    round_pairs()
    if min(NB) < 16 * NS:
        A(f"v_and_b32 v{T0}, 12, v2\nv_add_u32 v{T0}, s3, v{T0}\nv_mov_b32 v{T0+1}, 0xff800000")
        for k in range(NS):
            if 16 * k + 15 >= min(NB):
                A(f"s_sub_i32 s14, s75, {16*k}\nv_cmp_gt_i32 vcc, s14, v{T0}\nv_cndmask_b32 v{SR+k}, v{T0+1}, v{SR+k}, vcc")
    A(f"v_max3_f32 v{T0}, v{SR}, v{SR+1}, v{SR+2}\nv_max3_f32 v{T0+1}, v{SR+3}, v{SR+4}, v{SR+5}\nv_max3_f32 v{T0}, v{T0}, v{SR+6}, v{SR+7}")
    if NS > 8: A(f"v_max_f32 v{T0+1}, v{T0+1}, v{SR+8}")
    A(f"v_max_f32 v{T0}, v{T0}, v{T0+1}")
    allreduce("v_max_f32", [T0])
    A(f"v_readlane_b32 s73, v{T0}, 63")
    for k in range(NS): A(f"v_subrev_f32 v{SR+k}, s73, v{SR+k}")
    for k in range(NS): A(f"v_mul_f32 v{SR+k}, s13, v{SR+k}")
    for k in range(NS): A(f"v_exp_f32 v{SR+k}, v{SR+k}")
    A(f"""v_add_f32 v{T0}, v{SR}, v{SR+1}
v_add_f32 v{T0+1}, v{SR+2}, v{SR+3}
v_add_f32 v{T0+2}, v{SR+4}, v{SR+5}
v_add_f32 v{T0+3}, v{SR+6}, v{SR+7}
v_add_f32 v{T0}, v{T0}, v{T0+1}
v_add_f32 v{T0+2}, v{T0+2}, v{T0+3}""")
    if NS > 8: A(f"v_add_f32 v{T0}, v{T0}, v{SR+8}")
    A(f"v_add_f32 v18, v{T0}, v{T0+2}")
    for k in range(NS): A(f"v_cvt_pk_bf16_f32 v{SR+k}, v{SR+k}, v{SR+k}")
    allreduce("v_add_f32", [18])
    A(f"""v_mov_b32 v16, s73
v_mov_b32 v17, s10
v_mov_b32 v19, s10
s_lshl_b32 s12, s8, 5
s_add_u32 s12, s12, s6
s_lshl_b32 s12, s12, 8
s_add_u32 s12, s12, {WS_ML}
s_add_u32 s96, s42, s12
s_addc_u32 s97, s43, 0
s_lshl_b32 s13, s9, 6
s_add_u32 s12, s12, s13
s_lshl_b32 s13, s3, 4
s_add_u32 s12, s12, s13
v_mov_b32 v20, {OOB:#x}
v_mov_b32 v21, 0
v_cmp_eq_u32 vcc, 63, v1
v_cndmask_b32 v20, v20, v21, vcc
v_lshlrev_b32 v22, 3, v1
v_add_u32 v22, {L_DUM}, v22
""")
    if "m" not in abl:
        A("buffer_store_dwordx4 v[16:19], v20, s[52:55], s12 offen sc1")
        issued.append("ml")
    A(f"""s_mul_i32 s12, s3, {OSTR}
s_add_u32 s12, s12, {L_O}
v_lshlrev_b32 v28, 4, v2
v_lshl_add_u32 v28, v3, 3, v28
v_add_u32 v28, s12, v28
v_cmp_gt_u32 vcc, 32, v1
v_cndmask_b32 v28, v22, v28, vcc""")
    stamp(4)
    AB = 8
    def sel(i):
        P = SR + (i >> 4); c = i & 15; a = AB + 4 * (i & 1)
        for r in range(4):
            A(f"v_and_b32_dpp v{a+r}, v{P}, v{MSK+r} row_newbcast:{c} row_mask:0xf bank_mask:0xf")
    def ml_loads(hf):
        A(f"""s_load_dwordx16 s[16:31], s[96:97], {hf*128} glc
s_load_dwordx8 s[32:39], s[96:97], {hf*128+64} glc
s_load_dwordx8 s[56:63], s[96:97], {hf*128+96} glc""")
    sel(0)
    for i in range(NP):
        gi = NP + i
        slot = slot_of[gi]; a = AB + 4 * (i & 1)
        wait_piece(gi)
        prefill(gi)
        mfma32(OA, a, slot, i == 0)
        if i < NP - 1: sel(i + 1)
        refill(gi)
        if "m" in abl: continue
        if i == NP - FP:
            A(f"s_mov_b32 s70, {TMO}\ns_mov_b32 s13, {LOG2E:#x}\nv_mov_b32 v30, s73\nv_mov_b32 v31, 0")
            ml_loads(0)
        if i in (NP - FP + 16, NP - FP + 32):
            hf = 0 if i == NP - FP + 16 else 1
            regs = [16, 20, 24, 28, 32, 36, 56, 60]
            A(f"s_branch L_fchk{hf}\nL_fpoll{hf}:")
            ml_loads(hf)
            A(f"L_fchk{hf}:\ns_waitcnt lgkmcnt(0)\ns_mov_b32 s12, 0")
            for g in regs:
                A(f"s_xor_b32 s14, s{g+1}, s10\ns_or_b32 s12, s12, s14\ns_xor_b32 s14, s{g+3}, s10\ns_or_b32 s12, s12, s14")
            A(f"s_sub_u32 s70, s70, 1\ns_cbranch_scc1 L_bail\ns_cmp_lg_u32 s12, 0\ns_cbranch_scc1 L_fpoll{hf}")
            A("v_mov_b32 v29, v30")
            for g in regs: A(f"v_max_f32 v30, s{g}, v30")
            A("v_sub_f32 v29, v29, v30")
            for k, g in enumerate(regs): A(f"v_sub_f32 v{16+k}, s{g}, v30")
            A("v_mul_f32 v29, s13, v29")
            for k in range(8): A(f"v_mul_f32 v{16+k}, s13, v{16+k}")
            A("v_exp_f32 v29, v29")
            for k in range(8): A(f"v_exp_f32 v{16+k}, v{16+k}")
            A("v_mul_f32 v31, v31, v29")
            for k, g in enumerate(regs): A(f"v_fmac_f32 v31, s{g+2}, v{16+k}")
            if hf == 0:
                ml_loads(1)
            else:
                A("""v_sub_f32 v30, s73, v30
v_rcp_f32 v31, v31
v_mul_f32 v30, s13, v30
v_exp_f32 v30, v30
s_load_dwordx2 s[16:17], s[0:1], 0
s_load_dwordx2 s[38:39], s[0:1], 88
v_mul_f32 v30, v30, v31""")
    for r in range(4): A(f"v_mul_f32 v{OA+r}, v30, v{OA+r}")
    A(f"v_cvt_pk_bf16_f32 v32, v{OA}, v{OA+1}\nv_cvt_pk_bf16_f32 v33, v{OA+2}, v{OA+3}")
    A("ds_write_b64 v28, v[32:33]\ns_waitcnt lgkmcnt(0)")
    stamp(5)
    A("s_barrier")
    stamp(6)
    if "t" in abl: A("s_branch L_fin")
    A("""s_cmp_eq_u32 s76, 4
s_cbranch_scc1 L_stepB
s_cmp_lg_u32 s76, 1
s_cbranch_scc1 L_fin""")
    WA = [64 + 4 * k for k in range(16)]; HB = [128 + 4 * k for k in range(16)]
    SB, C1, XX = 16, 24, 32
    A(f"""v_lshlrev_b32 v9, 9, v3
v_lshl_add_u32 v9, v4, 6, v9
v_and_b32 v11, 1, v1
v_lshl_add_u32 v9, v11, 3, v9
v_lshrrev_b32 v10, 1, v5
v_lshl_add_u32 v9, v10, 15, v9
s_lshl_b32 s12, s3, 4
s_add_u32 s14, s12, {L_EXT}
v_add_u32 v9, s14, v9""")
    for ks in range(16):
        for jh in range(2):
            A(f"ds_read_b64_tr_b16 v[{WA[ks]+2*jh}:{WA[ks]+2*jh+1}], v9 offset:{ks*2048+jh*256}")
    A(f"""v_mov_b32 v57, s10
v_lshlrev_b32 v12, 10, v11
v_lshl_add_u32 v12, v3, 4, v12
v_add_u32 v12, {L_H2}, v12
v_lshlrev_b32 v13, 6, v11
v_and_b32 v14, 1, v3
v_lshl_add_u32 v13, v14, 3, v13
v_lshrrev_b32 v14, 1, v3
v_lshl_add_u32 v13, v14, 2, v13
s_add_u32 s12, s12, {L_HH}
v_add_u32 v13, s12, v13
v_lshlrev_b32 v14, 2, v1
v_add_u32 v14, {L_DUM}, v14
v_cmp_gt_u32 vcc, 2, v2
v_cndmask_b32 v13, v14, v13, vcc
s_mov_b32 s68, {EPS:#x}
s_mov_b32 s69, {LOG2E:#x}
s_mov_b32 s70, {TMO*4}
v_mov_b32 v15, {L_FL}
s_lshl_b32 s12, s3, 2
s_add_u32 s12, s12, {L_FL}
v_mov_b32 v56, s12
s_sub_u32 s13, s3, 1
s_cmp_ge_u32 s13, 2
s_cbranch_scc1 L_c_h2s
s_lshl_b32 s14, s13, 11
s_add_u32 s14, s14, {WS_G + 4096}
s_add_u32 s15, s14, 4096
v_lshlrev_b32 v8, 5, v1
L_c_sbcb:""")
    for k, (so, of) in enumerate((("s14", 0), ("s14", 16), ("s15", 0), ("s15", 16))):
        A(f"buffer_load_dwordx4 v[{40+4*k}:{43+4*k}], v8, s[52:55], {so} offen offset:{of} sc1")
    A("s_waitcnt vmcnt(0)")
    tagcheck([42, 43, 46, 47, 50, 51, 54, 55], 57)
    poll_tail("L_c_sbcb", sleep=1)
    for k, rr in enumerate((40, 41, 44, 45)): unpack(SB + 2 * k, SB + 2 * k + 1, rr)
    for k, rr in enumerate((48, 49, 52, 53)): unpack(C1 + 2 * k, C1 + 2 * k + 1, rr)
    for k in range(8): A(f"v_add_f32 v{C1+k}, 1.0, v{C1+k}")
    for k in range(4): A(f"v_cvt_pk_bf16_f32 v{40+k}, v{C1+2*k}, v{C1+2*k+1}")
    for k in range(4): unpack(C1 + 2 * k, C1 + 2 * k + 1, 40 + k)
    A(f"""s_lshl_b32 s14, s13, 10
s_add_u32 s15, s14, {L_H2}
s_lshl_b32 s14, s13, 12
s_add_u32 s14, s14, {WS_X1}
v_lshlrev_b32 v8, 4, v1
v_add_u32 v10, s15, v8
v_lshrrev_b32 v8, 1, v1
v_lshlrev_b32 v8, 7, v8
v_lshl_add_u32 v8, v11, 4, v8
s_waitcnt lgkmcnt(0)""")
    stamp(7)
    A("L_c_x1:")
    A("buffer_load_dwordx4 v[40:43], v8, s[52:55], s14 offen sc1\ns_waitcnt vmcnt(0)")
    A("v_max3_u32 v44, v40, v41, v42\nv_max_u32 v44, v44, v43\nv_cmp_eq_u32 vcc, -1, v44")
    poll_tail("L_c_x1", sleep=csleep)
    stamp(8)
    for k in range(4): unpack(XX + 2 * k, XX + 2 * k + 1, 40 + k)
    layernorm8(XX, 44, "s68")
    for k in range(8): A(f"v_mul_f32 v{XX+k}, v{XX+k}, v{C1+k}")
    for k in range(4): A(f"v_cvt_pk_bf16_f32 v{44+k}, v{XX+2*k}, v{XX+2*k+1}")
    for k in range(4): unpack(XX + 2 * k, XX + 2 * k + 1, 44 + k)
    for k in range(8): A(f"v_add_f32 v{XX+k}, v{XX+k}, v{SB+k}")
    for k in range(4): A(f"v_cvt_pk_bf16_f32 v{44+k}, v{XX+2*k}, v{XX+2*k+1}")
    A("ds_write_b128 v10, v[44:47]\nds_write_b32 v56, v57\ns_branch L_c_h2")
    A("L_c_h2s:\ns_sleep 1")
    A("L_c_h2:\nds_read2_b32 v[44:45], v15 offset0:1 offset1:2\ns_waitcnt lgkmcnt(0)")
    tagcheck([44, 45], 57)
    poll_tail("L_c_h2s")
    for ks in range(16): A(f"ds_read_b128 v[{HB[ks]}:{HB[ks]+3}], v12 offset:{ks*64}")
    for ks in range(16):
        A(f"s_waitcnt lgkmcnt({15-ks})")
        mfma32(40, WA[ks], HB[ks], ks == 0)
    A("v_permlane32_swap_b32 v40, v42\nv_permlane32_swap_b32 v41, v43")
    A("v_cvt_pk_bf16_f32 v44, v40, v41\nv_cvt_pk_bf16_f32 v45, v42, v43")
    unpack(40, 41, 44); unpack(42, 43, 45)
    A("""v_mul_f32 v44, s69, v40
v_mul_f32 v45, s69, v41
v_exp_f32 v44, -v44
v_exp_f32 v45, -v45
v_add_f32 v44, 1.0, v44
v_add_f32 v45, 1.0, v45
v_rcp_f32 v44, v44
v_rcp_f32 v45, v45
v_mul_f32 v40, v40, v44
v_mul_f32 v41, v41, v45
v_cvt_pk_bf16_f32 v44, v40, v41""")
    unpack(40, 41, 44)
    A("""v_mul_f32 v40, v40, v42
v_mul_f32 v41, v41, v43
v_cvt_pk_bf16_f32 v44, v40, v41
ds_write_b32 v13, v44
ds_write_b32 v56, v57 offset:16""")
    stamp(9)
    A("L_fin:")
    finish()
    A("L_stepB:")
    A("s_cmp_lg_u32 s3, 0\ns_cbranch_scc1 L_fin")
    srd(56, 16, 2048)
    srd(60, 38, 2048)
    A(f"""s_lshl_b32 s14, s77, 6
s_add_u32 s14, s14, {WS_G}
s_add_u32 s13, s14, {3*4096}
s_lshl_b32 s15, s77, 5
s_lshl_b32 s72, s77, 13
s_add_u32 s72, s72, {WS_Y}
s_add_u32 s75, s72, 4096
s_lshl_b32 s73, s77, 7
s_add_u32 s73, s73, {WS_X1}
s_mul_i32 s74, s77, 3072
s_add_u32 s74, s74, {WS_OP}
v_lshlrev_b32 v8, 4, v5
v_lshlrev_b32 v9, 4, v1
v_lshlrev_b32 v12, 3, v5
v_lshl_add_u32 v13, v3, 1, v12
v_mov_b32 v10, {OOB:#x}
v_cmp_gt_u32 vcc, 44, v1
v_cndmask_b32 v14, v10, v9, vcc
v_cmp_gt_u32 vcc, 4, v1
v_cndmask_b32 v12, v10, v12, vcc
v_cmp_eq_u32 vcc, 0, v1
v_cndmask_b32 v10, v10, v1, vcc
v_mov_b32 v11, s10
v_and_b32 v15, 1, v3
v_lshlrev_b32 v15, 4, v15
v_sub_u32 v15, 16, v15
s_mov_b32 s12, 0x03020706
s_mov_b32 s70, {TMO}
buffer_load_ushort v16, v13, s[56:59], s15 offen""")
    A("L_b_ga:")
    A("buffer_load_dwordx4 v[20:23], v8, s[52:55], s14 offen sc1\nbuffer_load_dwordx4 v[24:27], v8, s[52:55], s13 offen sc1\ns_waitcnt vmcnt(0)")
    tagcheck([22, 23, 26, 27], 11)
    poll_tail("L_b_ga", sleep=1)
    A("""v_cmp_gt_u32 vcc, 32, v1
v_cndmask_b32 v17, v21, v20, vcc
v_cndmask_b32 v18, v25, v24, vcc
v_lshlrev_b32 v17, v15, v17
v_lshlrev_b32 v18, v15, v18
v_and_b32 v17, 0xffff0000, v17
v_and_b32 v18, 0xffff0000, v18
v_lshlrev_b32 v16, 16, v16""")
    A(f"s_mov_b32 s70, {TMO}")
    def gatherN(lbl, n, so0, so1, lastv):
        A(f"{lbl}:")
        for i in range(n):
            A(f"buffer_load_dwordx4 v[{64+4*i}:{67+4*i}], v{lastv if i == n - 1 else 9}, s[52:55], {so0 if i < 4 else so1} offen offset:{(i&3)*1024} sc1")
        for i in range(n):
            r = 64 + 4 * i
            A(f"s_waitcnt vmcnt({n-1-i})")
            if i == 0:
                A(f"v_max3_u32 v28, v{r}, v{r+1}, v{r+2}\nv_max_u32 v29, v{r+3}, v{r+3}")
            else:
                A(f"v_max3_u32 v28, v28, v{r}, v{r+1}\nv_max3_u32 v29, v29, v{r+2}, v{r+3}")
                for k in range(4): A(f"v_add_f32 v{32+k}, v{64+k if i == 1 else 32+k}, v{r+k}")
        A("v_max_u32 v28, v28, v29\nv_cmp_eq_u32 vcc, -1, v28")
        poll_tail(lbl, sleep=bsleep)
    def red16(G, Xr):
        A("""v_permlane32_swap_b32 v32, v34
v_permlane32_swap_b32 v33, v35
v_add_f32 v32, v32, v34
v_add_f32 v33, v33, v35
v_permlane16_swap_b32 v32, v33
v_add_f32 v32, v32, v33
v_add_f32_dpp v32, v32, v32 row_ror:4 row_mask:0xf bank_mask:0xf
v_add_f32_dpp v32, v32, v32 row_ror:8 row_mask:0xf bank_mask:0xf
v_cvt_pk_bf16_f32 v32, v32, v32
v_and_b32 v32, 0xffff0000, v32""")
        A(f"""v_mul_f32 v32, v32, v{G}
v_cvt_pk_bf16_f32 v32, v32, v32
v_and_b32 v32, 0xffff0000, v32
v_add_f32 v32, v32, v{Xr}
v_cvt_pk_bf16_f32 v30, v32, v32
v_mov_b32 v32, v30
v_mov_b32 v33, v30
v_permlane16_swap_b32 v32, v33
v_perm_b32 v32, v32, v33, s12
v_min_u32 v32, -2, v32
v_mov_b32 v33, v32
v_permlane32_swap_b32 v32, v33""")
    stamp(7)
    gatherN("L_b_y", 8, "s72", "s75", 9)
    stamp(8)
    red16(17, 16)
    A("buffer_store_dwordx2 v[32:33], v12, s[52:55], s73 offen sc1")
    stamp(9)
    A("v_and_b32 v16, 0xffff0000, v30")
    A(f"s_mov_b32 s70, {TMO}")
    if dsleep: A(f"s_sleep {dsleep}")
    gatherN("L_d_op", 3, "s74", "s74", 14)
    stamp(10)
    red16(18, 16)
    A("buffer_store_dwordx2 v[32:33], v12, s[60:63], s15 offen")
    A("s_cmp_lg_u32 s77, 0\ns_cbranch_scc1 L_fin3")
    A("buffer_store_dword v11, v10, s[52:55], 0 offen sc1")
    A("L_fin3:")
    finish()
    A("L_service:")
    if prio: A(f"s_setprio {prio}")
    W, TT, BB = 64, 192, 32
    roles()
    A(f"""s_sub_u32 s12, s3, 4
s_lshl_b32 s13, s12, 13
v_lshlrev_b32 v13, 4, v1
v_add_u32 v7, s13, v13
v_lshlrev_b32 v8, 11, v3
v_lshl_add_u32 v8, v4, 8, v8
v_lshl_add_u32 v8, v5, 3, v8
v_add_u32 v8, s13, v8
v_mov_b32 v31, {OOB:#x}
s_mov_b32 s68, {EPS:#x}
s_mov_b32 s69, {LOG2E:#x}
s_waitcnt lgkmcnt(0)""")
    if diag: A("s_mov_b32 s80, s78")
    A("s_load_dword s11, s[42:43], 0")
    srd(52, 42, WS_END)
    if "q" in abl: A("s_cmp_eq_u32 s3, 4\ns_cbranch_scc1 L_s_bar1")
    if "u" in abl: A("s_cmp_eq_u32 s3, 7\ns_cbranch_scc1 L_s_bar1")
    A("""s_cmp_eq_u32 s3, 4
s_cbranch_scc1 L_s_q
s_cmp_eq_u32 s3, 5
s_cbranch_scc1 L_s_warm
s_cmp_eq_u32 s3, 6
s_cbranch_scc1 L_s_bar1
s_cmp_eq_u32 s76, 4
s_cbranch_scc1 L_s_bar1""")
    srd(48, 36, 512 * 6144)
    srd(60, 34, 2048)
    A(f"""s_lshr_b32 s13, s72, 2
s_and_b32 s14, s72, 3
s_lshl_b32 s65, s13, 7
s_mul_i32 s64, s14, {128*6144}
s_add_u32 s65, s65, s64
s_lshl_b32 s64, s14, 8
v_lshrrev_b32 v9, 3, v1
v_mul_u32_u24 v9, 6144, v9
v_and_b32 v11, 7, v1
v_lshl_add_u32 v9, v11, 4, v9
v_lshrrev_b32 v11, 5, v1
v_and_b32 v12, 31, v1
v_lshlrev_b32 v12, 3, v12
v_lshl_add_u32 v14, v11, 10, v12
buffer_load_dwordx2 v[16:17], v14, s[60:63], s64 offen""")
    for i in range(16):
        if i >= SMD: A(f"s_waitcnt vmcnt({SMD-1})")
        A(f"buffer_load_dwordx4 v[{TT+4*i}:{TT+4*i+3}], v9, s[48:51], s65 offen {tpol}")
        if i < 15: A(f"s_add_u32 s65, s65, {8*6144:#x}")
        if i == min(SMD, 16) - 1:
            A(f"""v_lshl_add_u32 v15, v11, 8, v12
v_add_u32 v15, {L_SC}, v15
v_lshlrev_b32 v11, 10, v3
v_lshl_add_u32 v11, v4, 7, v11
v_lshl_add_u32 v11, v5, 3, v11
v_add_u32 v11, {3*8192}, v11
v_and_b32 v28, 1, v4
v_lshlrev_b32 v12, 8, v28
v_lshl_add_u32 v12, v3, 4, v12
v_add_u32 v12, {L_SC}, v12
s_waitcnt vmcnt({i+1})""")
            unpack(20, 21, 16); unpack(22, 23, 17)
            for k in range(4): A(f"v_mul_f32 v{24+k}, s69, v{20+k}")
            for k in range(4): A(f"v_exp_f32 v{24+k}, -v{24+k}")
            for k in range(4): A(f"v_add_f32 v{24+k}, 1.0, v{24+k}")
            for k in range(4): A(f"v_rcp_f32 v{24+k}, v{24+k}")
            for k in range(4): A(f"v_mul_f32 v{20+k}, v{20+k}, v{24+k}")
            A("v_cvt_pk_bf16_f32 v16, v20, v21\nv_cvt_pk_bf16_f32 v17, v22, v23\nds_write_b64 v15, v[16:17]")
            for ks in range(4): A(f"ds_read_b128 v[{BB+4*ks}:{BB+4*ks+3}], v12 offset:{ks*64}")
    for ks in range(4):
        for i in range(4 * ks, 4 * ks + 4):
            A(f"s_waitcnt vmcnt({15 - i})")
            A(f"ds_write_b128 v7, v[{TT+4*i}:{TT+4*i+3}] offset:{(i&7)*1024}")
        for tt in range(4):
            for jh in range(2):
                d = TT + (ks * 4 + tt) * 4 + jh * 2
                A(f"ds_read_b64_tr_b16 v[{d}:{d+1}], v11 offset:{(ks&1)*4096+jh*512+tt*32}")
    for ks in range(4):
        A(f"s_waitcnt lgkmcnt({0 if ks == 3 else 12})")
        for tt in range(4): mfma32(48 + 4 * tt, TT + (ks * 4 + tt) * 4, BB + 4 * ks, ks == 0)
    A("s_add_u32 s10, s11, 0x9e3779b9")
    for tt in range(1, 4):
        A(f"v_cmp_eq_u32 vcc, {tt}, v5")
        for r in range(4): A(f"v_cndmask_b32 v{48+r}, v{48+r}, v{48+4*tt+r}, vcc")
    A(f"""v_cmp_gt_u32 vcc, 8, v2
v_mov_b32 v52, s10
v_cndmask_b32 v48, v51, v48, vcc
v_cndmask_b32 v49, v52, v49, vcc
v_cndmask_b32 v50, v52, v50, vcc
v_mov_b32 v51, s10
s_lshl_b32 s13, s72, 10
s_add_u32 s13, s13, {WS_MP}
buffer_store_dwordx4 v[48:51], v13, s[52:55], s13 offen sc1""")
    stamp(1)
    A("s_branch L_s_bar1")
    A(f"""L_s_warm:
s_getpc_b64 s[66:67]
L_pc:
s_sub_u32 s66, s66, L_pc-{KNAME}
s_subb_u32 s67, s67, 0
s_lshl_b32 s13, s5, 10
v_add_u32 v14, s13, v13
v_min_u32 v14, L_codeend-{KNAME}-16, v14
global_load_dwordx4 v[20:23], v14, s[66:67]
s_branch L_s_bar1""")
    A("L_s_q:")
    srd(44, 22, 512 * 8192)
    srd(56, 16, 2048)
    A(f"""v_lshlrev_b32 v6, 13, v3
v_lshl_add_u32 v6, v2, 4, v6
s_lshl_b32 s64, s6, 8
s_lshl_b32 s13, s7, 19
s_add_u32 s64, s64, s13
buffer_load_dwordx4 v[24:27], v13, s[56:59], 0 offen
buffer_load_dwordx4 v[28:31], v13, s[56:59], 0 offen offset:1024""")
    for i in range(16):
        if i >= SQ: A(f"s_waitcnt vmcnt({SQ-1})")
        A(f"buffer_load_dwordx4 v[{W+4*i}:{W+4*i+3}], v6, s[44:47], s64 offen {tpol}")
        if i < 15: A("s_add_u32 s64, s64, 0x8000")
    A(f"""v_and_b32 v63, 7, v1
v_lshrrev_b32 v16, 5, v1
v_and_b32 v19, 1, v3
v_lshlrev_b32 v14, 15, v16
v_lshl_add_u32 v14, v5, 8, v14
v_lshl_add_u32 v14, v19, 6, v14
v_lshl_add_u32 v14, v4, 4, v14
v_bfe_u32 v17, v1, 3, 2
v_lshlrev_b32 v6, 10, v16
v_lshl_add_u32 v6, v17, 8, v6
v_lshl_add_u32 v6, v63, 4, v6
v_lshlrev_b32 v23, 5, v63
v_lshl_add_u32 v23, v17, 3, v23
v_lshl_add_u32 v23, v16, 2, v23
v_add_u32 v23, {L_Q}, v23
v_lshlrev_b32 v18, 3, v2
v_lshl_add_u32 v18, v16, 2, v18
v_lshl_add_u32 v11, v19, 7, v18
v_add_u32 v11, {L_HL}, v11
v_lshl_add_u32 v15, v19, 10, v18
s_lshl_b32 s13, s7, 7
s_add_u32 s13, s13, {L_H2}
v_add_u32 v15, s13, v15
v_bfe_u32 v12, v1, 3, 1
v_lshlrev_b32 v12, 7, v12
v_lshl_add_u32 v12, v3, 4, v12
v_add_u32 v12, {L_HL}, v12
s_waitcnt vmcnt(16)""")
    for b in range(2):
        for k in range(4): unpack(BB + 2 * k, BB + 2 * k + 1, 24 + 4 * b + k)
        layernorm8(BB, BB + 8, "s68")
        A(f"v_add_u32 v16, {L_H2 + 1024*b}, v13\nds_write_b128 v16, v[{BB+12}:{BB+15}]")
    A(f"ds_read_b32 v22, v15\nv_mov_b32 v31, {OOB:#x}")
    for ks in range(2):
        for i in range(8 * ks, 8 * ks + 8):
            A(f"s_waitcnt vmcnt({15 - i})")
            A(f"ds_write_b128 v7, v[{W+4*i}:{W+4*i+3}] offset:{(i&7)*1024}")
        for tt in range(8):
            for jh in range(2):
                d = W + (ks * 8 + tt) * 4 + jh * 2
                A(f"ds_read_b64_tr_b16 v[{d}:{d+1}], v8 offset:{jh*1024+tt*32}")
    A(f"""s_waitcnt lgkmcnt(0)
s_add_u32 s10, s11, 0x9e3779b9
s_lshl_b32 s13, s7, 12
s_add_u32 s13, s13, {WS_MP}
v_mov_b32 v24, s10
v_lshrrev_b32 v60, 1, v13
v_lshrrev_b32 v61, 1, v6
s_lshl_b32 s95, s6, 13
s_lshl_b32 s64, s7, 10
s_add_u32 s64, s64, s95
s_lshr_b32 s92, s64, 1
s_add_u32 s92, s92, {WS_QP8}
s_add_u32 s64, s64, {WS_QP}
s_lshl_b32 s65, s8, 7
s_add_u32 s95, s95, s65
s_lshr_b32 s93, s95, 1
s_add_u32 s93, s93, {WS_QP8}
s_add_u32 s95, s95, {WS_QP}
s_add_u32 s65, s95, 4096
s_mov_b32 s70, {TMO}""")
    unpack(26, 27, 22)
    stamp(1)
    scalar_wait("L_sp1", "s13", [c * 32768 + rq * 1024 + 780 for c in range(2) for rq in range(4)])
    A("L_q_mp:")
    for rq in range(4): A(f"buffer_load_dwordx4 v[{BB+4*rq}:{BB+4*rq+3}], v14, s[52:55], s13 offen offset:{rq*1024} {gpol}")
    for rq in range(4): A(f"buffer_load_dwordx2 v[{48+2*rq}:{49+2*rq}], v14, s[52:55], s13 offen offset:{rq*1024+128} {gpol}")
    A("s_waitcnt vmcnt(0)")
    tagcheck([BB + 3, BB + 7, BB + 11, BB + 15, 49, 51, 53, 55], 24)
    poll_tail("L_q_mp")
    stamp(2)
    def sum4():
        for r in range(3): A(f"v_add_f32 v{BB+r}, v{BB+r}, v{BB+4+r}")
        A(f"v_add_f32 v{BB+3}, v48, v50")
        for r in range(3): A(f"v_add_f32 v{BB+8+r}, v{BB+8+r}, v{BB+12+r}")
        A(f"v_add_f32 v{BB+11}, v52, v54")
        for r in range(4): A(f"v_add_f32 v{BB+r}, v{BB+r}, v{BB+8+r}")
        A(f"v_permlane32_swap_b32 v{BB}, v{BB+2}\nv_permlane32_swap_b32 v{BB+1}, v{BB+3}")
    sum4()
    A(f"v_cvt_pk_bf16_f32 v20, v{BB}, v{BB+1}\nv_cvt_pk_bf16_f32 v21, v{BB+2}, v{BB+3}")
    unpack(18, 19, 21)
    unpack(16, 17, 20)
    A("v_add_f32 v18, 1.0, v18\nv_add_f32 v19, 1.0, v19\nv_cvt_pk_bf16_f32 v21, v18, v19")
    unpack(18, 19, 21)
    A("v_mul_f32 v18, v18, v26\nv_mul_f32 v19, v19, v27\nv_cvt_pk_bf16_f32 v21, v18, v19")
    unpack(18, 19, 21)
    A("v_add_f32 v18, v18, v16\nv_add_f32 v19, v19, v17\nv_cvt_pk_bf16_f32 v21, v18, v19")
    A("ds_write_b32 v11, v21")
    A(f"ds_read_b128 v[{BB}:{BB+3}], v12\nds_read_b128 v[{BB+4}:{BB+7}], v12 offset:64")
    for ks in range(2):
        A(f"s_waitcnt lgkmcnt({1-ks})")
        for tt in range(8): mfma32(TT + 4 * tt, W + (ks * 8 + tt) * 4, BB + 4 * ks, ks == 0)
    A("v_cmp_eq_u32 s[66:67], 1, v63")
    for tt in range(1, 8):
        cur = "s[66:67]" if tt & 1 else "vcc"
        nx = "vcc" if tt & 1 else "s[66:67]"
        if tt < 7: A(f"v_cmp_eq_u32 {nx}, {tt+1}, v63")
        for r in range(4): A(f"v_cndmask_b32 v{TT+r}, v{TT+r}, v{TT+4*tt+r}, {cur}")
    A(f"""v_mov_b32 v{TT+4}, v{TT+3}
v_mov_b32 v{TT+3}, s10
v_mov_b32 v{TT+5}, s10
buffer_store_dwordx4 v[{TT}:{TT+3}], v13, s[52:55], s64 offen sc1
buffer_store_dwordx2 v[{TT+4}:{TT+5}], v60, s[52:55], s92 offen sc1
s_mov_b32 s70, {TMO}""")
    stamp(3)
    scalar_wait("L_sp2", "s95", [r * 1024 + 780 for r in range(8)])
    A("L_q_qp:")
    for m in range(4): A(f"buffer_load_dwordx4 v[{BB+4*m}:{BB+4*m+3}], v6, s[52:55], {'s95' if m < 2 else 's65'} offen offset:{(m&1)*2048} {gpol}")
    for m in range(4): A(f"buffer_load_dwordx2 v[{48+2*m}:{49+2*m}], v61, s[52:55], s93 offen offset:{m*1024} {gpol}")
    A("s_waitcnt vmcnt(0)")
    tagcheck([BB + 3, BB + 7, BB + 11, BB + 15, 49, 51, 53, 55], 24)
    poll_tail("L_q_qp")
    stamp(4)
    sum4()
    A(f"v_add_f32 v{BB}, v{BB}, v{BB+2}\nv_add_f32 v{BB+1}, v{BB+1}, v{BB+3}\nv_cvt_pk_bf16_f32 v20, v{BB}, v{BB+1}")
    A("ds_write_b32 v23, v20")
    A("L_s_bar1:")
    A("s_waitcnt lgkmcnt(0)\ns_add_u32 s10, s11, 0x9e3779b9")
    A("s_barrier\ns_barrier")
    A(f"v_lshlrev_b32 v14, 2, v1\nv_and_b32 v14, 28, v14\nv_add_u32 v14, {L_FL}, v14\nv_mov_b32 v15, s11\nds_write_b32 v14, v15")
    if "c" in abl: A("s_branch L_s_wo")
    A(f"""s_cmp_lg_u32 s76, 4
s_cbranch_scc1 L_s_wo
s_cmp_eq_u32 s3, 6
s_cbranch_scc1 {"L_s_wo" if "g" in abl else "L_s_g4"}
s_cmp_lg_u32 s3, {99 if "k" in abl else 5}
s_cbranch_scc1 L_s_wo
v_mov_b32 v16, -1
v_mov_b32 v17, -1
v_mov_b32 v18, -1
v_mov_b32 v19, -1
s_lshl_b32 s13, s77, 13
s_add_u32 s13, s13, {WS_Y}
s_mul_i32 s14, s77, 3072
s_add_u32 s14, s14, {WS_OP}""")
    for i in range(8):
        A(f"buffer_store_dwordx4 v[16:19], v13, s[52:55], s13 offen offset:{(i&3)*1024} {cpol}" + ("\ns_addk_i32 s13, 0x1000" if i == 3 else ""))
    for i in range(3):
        A(f"buffer_store_dwordx4 v[16:19], v13, s[52:55], s14 offen offset:{i*1024} {cpol}")
    A(f"""v_cmp_gt_u32 vcc, 8, v1
v_cndmask_b32 v15, v31, v13, vcc
v_cmp_eq_u32 vcc, 0, v1
v_cndmask_b32 v14, v31, v1, vcc
s_lshl_b32 s13, s77, 7
s_add_u32 s13, s13, {WS_X1}
buffer_store_dwordx4 v[16:19], v15, s[52:55], s13 offen sc1""")
    srd(56, 40, 64, 128 if dbg else None)
    A(f"""v_mov_b32 v24, 1
s_waitcnt vmcnt(0)
buffer_store_byte v24, v14, s[56:59], s77 offen sc1
s_branch L_s_wo
L_s_g4:
v_lshlrev_b32 v14, 15, v3
v_lshl_add_u32 v14, v4, 10, v14
v_lshl_add_u32 v14, v5, 8, v14
s_and_b32 s13, s77, 28
s_lshl_b32 s13, s13, 10
s_lshr_b32 s14, s77, 5
s_lshl_b32 s14, s14, 6
s_add_u32 s13, s13, s14
s_and_b32 s14, s77, 3
s_lshl_b32 s14, s14, 4
s_add_u32 s13, s13, s14
s_add_u32 s13, s13, {WS_MP + 65536}
v_lshlrev_b32 v15, 12, v3
v_lshl_add_u32 v15, v5, 4, v15
v_cmp_eq_u32 vcc, 0, v4
v_cndmask_b32 v15, v31, v15, vcc
s_lshl_b32 s14, s77, 6
s_add_u32 s14, s14, {WS_G}
v_mov_b32 v24, s10
s_mov_b32 s70, {TMO}
L_s_g4p:
buffer_load_dwordx4 v[16:19], v14, s[52:55], s13 offen {gpol}
buffer_load_dwordx2 v[20:21], v14, s[52:55], s13 offen offset:128 {gpol}
s_waitcnt vmcnt(0)""")
    tagcheck([19, 21], 24)
    poll_tail("L_s_g4p", sleep=8)
    for c in ("row_ror:4", "row_ror:8"):
        for r in (16, 17, 18, 20): A(f"v_add_f32_dpp v{r}, v{r}, v{r} {c} row_mask:0xf bank_mask:0xf")
    A("""v_cvt_pk_bf16_f32 v16, v16, v17
v_cvt_pk_bf16_f32 v17, v18, v20
v_mov_b32 v18, s10
v_mov_b32 v19, s10
buffer_store_dwordx4 v[16:19], v15, s[52:55], s14 offen sc1""")
    A("L_s_wo:")
    A("s_load_dwordx2 s[24:25], s[0:1], 32")
    A(f"""v_lshlrev_b32 v14, 10, v3
v_lshl_add_u32 v14, v2, 4, v14
s_lshl_b32 s64, s6, 17
s_lshl_b32 s13, s12, 8
s_add_u32 s64, s64, s13
v_lshlrev_b32 v30, 4, v3
v_cmp_eq_u32 vcc, 0, v2
v_cndmask_b32 v30, v31, v30, vcc
s_lshl_b32 s74, s8, 18
s_lshl_b32 s13, s12, 16
s_add_u32 s74, s74, s13
s_lshl_b32 s13, s6, 2
s_add_u32 s13, s13, s9
s_lshl_b32 s13, s13, 6
s_add_u32 s74, s74, s13
s_add_u32 s74, s74, {WS_Y}
s_waitcnt vmcnt(0) lgkmcnt(0)""")
    if "w" in abl: A("s_branch L_s_now")
    srd(44, 24, 4096 * 1024)
    def wo_stage(i):
        A(f"ds_write_b128 v7, v[{W+4*i}:{W+4*i+3}] offset:{(i&7)*1024}")
        if i & 7 == 7:
            ks = i >> 3
            for tt in range(8):
                for jh in range(2):
                    d = W + (ks * 8 + tt) * 4 + jh * 2
                    A(f"ds_read_b64_tr_b16 v[{d}:{d+1}], v8 offset:{jh*1024+tt*32}")
    for i in range(32):
        if i >= SD:
            A(f"s_waitcnt vmcnt({SD-1})")
        A(f"buffer_load_dwordx4 v[{W+4*i}:{W+4*i+3}], v14, s[44:47], s64 offen {wpol}")
        if i < 31: A("s_addk_i32 s64, 0x1000")
        if i >= SD: wo_stage(i - SD)
    for i in range(max(0, 32 - SD), 32):
        A(f"s_waitcnt vmcnt({31 - i})")
        wo_stage(i)
    A("L_s_now:")
    stamp(5)
    if "f" in abl: A("s_branch L_s_noffn")
    W2 = 208
    A("s_cmp_lg_u32 s76, 1\ns_cbranch_scc1 L_s_noffn")
    A("s_load_dwordx4 s[28:31], s[0:1], 48")
    srd(44, 32, 1376 * 1024)
    A("s_lshl_b32 s64, s77, 15\ns_lshl_b32 s13, s12, 8\ns_add_u32 s64, s64, s13")
    for i in range(8):
        if i >= SF: A(f"s_waitcnt vmcnt({SF-1})")
        A(f"buffer_load_dwordx4 v[{W2+4*i}:{W2+4*i+3}], v14, s[44:47], s64 offen {tpol}\ns_addk_i32 s64, 0x1000")
    A(f"""v_lshrrev_b32 v9, 2, v1
v_mul_u32_u24 v9, 2752, v9
v_lshl_add_u32 v9, v5, 4, v9
s_and_b32 s13, s12, 1
s_mul_i32 s64, s13, {256*2752}
s_lshl_b32 s14, s77, 6
s_add_u32 s64, s64, s14
s_lshl_b32 s65, s12, 14
s_add_u32 s65, s65, {L_EXT}
s_waitcnt lgkmcnt(0)
s_cmp_lt_u32 s12, 2
s_cselect_b32 s44, s28, s30
s_cselect_b32 s45, s29, s31
s_mov_b32 s46, {512*2752:#x}""")
    for i in range(8):
        A(f"s_waitcnt vmcnt({7 - i})\nds_write_b128 v7, v[{W2+4*i}:{W2+4*i+3}] offset:{i*1024}")
    for tt in range(8):
        for jh in range(2):
            A(f"ds_read_b64_tr_b16 v[{W2+4*tt+2*jh}:{W2+4*tt+2*jh+1}], v8 offset:{jh*1024+tt*32}")
    for i in range(16):
        if i >= SF: A(f"s_waitcnt vmcnt({SF-1})")
        A(f"s_mov_b32 m0, s65\nbuffer_load_dwordx4 v9, s[44:47], s64 offen {fpol} lds\ns_add_u32 s64, s64, {16*2752:#x}\ns_addk_i32 s65, 0x400")
    A("L_s_noffn:")
    if "c" in abl or "l" in abl: A("s_branch L_s_noflag")
    A(f"""s_cmp_lg_u32 s3, 5
s_cbranch_scc1 L_s_noflag
s_mov_b32 s70, {TMO}
L_s_flag:
s_load_dwordx16 s[16:31], s[40:41], {128 if dbg else 0} glc
s_waitcnt lgkmcnt(0)
s_and_b64 s[16:17], s[16:17], s[18:19]
s_and_b64 s[20:21], s[20:21], s[22:23]
s_and_b64 s[24:25], s[24:25], s[26:27]
s_and_b64 s[28:29], s[28:29], s[30:31]
s_and_b64 s[16:17], s[16:17], s[20:21]
s_and_b64 s[24:25], s[24:25], s[28:29]
s_and_b64 s[16:17], s[16:17], s[24:25]
s_and_b32 s16, s16, s17
s_sub_u32 s70, s70, 1
s_cbranch_scc1 L_bail
s_cmp_lg_u32 s16, 0x01010101
s_cbranch_scc1 L_s_flag
L_s_noflag:""")
    A(f"""v_mul_u32_u24 v15, {OSTR}, v5
v_lshl_add_u32 v15, v3, 4, v15
v_add_u32 v15, {L_O}, v15
v_and_b32 v10, 1, v1
v_lshlrev_b32 v29, 4, v3
s_mov_b32 s13, {32*3072}
v_mul_lo_u32 v11, v10, s13
v_add_u32 v29, v29, v11
v_cmp_gt_u32 vcc, 2, v2
v_cndmask_b32 v29, v31, v29, vcc
s_mul_i32 s75, s12, {8*3072}
s_lshl_b32 s13, s77, 6
s_add_u32 s75, s75, s13
s_add_u32 s75, s75, {WS_OP}
v_lshlrev_b32 v28, 6, v10
v_lshl_add_u32 v28, v3, 4, v28
v_add_u32 v28, {L_HH}, v28
v_mov_b32 v20, {L_FL}
v_mov_b32 v21, s10
s_mov_b32 s70, {TMO*4}
s_waitcnt vmcnt(0) lgkmcnt(0)""")
    stamp(6)
    A("s_barrier")
    stamp(7)
    if "t" in abl: A("s_branch L_fin2")
    OB, DY = 192, 32
    for ks in range(4): A(f"ds_read_b128 v[{OB+4*ks}:{OB+4*ks+3}], v15 offset:{ks*64}")
    def ypost(tt):
        D = DY + 4 * tt
        ops = [f"v_add_f32_dpp v{D+r}, v{D+r}, v{D+r} quad_perm:[1,0,3,2] row_mask:0xf bank_mask:0xf" for r in range(4)]
        ops += [f"v_add_f32_dpp v{D+r}, v{D+r}, v{D+r} quad_perm:[2,3,0,1] row_mask:0xf bank_mask:0xf" for r in range(4)]
        ops += [f"buffer_store_dwordx4 v[{D}:{D+3}], v30, s[52:55], s74 offen sc1" + ("\ns_addk_i32 s74, 0x2000" if tt < 7 else "")]
        return ops
    for tt in range(8):
        D = DY + 4 * tt
        for ks in range(4):
            if tt == 0: A(f"s_waitcnt lgkmcnt({3-ks})")
            mfma32(D, W + (ks * 8 + tt) * 4, OB + 4 * ks, ks == 0)
            if tt >= 2:
                po = ypost(tt - 2)
                for o in po[2 * ks: 2 * ks + 2]: A(o)
                if ks == 3: A(po[8])
    for tt in (6, 7):
        for o in ypost(tt): A(o)
    stamp(8)
    A("s_cmp_lg_u32 s76, 1\ns_cbranch_scc1 L_fin2")
    A("""L_f2:
ds_read_b128 v[24:27], v20 offset:16
ds_read_b128 v[16:19], v28
s_waitcnt lgkmcnt(0)""")
    tagcheck([24, 25, 26, 27], 21)
    poll_tail("L_f2", sleep=1)
    stamp(9)
    for tt in range(8):
        mfma32(W + 4 * tt, W2 + 4 * tt, 16, True)
        if tt >= 3:
            A(f"buffer_store_dwordx4 v[{W+4*(tt-3)}:{W+4*(tt-3)+3}], v29, s[52:55], s75 offen sc1\ns_addk_i32 s75, 0xc00")
    for tt in range(5, 8):
        A(f"buffer_store_dwordx4 v[{W+4*tt}:{W+4*tt+3}], v29, s[52:55], s75 offen sc1\ns_addk_i32 s75, 0xc00")
    stamp(10)
    A("L_fin2:")
    finish()
    if diag:
        A("L_dump:")
        A("s_memrealtime s[78:79]\ns_waitcnt lgkmcnt(0)\ns_mov_b32 s91, s78")
        A("v_mov_b32 v8, 0")
        for i in range(12): A(f"v_writelane_b32 v8, s{80+i}, {i}")
        if dbg:
            A("""s_cmp_ge_u32 s3, 4
s_cbranch_scc1 L_bail
s_load_dwordx2 s[40:41], s[0:1], 96
s_not_b32 s12, s80
s_not_b32 s13, s85
s_cmp_eq_u32 s76, 4
s_cselect_b32 s14, s88, 0
s_cselect_b32 s15, s90, 0
v_mov_b32 v8, 0
v_writelane_b32 v8, s12, 0
v_writelane_b32 v8, s80, 1
v_writelane_b32 v8, s81, 2
v_writelane_b32 v8, s82, 3
v_writelane_b32 v8, s83, 4
v_writelane_b32 v8, s13, 5
v_writelane_b32 v8, s85, 6
v_writelane_b32 v8, s14, 7
v_writelane_b32 v8, s15, 8
v_writelane_b32 v8, s91, 9
s_waitcnt lgkmcnt(0)""")
            srd(56, 40, 40)
            A("v_lshlrev_b32 v9, 2, v1\nbuffer_atomic_umax v8, v9, s[56:59], 0 offen sc1")
        else:
            A(f"""s_lshl_b32 s12, s2, 3
s_add_u32 s12, s12, s3
s_lshl_b32 s12, s12, 8
s_add_u32 s12, s12, {WS_STAMP}
s_mov_b32 s54, 0x300000
v_lshlrev_b32 v9, 2, v1
buffer_store_dword v8, v9, s[52:55], s12 offen""")
    A("L_bail:\ns_endpgm")
    A.raw("L_codeend:")
    A.raw(f""".section .rodata,"a"
.p2align 6
.amdhsa_kernel {KNAME}
  .amdhsa_next_free_vgpr 256
  .amdhsa_next_free_sgpr 102
  .amdhsa_accum_offset 256
  .amdhsa_group_segment_fixed_size 0
  .amdhsa_kernarg_size 112
  .amdhsa_user_sgpr_count 2
  .amdhsa_user_sgpr_kernarg_segment_ptr 1
  .amdhsa_system_sgpr_workgroup_id_x 1
  .amdhsa_float_denorm_mode_32 3
.end_amdhsa_kernel""")
    return A.text()

if __name__ == "__main__":
    out = sys.argv[1]
    kw = json.loads(sys.argv[2]) if len(sys.argv) > 2 else {}
    open(out, "w").write(gen(**kw))
```

```python
import sys, json
sys.path.insert(0, "dev")
from asmlib import Asm

KNAME = "adaLN_cond__mha_block_cached__glu_gated_swiglu__decode_kernel"

WS_G, WS_X1, WS_ML, WS_QP, WS_QP8, WS_Y, WS_OP, WS_MP = 0x1000, 0x6000, 0x8000, 0x10000, 0x50000, 0x70000, 0xf0000, 0x150000
WS_END = 0x180000
WS_STAMP = 0x200000
OSTR = 272
LOG2E = 0x3fb8aa3b
SCALE = 0x3db504f3
EPS = 0x3727c5ac
OOB = 0x7ff00000
TMO = 1 << 18

def gen(R=48, X=28, CAP0=6, CAP=6, diag=False, NB=(128, 128, 128, 128), NBF=None, SD=3, SMD=8, SQ=16, FP=60, shr=3,
        dsleep=30, wpol="", fpol="nt", gpol="sc1", tpol="nt", kvpol="nt", prio=3, SF=3, abl="", bsleep=0, csleep=0, cpol="sc1", dbg=0, WUP=2, CAP2=None, SW=64):
    A = Asm()
    NBF = NBF or NB
    assert sum(NB) == 512 and sum(NBF) == 512
    VARS = sorted({(n - w + 3) // 4 for n in list(NB) + list(NBF) for w in range(4)})
    NS = (4 * max(VARS) + 15) // 16
    L_EXT = 32768
    SM = L_EXT + 4096 * X
    SM = max(SM, L_EXT + 65536)
    L_HL, L_SC, L_Q, L_HH, L_FL, L_O, L_DUM, L_H2 = SM, SM + 256, SM + 768, SM + 1024, SM + 1152, SM + 1184, SM + 2272, SM + 2784
    LDS_BYTES = L_H2 + 2048
    assert LDS_BYTES <= 163840

    def stamp(idx):
        if not diag: return
        A("s_memrealtime s[78:79]\ns_waitcnt lgkmcnt(0)")
        A(f"s_mov_b32 s{80+idx}, s78")
    def srd(d, base, nrec, off_lo=None):
        if off_lo is None:
            A(f"s_mov_b32 s{d}, s{base}\ns_mov_b32 s{d+1}, s{base+1}")
        else:
            A(f"s_add_u32 s{d}, s{base}, {off_lo}\ns_addc_u32 s{d+1}, s{base+1}, 0")
        A(f"s_mov_b32 s{d+2}, {nrec if isinstance(nrec, str) else hex(nrec)}\ns_mov_b32 s{d+3}, 0x20000")
    def finish():
        A("s_branch L_dump" if diag else "s_endpgm")
    def poll_tail(lbl, cnt="s70", sleep=0):
        A(f"s_sub_u32 {cnt}, {cnt}, 1\ns_cbranch_scc1 L_bail")
        if sleep:
            ok = A.newlabel("L_ok")
            A(f"s_cbranch_vccz {ok}\ns_sleep {sleep}\ns_branch {lbl}\n{ok}:")
        else:
            A(f"s_cbranch_vccnz {lbl}")
    def unpack(lo, hi, src):
        A(f"v_lshlrev_b32 v{lo}, 16, v{src}\nv_and_b32 v{hi}, 0xffff0000, v{src}")
    def allreduce(op, regs):
        for c in ("row_ror:8", "row_ror:4", "row_ror:2", "row_ror:1"):
            for r in regs:
                A(f"{op}_dpp v{r}, v{r}, v{r} {c} row_mask:0xf bank_mask:0xf")
        for r in regs:
            A(f"{op}_dpp v{r}, v{r}, v{r} row_bcast:15 row_mask:0xa bank_mask:0xf")
        for r in regs:
            A(f"{op}_dpp v{r}, v{r}, v{r} row_bcast:31 row_mask:0xc bank_mask:0xf")
    def mfma32(D, a, b, first):
        A(f"v_mfma_f32_16x16x32_bf16 v[{D}:{D+3}], v[{a}:{a+3}], v[{b}:{b+3}], " + ("0" if first else f"v[{D}:{D+3}]"))
    def tagcheck(regs, tagv):
        for i, rr in enumerate(regs):
            if i == 0: A(f"v_cmp_ne_u32 vcc, v{tagv}, v{rr}")
            else: A(f"v_cmp_ne_u32 s[66:67], v{tagv}, v{rr}\ns_or_b64 vcc, vcc, s[66:67]")
    def scalar_wait(lbl, soff, offs):
        A(f"s_add_u32 s96, s42, {soff}\ns_addc_u32 s97, s43, 0\ns_mov_b32 s71, 64")
        A(f"{lbl}:")
        for i, o in enumerate(offs): A(f"s_load_dword s{16+i}, s[96:97], {o} glc")
        A("s_waitcnt lgkmcnt(0)")
        for i in range(len(offs)): A(f"s_xor_b32 s{16+i}, s{16+i}, s10")
        for i in range(1, len(offs)): A(f"s_or_b32 s16, s16, s{16+i}")
        A(f"s_sub_u32 s71, s71, 1\ns_cbranch_scc1 {lbl}x\ns_cmp_lg_u32 s16, 0\ns_cbranch_scc1 {lbl}\n{lbl}x:")
    def roles():
        l = A.newlabel("L_role")
        A(f"""s_lshr_b32 s12, s2, 4
s_lshl_b32 s77, s4, 3
s_and_b32 s13, s12, 7
s_add_u32 s77, s77, s13
s_mov_b32 s72, s77
s_lshr_b32 s76, s12, 3
s_lshl_b32 s76, s76, 2
s_cmp_ge_u32 s9, 2
s_cbranch_scc1 {l}
s_lshl_b32 s72, s4, 4
s_add_u32 s72, s72, s12
s_add_u32 s72, s72, 64
s_lshr_b32 s77, s4, 1
s_mul_i32 s77, s77, 11
s_add_u32 s77, s77, s12
s_cmp_lt_u32 s77, 43
s_cselect_b32 s76, 1, 0
s_cmp_lt_u32 s12, 11
s_cselect_b32 s76, s76, 0
s_cmp_eq_u32 s9, 0
s_cselect_b32 s76, s76, 0
{l}:""")
    def layernorm8(X_, T, eps_s):
        X = X_
        A(f"""v_add_f32 v{T}, v{X}, v{X+1}
v_add_f32 v{T+1}, v{X+2}, v{X+3}
v_add_f32 v{T+2}, v{X+4}, v{X+5}
v_add_f32 v{T+3}, v{X+6}, v{X+7}
v_add_f32 v{T}, v{T}, v{T+1}
v_add_f32 v{T+2}, v{T+2}, v{T+3}
v_add_f32 v{T}, v{T}, v{T+2}""")
        allreduce("v_add_f32", [T])
        A(f"v_readlane_b32 s71, v{T}, 63")
        A(f"v_mov_b32 v{T+1}, 0x3b000000\nv_mul_f32 v{T}, s71, v{T+1}")
        A(f"v_cvt_pk_bf16_f32 v{T+2}, v{T}, v{T}")
        for k in range(8): A(f"v_sub_f32 v{T+4+k}, v{X+k}, v{T}")
        A(f"v_and_b32 v{T+2}, 0xffff0000, v{T+2}")
        A(f"v_mul_f32 v{T+3}, v{T+4}, v{T+4}\nv_mul_f32 v{T}, v{T+5}, v{T+5}")
        for k in range(2, 8, 2):
            A(f"v_fmac_f32 v{T+3}, v{T+4+k}, v{T+4+k}\nv_fmac_f32 v{T}, v{T+5+k}, v{T+5+k}")
        A(f"v_add_f32 v{T+3}, v{T+3}, v{T}")
        steps = ["row_ror:8 row_mask:0xf", "row_ror:4 row_mask:0xf", "row_ror:2 row_mask:0xf", "row_ror:1 row_mask:0xf", "row_bcast:15 row_mask:0xa", "row_bcast:31 row_mask:0xc"]
        fill = [f"v_sub_f32 v{X+k}, v{X+k}, v{T+2}" for k in range(8)] + [f"v_cvt_pk_bf16_f32 v{T+4+k}, v{X+2*k}, v{X+2*k+1}" for k in range(4)]
        for si, st in enumerate(steps):
            A(fill[2 * si]); A(fill[2 * si + 1])
            A(f"v_add_f32_dpp v{T+3}, v{T+3}, v{T+3} {st} bank_mask:0xf")
        unpack(X, X + 1, T + 4)
        A(f"v_readlane_b32 s71, v{T+3}, 63")
        unpack(X + 2, X + 3, T + 5)
        A(f"v_mul_f32 v{T}, s71, v{T+1}")
        unpack(X + 4, X + 5, T + 6)
        A(f"v_cvt_pk_bf16_f32 v{T}, v{T}, v{T}")
        unpack(X + 6, X + 7, T + 7)
        A(f"v_and_b32 v{T}, 0xffff0000, v{T}")
        A(f"v_add_f32 v{T}, {eps_s}, v{T}")
        A(f"v_cvt_pk_bf16_f32 v{T}, v{T}, v{T}\nv_and_b32 v{T}, 0xffff0000, v{T}")
        A(f"v_sqrt_f32 v{T}, v{T}")
        A(f"v_cvt_pk_bf16_f32 v{T}, v{T}, v{T}\nv_and_b32 v{T}, 0xffff0000, v{T}")
        A(f"v_rcp_f32 v{T}, v{T}")
        for k in range(8): A(f"v_mul_f32 v{X+k}, v{X+k}, v{T}")
        for k in range(4): A(f"v_cvt_pk_bf16_f32 v{T+4+k}, v{X+2*k}, v{X+2*k+1}")
        for k in range(4): unpack(X + 2 * k, X + 2 * k + 1, T + 4 + k)

    hdr = open("adaLN_cond__mha_block_cached__glu_gated_swiglu__decode.s.ref").read().split("\n")
    for l in hdr:
        if l.startswith("; @launch"): break
        A.raw(l)
    A.raw(f"; @launch grid=(256,1,1) block=(512,1,1) lds={LDS_BYTES}")
    A.raw('.amdgcn_target "amdgcn-amd-amdhsa--gfx950"\n.text')
    A.raw(f".globl {KNAME}\n.p2align 8\n.type {KNAME},@function\n{KNAME}:")
    A("s_cmp_ge_u32 s2, 256\ns_cbranch_scc1 L_bail")
    A("s_load_dwordx16 s[16:31], s[0:1], 0\ns_load_dwordx8 s[32:39], s[0:1], 64\ns_load_dwordx4 s[40:43], s[0:1], 96")
    if diag:
        for i in range(12): A(f"s_mov_b32 s{80+i}, 0")
        A("s_memrealtime s[78:79]")
    A("""v_and_b32 v1, 63, v0
v_lshrrev_b32 v2, 6, v0
v_readfirstlane_b32 s3, v2
s_and_b32 s4, s2, 7
s_lshr_b32 s5, s2, 3
s_lshr_b32 s8, s2, 7
s_lshr_b32 s6, s2, 4
s_and_b32 s6, s6, 7
s_lshl_b32 s6, s6, 2
s_bfe_u32 s7, s2, 0x20001
s_add_u32 s6, s6, s7
s_and_b32 s9, s5, 1
s_lshl_b32 s9, s9, 1
s_and_b32 s7, s2, 1
s_add_u32 s9, s9, s7
s_lshl_b32 s7, s8, 2
s_add_u32 s7, s7, s9
v_and_b32 v2, 15, v1
v_lshrrev_b32 v3, 4, v1
v_bfe_u32 v4, v1, 2, 2
v_and_b32 v5, 3, v1
s_cmp_ge_u32 s3, 4
s_cbranch_scc1 L_service""")
    RING = 256 - 4 * R
    QOP, MSK, DB, OA, SR = 8, 24, 28, 36, 40
    assert RING >= SR + NS
    VK, VV = 6, 7
    base = [0, NB[0], NB[0] + NB[1], NB[0] + NB[1] + NB[2]]
    basef = [0, NBF[0], NBF[0] + NBF[1], NBF[0] + NBF[1] + NBF[2]]
    A(f"""s_lshl_b32 s12, s3, 12
v_lshlrev_b32 v{VK}, 8, v4
v_lshl_add_u32 v{VK}, v3, 6, v{VK}
v_lshl_add_u32 v{VK}, v5, 4, v{VK}
v_add_u32 v{VK}, s12, v{VK}
v_lshlrev_b32 v{VV}, 4, v1
v_add_u32 v{VV}, s12, v{VV}
s_lshl_b32 s13, s2, 19
s_and_b32 s13, s13, 0xff800000
s_lshl_b32 s14, s6, 21
s_and_b32 s14, s14, 0x600000
s_add_u32 s13, s13, s14
s_lshr_b32 s12, s4, 1
s_mul_i32 s12, s12, 11
s_lshr_b32 s15, s2, 4
s_add_u32 s12, s12, s15
s_max_u32 s15, s15, 10
s_add_u32 s12, s12, s15
s_mov_b32 s14, {base[0] | base[1] << 16:#x}
s_mov_b32 s15, {base[2] | base[3] << 16:#x}
s_mov_b32 s75, {NB[0] | NB[1] << 8 | NB[2] << 16 | NB[3] << 24:#x}
s_lshr_b32 s64, s2, 4
s_cmp_lt_u32 s64, 11
s_cselect_b32 s12, s12, 99
s_cmp_lt_u32 s12, 53
s_cselect_b32 s14, {basef[0] | basef[1] << 16:#x}, s14
s_cselect_b32 s15, {basef[2] | basef[3] << 16:#x}, s15
s_cselect_b32 s75, {NBF[0] | NBF[1] << 8 | NBF[2] << 16 | NBF[3] << 24:#x}, s75
s_lshl_b32 s12, s9, 4
s_lshr_b64 s[14:15], s[14:15], s12
s_and_b32 s14, s14, 0xffff
s_lshl_b32 s14, s14, 12
s_add_u32 s13, s13, s14
s_lshl_b32 s12, s9, 3
s_lshr_b32 s75, s75, s12
s_and_b32 s75, s75, 0xff
s_lshl_b32 s74, s75, 12
s_mov_b32 s64, 0
s_mov_b32 s65, 0
s_waitcnt lgkmcnt(0)""")
    if diag: A("s_mov_b32 s80, s78")
    srd(44, 18, "s74", "s13")
    srd(48, 20, "s74", "s13")
    import copy
    class St: pass
    S = St()
    S.issued = []; S.known = 0; S.slot_of = {}; S.free = [RING + 4 * k for k in range(R)][::-1]
    S.n = R + X; S.l = R; S.done = None; S.NP = 4 * min(VARS)
    def kv_load(i, lds=False):
        NP = S.NP
        if not lds: S.slot_of[i] = S.free.pop()
        slot = S.slot_of.get(i)
        j = i % NP
        va, sr, so = (VK, 44, "s64") if i < NP else (VV, 48, "s65")
        if lds:
            if j & 3 == 0: A(f"s_add_u32 m0, s73, {(i - R) * 1024}")
            A(f"buffer_load_dwordx4 v{va}, s[{sr}:{sr+3}], {so} offen offset:{(j&3)*1024} {kvpol} lds")
        else:
            A(f"buffer_load_dwordx4 v[{slot}:{slot+3}], v{va}, s[{sr}:{sr+3}], {so} offen offset:{(j&3)*1024} {kvpol}")
        if j & 3 == 3: A(f"s_addk_i32 {so}, 0x4000")
        S.issued.append(i)
    def wait_out(n):
        if len(S.issued) - S.known > n:
            A(f"s_waitcnt vmcnt({n})")
            S.known = len(S.issued) - n
    def wait_piece(p):
        wait_out(len(S.issued) - 1 - S.issued.index(p))
    assert R % 4 == 0 and X % 4 == 0
    for i in range(CAP0): kv_load(i)
    A("s_load_dword s11, s[42:43], 0")
    A(f"""v_and_b32 v28, 1, v1
v_cmp_eq_u32 vcc, 1, v28
v_mov_b32 v29, 0xffff
v_mov_b32 v30, 0xffff0000
v_cndmask_b32 v29, v29, v30, vcc
v_lshrrev_b32 v28, 1, v2""")
    for r in range(4):
        A(f"v_cmp_eq_u32 vcc, {r}, v28\nv_cndmask_b32 v{MSK+r}, 0, v29, vcc")
    srd(52, 42, WS_END)
    roles()
    A(f"""v_lshrrev_b32 v37, 2, v2
v_lshlrev_b32 v36, 6, v3
v_lshl_add_u32 v36, v37, 4, v36
v_add_u32 v36, {L_Q}, v36
s_mul_i32 s73, s3, {X*1024}
s_add_u32 s73, s73, {L_EXT}
v_lshlrev_b32 v38, 4, v1
v_add_u32 v38, s73, v38
s_sub_u32 s75, s75, s3
s_add_u32 s75, s75, 3
s_lshr_b32 s75, s75, 2
v_mov_b32 v{SR+NS-1}, 0xff800000
v_mov_b32 v{SR+NS-2}, 0xff800000""")
    for i in range(CAP0, R + X):
        wait_out(CAP0 - 1)
        kv_load(i, lds=(i >= R))
    A("s_waitcnt lgkmcnt(0)")
    A("s_add_u32 s10, s11, 0x9e3779b9")
    stamp(1)
    A("s_barrier")
    stamp(2)
    A(f"ds_read_b128 v[{DB}:{DB+3}], v36")
    A("s_waitcnt lgkmcnt(0)")
    for t in range(4):
        A(f"v_cmp_eq_u32 vcc, {t}, v5")
        for r in range(4): A(f"v_cndmask_b32 v{QOP+4*t+r}, 0, v{DB+r}, vcc")
    def post_ops(G):
        u = G & 3; Sg = SR + (G >> 2); D = DB + 4 * (G & 1)
        ops = [f"v_mov_b32_dpp v{Sg}, v{D+u} quad_perm:[0,1,2,3] row_mask:0xf bank_mask:{1<<u:#x}"]
        for b in range(4):
            if b == u: continue
            ops.append(f"v_add_f32_dpp v{Sg}, v{D+b}, v{Sg} row_ror:{4 * ((u - b) % 4)} row_mask:0xf bank_mask:{1<<u:#x}")
        return ops
    def cap(c):
        return CAP2 if (CAP2 and c >= S.NP + SW) else CAP
    def prefill(c):
        while S.n < 2 * S.NP and S.n - c <= cap(c) and S.free:
            wait_out(cap(c) - 1)
            kv_load(S.n)
            S.n += 1
            S.done = c
    def refill(c):
        S.free.append(S.slot_of[c])
        if S.done == c: return
        if S.n < 2 * S.NP and (S.n - c <= CAP or c % shr == shr - 1):
            wait_out(CAP - 1)
            kv_load(S.n)
            S.n += 1
        elif S.l < R + X and len(S.free) >= 2:
            p = S.l; slot = S.slot_of[p] = S.free.pop(0)
            wait_piece(p)
            A(f"ds_read_b128 v[{slot}:{slot+3}], v38 offset:{(p-R)*1024}")
            S.l = p + 1
    def k_step(i):
        slot = S.slot_of[i]
        G = i >> 2; t = i & 3; D = DB + 4 * (G & 1)
        if i == R: A("s_waitcnt lgkmcnt(0)\ns_barrier"); assert S.l == R + X
        wait_piece(i)
        prefill(i)
        mfma32(D, slot, QOP + 4 * t, t == 0)
        po = post_ops(G - 1) if (G > 0 and t >= 2) else None
        if po: A(po[2 * (t - 2)])
        refill(i)
        if po: A(po[2 * (t - 2) + 1])
    ic = 0
    while S.n < S.NP - 1:
        k_step(ic); ic += 1
    assert ic > R
    for v in VARS[1:]:
        A(f"s_cmp_eq_u32 s75, {v}\ns_cbranch_scc1 L_var{v}")
    snap = copy.deepcopy(S.__dict__); hist = list(A.hist)
    T0 = 8; AB = 8
    def sel(i):
        P = SR + (i >> 4); c = i & 15; a = AB + 4 * (i & 1)
        for r in range(4):
            A(f"v_and_b32_dpp v{a+r}, v{P}, v{MSK+r} row_newbcast:{c} row_mask:0xf bank_mask:0xf")
    def ml_loads(hf):
        A(f"""s_load_dwordx16 s[16:31], s[96:97], {hf*128} glc
s_load_dwordx8 s[32:39], s[96:97], {hf*128+64} glc
s_load_dwordx8 s[56:63], s[96:97], {hf*128+96} glc""")
    for v in VARS:
        S.__dict__.update(copy.deepcopy(snap)); A.hist = list(hist)
        NP = S.NP = 4 * v
        ns = (NP + 15) // 16
        A(f"L_var{v}:")
        for i in range(ic, NP): k_step(i)
        for o in post_ops(NP // 4 - 1): A(o)
        stamp(3)
        A(f"s_mov_b32 s12, {SCALE:#x}\ns_mov_b32 s13, {LOG2E:#x}")
        def round_pairs():
            for k in range(0, ns, 2):
                A(f"v_cvt_pk_bf16_f32 v{T0+k//2}, v{SR+k}, v{SR+min(k+1, ns-1)}")
            for k in range(0, ns, 2):
                if k + 1 < ns: unpack(SR + k, SR + k + 1, T0 + k // 2)
                else: A(f"v_lshlrev_b32 v{SR+k}, 16, v{T0+k//2}")
        round_pairs()
        for k in range(ns): A(f"v_mul_f32 v{SR+k}, s12, v{SR+k}")
        round_pairs()
        A(f"v_max3_f32 v{T0}, v{SR}, v{SR+1}, v{SR+2}\nv_max3_f32 v{T0+1}, v{SR+3}, v{SR+4}, v{SR+5}\nv_max3_f32 v{T0}, v{T0}, v{SR+6}, v{SR+7}")
        if ns > 8: A(f"v_max_f32 v{T0+1}, v{T0+1}, v{SR+8}")
        A(f"v_max_f32 v{T0}, v{T0}, v{T0+1}")
        allreduce("v_max_f32", [T0])
        A(f"v_readlane_b32 s73, v{T0}, 63")
        for k in range(ns): A(f"v_subrev_f32 v{SR+k}, s73, v{SR+k}")
        for k in range(ns): A(f"v_mul_f32 v{SR+k}, s13, v{SR+k}")
        for k in range(ns): A(f"v_exp_f32 v{SR+k}, v{SR+k}")
        A(f"""v_add_f32 v{T0}, v{SR}, v{SR+1}
v_add_f32 v{T0+1}, v{SR+2}, v{SR+3}
v_add_f32 v{T0+2}, v{SR+4}, v{SR+5}
v_add_f32 v{T0+3}, v{SR+6}, v{SR+7}
v_add_f32 v{T0}, v{T0}, v{T0+1}
v_add_f32 v{T0+2}, v{T0+2}, v{T0+3}""")
        if ns > 8: A(f"v_add_f32 v{T0}, v{T0}, v{SR+8}")
        A(f"v_add_f32 v18, v{T0}, v{T0+2}")
        for k in range(ns): A(f"v_cvt_pk_bf16_f32 v{SR+k}, v{SR+k}, v{SR+k}")
        allreduce("v_add_f32", [18])
        A(f"""v_mov_b32 v16, s73
v_mov_b32 v17, s10
v_mov_b32 v19, s10
s_lshl_b32 s12, s8, 5
s_add_u32 s12, s12, s6
s_lshl_b32 s12, s12, 8
s_add_u32 s12, s12, {WS_ML}
s_add_u32 s96, s42, s12
s_addc_u32 s97, s43, 0
s_lshl_b32 s13, s9, 6
s_add_u32 s12, s12, s13
s_lshl_b32 s13, s3, 4
s_add_u32 s12, s12, s13
v_mov_b32 v20, {OOB:#x}
v_mov_b32 v21, 0
v_cmp_eq_u32 vcc, 63, v1
v_cndmask_b32 v20, v20, v21, vcc
v_lshlrev_b32 v22, 3, v1
v_add_u32 v22, {L_DUM}, v22
buffer_store_dwordx4 v[16:19], v20, s[52:55], s12 offen sc1""")
        S.issued.append("ml")
        A(f"""s_mul_i32 s12, s3, {OSTR}
s_add_u32 s12, s12, {L_O}
v_lshlrev_b32 v28, 4, v2
v_lshl_add_u32 v28, v3, 3, v28
v_add_u32 v28, s12, v28
v_cmp_gt_u32 vcc, 32, v1
v_cndmask_b32 v28, v22, v28, vcc""")
        stamp(4)
        sel(0)
        for i in range(NP):
            gi = NP + i
            slot = S.slot_of[gi]; a = AB + 4 * (i & 1)
            wait_piece(gi)
            prefill(gi)
            mfma32(OA, a, slot, i == 0)
            if i < NP - 1: sel(i + 1)
            refill(gi)
            if i == NP - FP:
                A(f"s_mov_b32 s70, {TMO}\ns_mov_b32 s13, {LOG2E:#x}\nv_mov_b32 v30, s73\nv_mov_b32 v31, 0")
                ml_loads(0)
            if i in (NP - FP + 16, NP - FP + 32):
                hf = 0 if i == NP - FP + 16 else 1
                regs = [16, 20, 24, 28, 32, 36, 56, 60]
                A(f"s_branch L_fchk{hf}_{v}\nL_fpoll{hf}_{v}:")
                ml_loads(hf)
                A(f"L_fchk{hf}_{v}:\ns_waitcnt lgkmcnt(0)\ns_mov_b32 s12, 0")
                for g in regs:
                    A(f"s_xor_b32 s14, s{g+1}, s10\ns_or_b32 s12, s12, s14\ns_xor_b32 s14, s{g+3}, s10\ns_or_b32 s12, s12, s14")
                A(f"s_sub_u32 s70, s70, 1\ns_cbranch_scc1 L_bail\ns_cmp_lg_u32 s12, 0\ns_cbranch_scc1 L_fpoll{hf}_{v}")
                A("v_mov_b32 v29, v30")
                for g in regs: A(f"v_max_f32 v30, s{g}, v30")
                A("v_sub_f32 v29, v29, v30")
                for k, g in enumerate(regs): A(f"v_sub_f32 v{16+k}, s{g}, v30")
                A("v_mul_f32 v29, s13, v29")
                for k in range(8): A(f"v_mul_f32 v{16+k}, s13, v{16+k}")
                A("v_exp_f32 v29, v29")
                for k in range(8): A(f"v_exp_f32 v{16+k}, v{16+k}")
                A("v_mul_f32 v31, v31, v29")
                for k, g in enumerate(regs): A(f"v_fmac_f32 v31, s{g+2}, v{16+k}")
                if hf == 0:
                    ml_loads(1)
                else:
                    A("""v_sub_f32 v30, s73, v30
v_rcp_f32 v31, v31
v_mul_f32 v30, s13, v30
v_exp_f32 v30, v30
s_load_dwordx2 s[16:17], s[0:1], 0
s_load_dwordx2 s[38:39], s[0:1], 88
v_mul_f32 v30, v30, v31""")
        for r in range(4): A(f"v_mul_f32 v{OA+r}, v30, v{OA+r}")
        A(f"v_cvt_pk_bf16_f32 v32, v{OA}, v{OA+1}\nv_cvt_pk_bf16_f32 v33, v{OA+2}, v{OA+3}")
        A("ds_write_b64 v28, v[32:33]")
        if v != VARS[-1]: A("s_branch L_vdone")
    A("L_vdone:\ns_waitcnt lgkmcnt(0)")
    stamp(5)
    A("s_barrier")
    stamp(6)
    if "t" in abl: A("s_branch L_fin")
    A("""s_cmp_eq_u32 s76, 4
s_cbranch_scc1 L_stepB
s_cmp_lg_u32 s76, 1
s_cbranch_scc1 L_fin""")
    WA = [64 + 4 * k for k in range(16)]; HB = [128 + 4 * k for k in range(16)]
    SB, C1, XX = 16, 24, 32
    A(f"""v_lshlrev_b32 v9, 9, v3
v_lshl_add_u32 v9, v4, 6, v9
v_and_b32 v11, 1, v1
v_lshl_add_u32 v9, v11, 3, v9
v_lshrrev_b32 v10, 1, v5
v_lshl_add_u32 v9, v10, 15, v9
s_lshl_b32 s12, s3, 4
s_add_u32 s14, s12, {L_EXT}
v_add_u32 v9, s14, v9""")
    for ks in range(16):
        for jh in range(2):
            A(f"ds_read_b64_tr_b16 v[{WA[ks]+2*jh}:{WA[ks]+2*jh+1}], v9 offset:{ks*2048+jh*256}")
    A(f"""v_mov_b32 v57, s10
v_lshlrev_b32 v12, 10, v11
v_lshl_add_u32 v12, v3, 4, v12
v_add_u32 v12, {L_H2}, v12
v_lshlrev_b32 v13, 6, v11
v_and_b32 v14, 1, v3
v_lshl_add_u32 v13, v14, 3, v13
v_lshrrev_b32 v14, 1, v3
v_lshl_add_u32 v13, v14, 2, v13
s_add_u32 s12, s12, {L_HH}
v_add_u32 v13, s12, v13
v_lshlrev_b32 v14, 2, v1
v_add_u32 v14, {L_DUM}, v14
v_cmp_gt_u32 vcc, 2, v2
v_cndmask_b32 v13, v14, v13, vcc
s_mov_b32 s68, {EPS:#x}
s_mov_b32 s69, {LOG2E:#x}
s_mov_b32 s70, {TMO*4}
v_mov_b32 v15, {L_FL}
s_lshl_b32 s12, s3, 2
s_add_u32 s12, s12, {L_FL}
v_mov_b32 v56, s12
s_sub_u32 s13, s3, 1
s_cmp_ge_u32 s13, 2
s_cbranch_scc1 L_c_h2s
s_lshl_b32 s14, s13, 11
s_add_u32 s14, s14, {WS_G + 4096}
s_add_u32 s15, s14, 4096
v_lshlrev_b32 v8, 5, v1
L_c_sbcb:""")
    for k, (so, of) in enumerate((("s14", 0), ("s14", 16), ("s15", 0), ("s15", 16))):
        A(f"buffer_load_dwordx4 v[{40+4*k}:{43+4*k}], v8, s[52:55], {so} offen offset:{of} sc1")
    A("s_waitcnt vmcnt(0)")
    tagcheck([42, 43, 46, 47, 50, 51, 54, 55], 57)
    poll_tail("L_c_sbcb", sleep=1)
    for k, rr in enumerate((40, 41, 44, 45)): unpack(SB + 2 * k, SB + 2 * k + 1, rr)
    for k, rr in enumerate((48, 49, 52, 53)): unpack(C1 + 2 * k, C1 + 2 * k + 1, rr)
    for k in range(8): A(f"v_add_f32 v{C1+k}, 1.0, v{C1+k}")
    for k in range(4): A(f"v_cvt_pk_bf16_f32 v{40+k}, v{C1+2*k}, v{C1+2*k+1}")
    for k in range(4): unpack(C1 + 2 * k, C1 + 2 * k + 1, 40 + k)
    A(f"""s_lshl_b32 s14, s13, 10
s_add_u32 s15, s14, {L_H2}
s_lshl_b32 s14, s13, 12
s_add_u32 s14, s14, {WS_X1}
v_lshlrev_b32 v8, 4, v1
v_add_u32 v10, s15, v8
v_lshrrev_b32 v8, 1, v1
v_lshlrev_b32 v8, 7, v8
v_lshl_add_u32 v8, v11, 5, v8
s_mov_b32 s12, 0x05040100
s_waitcnt lgkmcnt(0)""")
    stamp(7)
    A("L_c_x1:")
    A(f"buffer_load_dwordx4 v[{XX}:{XX+3}], v8, s[52:55], s14 offen sc1\nbuffer_load_dwordx4 v[{XX+4}:{XX+7}], v8, s[52:55], s14 offen offset:16 sc1\ns_waitcnt vmcnt(0)")
    for k in range(4): A(f"v_perm_b32 v{40+k}, v{XX+2*k+1}, v{XX+2*k}, s12")
    for k in range(4): A(f"v_sad_u8 v44, v{40+k}, v57, {'0' if k == 0 else 'v44'}")
    A("v_cmp_ne_u32 vcc, 0, v44")
    poll_tail("L_c_x1", sleep=csleep)
    stamp(8)
    for k in range(8): A(f"v_and_b32 v{XX+k}, 0xffff0000, v{XX+k}")
    layernorm8(XX, 44, "s68")
    for k in range(8): A(f"v_mul_f32 v{XX+k}, v{XX+k}, v{C1+k}")
    for k in range(4): A(f"v_cvt_pk_bf16_f32 v{44+k}, v{XX+2*k}, v{XX+2*k+1}")
    for k in range(4): unpack(XX + 2 * k, XX + 2 * k + 1, 44 + k)
    for k in range(8): A(f"v_add_f32 v{XX+k}, v{XX+k}, v{SB+k}")
    for k in range(4): A(f"v_cvt_pk_bf16_f32 v{44+k}, v{XX+2*k}, v{XX+2*k+1}")
    A("ds_write_b128 v10, v[44:47]\nds_write_b32 v56, v57\ns_branch L_c_h2")
    A("L_c_h2s:\ns_sleep 1")
    A("L_c_h2:\nds_read2_b32 v[44:45], v15 offset0:1 offset1:2\ns_waitcnt lgkmcnt(0)")
    tagcheck([44, 45], 57)
    poll_tail("L_c_h2s")
    for ks in range(16): A(f"ds_read_b128 v[{HB[ks]}:{HB[ks]+3}], v12 offset:{ks*64}")
    for ks in range(16):
        A(f"s_waitcnt lgkmcnt({15-ks})")
        mfma32(40, WA[ks], HB[ks], ks == 0)
    A("v_permlane32_swap_b32 v40, v42\nv_permlane32_swap_b32 v41, v43")
    A("v_cvt_pk_bf16_f32 v44, v40, v41\nv_cvt_pk_bf16_f32 v45, v42, v43")
    unpack(40, 41, 44); unpack(42, 43, 45)
    A("""v_mul_f32 v44, s69, v40
v_mul_f32 v45, s69, v41
v_exp_f32 v44, -v44
v_exp_f32 v45, -v45
v_add_f32 v44, 1.0, v44
v_add_f32 v45, 1.0, v45
v_rcp_f32 v44, v44
v_rcp_f32 v45, v45
v_mul_f32 v40, v40, v44
v_mul_f32 v41, v41, v45
v_cvt_pk_bf16_f32 v44, v40, v41""")
    unpack(40, 41, 44)
    A("""v_mul_f32 v40, v40, v42
v_mul_f32 v41, v41, v43
v_cvt_pk_bf16_f32 v44, v40, v41
ds_write_b32 v13, v44
ds_write_b32 v56, v57 offset:16""")
    stamp(9)
    A("L_fin:")
    finish()
    A("L_stepB:")
    A("s_cmp_lg_u32 s3, 0\ns_cbranch_scc1 L_fin")
    srd(56, 16, 2048)
    srd(60, 38, 2048)
    A(f"""s_lshl_b32 s14, s77, 6
s_add_u32 s14, s14, {WS_G}
s_add_u32 s13, s14, {3*4096}
s_lshl_b32 s15, s77, 5
s_lshl_b32 s72, s77, 13
s_add_u32 s72, s72, {WS_Y}
s_add_u32 s75, s72, 4096
s_lshl_b32 s73, s77, 7
s_add_u32 s73, s73, {WS_X1}
s_mul_i32 s74, s77, 3072
s_add_u32 s74, s74, {WS_OP}
v_lshlrev_b32 v8, 4, v5
v_lshlrev_b32 v9, 4, v1
v_lshlrev_b32 v12, 3, v5
v_lshl_add_u32 v13, v3, 1, v12
v_mov_b32 v10, {OOB:#x}
v_cmp_gt_u32 vcc, 44, v1
v_cndmask_b32 v14, v10, v9, vcc
v_cmp_gt_u32 vcc, 4, v1
v_cndmask_b32 v12, v10, v12, vcc
v_cmp_eq_u32 vcc, 0, v1
v_cndmask_b32 v10, v10, v1, vcc
v_mov_b32 v11, s10
v_and_b32 v15, 1, v3
v_lshlrev_b32 v15, 4, v15
v_sub_u32 v15, 16, v15
s_mov_b32 s12, 0x03020706
s_mov_b32 s68, 0x0c0c0400
v_and_b32 v38, 0xffff, v11
v_lshrrev_b32 v39, 16, v11
v_cmp_gt_u32 vcc, 44, v1
v_cndmask_b32 v40, 0, v38, vcc
v_cndmask_b32 v41, 0, v39, vcc
v_mov_b32 v42, 0xffff0000
v_cmp_eq_u32 vcc, 16, v15
v_cndmask_b32 v43, v39, v38, vcc
v_lshlrev_b32 v44, 1, v12
v_max_u32 v44, v44, v12
s_mov_b32 s70, {TMO}
buffer_load_ushort v16, v13, s[56:59], s15 offen""")
    A("L_b_ga:")
    A("buffer_load_dwordx4 v[20:23], v8, s[52:55], s14 offen sc1\nbuffer_load_dwordx4 v[24:27], v8, s[52:55], s13 offen sc1\ns_waitcnt vmcnt(0)")
    tagcheck([22, 23, 26, 27], 11)
    poll_tail("L_b_ga", sleep=1)
    A("""v_cmp_gt_u32 vcc, 32, v1
v_cndmask_b32 v17, v21, v20, vcc
v_cndmask_b32 v18, v25, v24, vcc
v_lshlrev_b32 v17, v15, v17
v_lshlrev_b32 v18, v15, v18
v_and_b32 v17, 0xffff0000, v17
v_and_b32 v18, 0xffff0000, v18
v_lshlrev_b32 v16, 16, v16""")
    A(f"s_mov_b32 s70, {TMO}")
    def gatherN(lbl, n, so0, so1, lastv):
        A(f"{lbl}:")
        for i in range(n):
            A(f"buffer_load_dwordx4 v[{64+4*i}:{67+4*i}], v{lastv if i == n - 1 else 9}, s[52:55], {so0 if i < 4 else so1} offen offset:{(i&3)*1024} sc1")
        for i in range(n):
            r = 64 + 4 * i
            lo, hi = (40, 41) if (i == n - 1 and lastv != 9) else (38, 39)
            A(f"s_waitcnt vmcnt({n-1-i})")
            A(f"v_perm_b32 v36, v{r+1}, v{r}, s68\nv_perm_b32 v37, v{r+3}, v{r+2}, s68")
            if i: A(f"v_add_f32 v32, v{64 if i == 1 else 32}, v{r}\nv_add_f32 v33, v{65 if i == 1 else 33}, v{r+1}")
            A(f"v_sad_u8 v28, v36, v{lo}, {'0' if i == 0 else 'v28'}")
            if i: A(f"v_add_f32 v34, v{66 if i == 1 else 34}, v{r+2}\nv_add_f32 v35, v{67 if i == 1 else 35}, v{r+3}")
            A(f"v_sad_u8 v28, v37, v{hi}, v28")
        A("v_cmp_ne_u32 vcc, 0, v28")
        poll_tail(lbl, sleep=bsleep)
    def red16(G, Xr):
        A("""v_permlane32_swap_b32 v32, v34
v_permlane32_swap_b32 v33, v35
v_add_f32 v32, v32, v34
v_add_f32 v33, v33, v35
v_permlane16_swap_b32 v32, v33
v_add_f32 v32, v32, v33
v_add_f32_dpp v32, v32, v32 row_ror:4 row_mask:0xf bank_mask:0xf
v_add_f32_dpp v32, v32, v32 row_ror:8 row_mask:0xf bank_mask:0xf
v_cvt_pk_bf16_f32 v32, v32, v32
v_and_b32 v32, 0xffff0000, v32""")
        A(f"""v_mul_f32 v32, v32, v{G}
v_cvt_pk_bf16_f32 v32, v32, v32
v_and_b32 v32, 0xffff0000, v32
v_add_f32 v32, v32, v{Xr}
v_cvt_pk_bf16_f32 v30, v32, v32""")
    stamp(7)
    gatherN("L_b_y", 8, "s72", "s75", 9)
    stamp(8)
    red16(17, 16)
    A("""v_bfi_b32 v32, v42, v30, v43
v_bfi_b32 v33, v42, v30, v43
v_permlane16_swap_b32 v32, v33
v_mov_b32 v34, v32
v_mov_b32 v35, v33
v_permlane32_swap_b32 v32, v34
v_permlane32_swap_b32 v33, v35
buffer_store_dwordx4 v[32:35], v44, s[52:55], s73 offen sc1""")
    stamp(9)
    A("v_and_b32 v16, 0xffff0000, v30")
    A(f"s_mov_b32 s70, {TMO}")
    if dsleep: A(f"s_sleep {dsleep}")
    gatherN("L_d_op", 3, "s74", "s74", 14)
    stamp(10)
    red16(18, 16)
    A("""v_mov_b32 v32, v30
v_mov_b32 v33, v30
v_permlane16_swap_b32 v32, v33
v_perm_b32 v32, v32, v33, s12
v_mov_b32 v33, v32
v_permlane32_swap_b32 v32, v33""")
    A("buffer_store_dwordx2 v[32:33], v12, s[60:63], s15 offen")
    A("s_cmp_lg_u32 s77, 0\ns_cbranch_scc1 L_fin3")
    A("buffer_store_dword v11, v10, s[52:55], 0 offen sc1")
    A("L_fin3:")
    finish()
    A("L_service:")
    if prio: A(f"s_setprio {prio}")
    W, TT, BB = 64, 192, 32
    roles()
    A(f"""s_sub_u32 s12, s3, 4
s_lshl_b32 s13, s12, 13
v_lshlrev_b32 v13, 4, v1
v_add_u32 v7, s13, v13
v_lshlrev_b32 v8, 11, v3
v_lshl_add_u32 v8, v4, 8, v8
v_lshl_add_u32 v8, v5, 3, v8
v_add_u32 v8, s13, v8
v_mov_b32 v31, {OOB:#x}
s_mov_b32 s68, {EPS:#x}
s_mov_b32 s69, {LOG2E:#x}
s_waitcnt lgkmcnt(0)""")
    if diag: A("s_mov_b32 s80, s78")
    A("s_load_dword s11, s[42:43], 0")
    srd(52, 42, WS_END)
    if "q" in abl: A("s_cmp_eq_u32 s3, 4\ns_cbranch_scc1 L_s_bar1")
    if "u" in abl: A("s_cmp_eq_u32 s3, 7\ns_cbranch_scc1 L_s_bar1")
    A("""s_cmp_eq_u32 s3, 4
s_cbranch_scc1 L_s_q
s_cmp_eq_u32 s3, 5
s_cbranch_scc1 L_s_warm
s_cmp_eq_u32 s3, 6
s_cbranch_scc1 L_s_bar1
s_cmp_eq_u32 s76, 4
s_cbranch_scc1 L_s_bar1""")
    srd(48, 36, 512 * 6144)
    srd(60, 34, 2048)
    A(f"""s_lshr_b32 s13, s72, 2
s_and_b32 s14, s72, 3
s_lshl_b32 s65, s13, 7
s_mul_i32 s64, s14, {128*6144}
s_add_u32 s65, s65, s64
s_lshl_b32 s64, s14, 8
v_lshrrev_b32 v9, 3, v1
v_mul_u32_u24 v9, 6144, v9
v_and_b32 v11, 7, v1
v_lshl_add_u32 v9, v11, 4, v9
v_lshrrev_b32 v11, 5, v1
v_and_b32 v12, 31, v1
v_lshlrev_b32 v12, 3, v12
v_lshl_add_u32 v14, v11, 10, v12
buffer_load_dwordx2 v[16:17], v14, s[60:63], s64 offen""")
    for i in range(16):
        if i >= SMD: A(f"s_waitcnt vmcnt({SMD-1})")
        A(f"buffer_load_dwordx4 v[{TT+4*i}:{TT+4*i+3}], v9, s[48:51], s65 offen {tpol}")
        if i < 15: A(f"s_add_u32 s65, s65, {8*6144:#x}")
        if i == min(SMD, 16) - 1:
            A(f"""v_lshl_add_u32 v15, v11, 8, v12
v_add_u32 v15, {L_SC}, v15
v_lshlrev_b32 v11, 10, v3
v_lshl_add_u32 v11, v4, 7, v11
v_lshl_add_u32 v11, v5, 3, v11
v_add_u32 v11, {3*8192}, v11
v_and_b32 v28, 1, v4
v_lshlrev_b32 v12, 8, v28
v_lshl_add_u32 v12, v3, 4, v12
v_add_u32 v12, {L_SC}, v12
s_waitcnt vmcnt({i+1})""")
            unpack(20, 21, 16); unpack(22, 23, 17)
            for k in range(4): A(f"v_mul_f32 v{24+k}, s69, v{20+k}")
            for k in range(4): A(f"v_exp_f32 v{24+k}, -v{24+k}")
            for k in range(4): A(f"v_add_f32 v{24+k}, 1.0, v{24+k}")
            for k in range(4): A(f"v_rcp_f32 v{24+k}, v{24+k}")
            for k in range(4): A(f"v_mul_f32 v{20+k}, v{20+k}, v{24+k}")
            A("v_cvt_pk_bf16_f32 v16, v20, v21\nv_cvt_pk_bf16_f32 v17, v22, v23\nds_write_b64 v15, v[16:17]")
            for ks in range(4): A(f"ds_read_b128 v[{BB+4*ks}:{BB+4*ks+3}], v12 offset:{ks*64}")
    for ks in range(4):
        for i in range(4 * ks, 4 * ks + 4):
            A(f"s_waitcnt vmcnt({15 - i})")
            A(f"ds_write_b128 v7, v[{TT+4*i}:{TT+4*i+3}] offset:{(i&7)*1024}")
        for tt in range(4):
            for jh in range(2):
                d = TT + (ks * 4 + tt) * 4 + jh * 2
                A(f"ds_read_b64_tr_b16 v[{d}:{d+1}], v11 offset:{(ks&1)*4096+jh*512+tt*32}")
    for ks in range(4):
        A(f"s_waitcnt lgkmcnt({0 if ks == 3 else 12})")
        for tt in range(4): mfma32(48 + 4 * tt, TT + (ks * 4 + tt) * 4, BB + 4 * ks, ks == 0)
    A("s_add_u32 s10, s11, 0x9e3779b9")
    for tt in range(1, 4):
        A(f"v_cmp_eq_u32 vcc, {tt}, v5")
        for r in range(4): A(f"v_cndmask_b32 v{48+r}, v{48+r}, v{48+4*tt+r}, vcc")
    A(f"""v_cmp_gt_u32 vcc, 8, v2
v_mov_b32 v52, s10
v_cndmask_b32 v48, v51, v48, vcc
v_cndmask_b32 v49, v52, v49, vcc
v_cndmask_b32 v50, v52, v50, vcc
v_mov_b32 v51, s10
s_lshl_b32 s13, s72, 10
s_add_u32 s13, s13, {WS_MP}
buffer_store_dwordx4 v[48:51], v13, s[52:55], s13 offen sc1""")
    stamp(1)
    A("s_branch L_s_bar1")
    A(f"""L_s_warm:
s_getpc_b64 s[66:67]
L_pc:
s_sub_u32 s66, s66, L_pc-{KNAME}
s_subb_u32 s67, s67, 0
s_mul_i32 s13, s5, {WUP*1024}
v_add_u32 v14, s13, v13""")
    for k in range(WUP):
        A(f"v_min_u32 v15, L_codeend-{KNAME}-16, v14\nglobal_load_dwordx4 v[20:23], v15, s[66:67]\nv_add_u32 v14, 1024, v14")
    A("s_branch L_s_bar1")
    A("L_s_q:")
    srd(44, 22, 512 * 8192)
    srd(56, 16, 2048)
    A(f"""v_lshlrev_b32 v6, 13, v3
v_lshl_add_u32 v6, v2, 4, v6
s_lshl_b32 s64, s6, 8
s_lshl_b32 s13, s7, 19
s_add_u32 s64, s64, s13
buffer_load_dwordx4 v[24:27], v13, s[56:59], 0 offen
buffer_load_dwordx4 v[28:31], v13, s[56:59], 0 offen offset:1024""")
    for i in range(16):
        if i >= SQ: A(f"s_waitcnt vmcnt({SQ-1})")
        A(f"buffer_load_dwordx4 v[{W+4*i}:{W+4*i+3}], v6, s[44:47], s64 offen {tpol}")
        if i < 15: A("s_add_u32 s64, s64, 0x8000")
    A(f"""v_and_b32 v63, 7, v1
v_lshrrev_b32 v16, 5, v1
v_and_b32 v19, 1, v3
v_lshlrev_b32 v14, 15, v16
v_lshl_add_u32 v14, v5, 8, v14
v_lshl_add_u32 v14, v19, 6, v14
v_lshl_add_u32 v14, v4, 4, v14
v_bfe_u32 v17, v1, 3, 2
v_lshlrev_b32 v6, 10, v16
v_lshl_add_u32 v6, v17, 8, v6
v_lshl_add_u32 v6, v63, 4, v6
v_lshlrev_b32 v23, 5, v63
v_lshl_add_u32 v23, v17, 3, v23
v_lshl_add_u32 v23, v16, 2, v23
v_add_u32 v23, {L_Q}, v23
v_lshlrev_b32 v18, 3, v2
v_lshl_add_u32 v18, v16, 2, v18
v_lshl_add_u32 v11, v19, 7, v18
v_add_u32 v11, {L_HL}, v11
v_lshl_add_u32 v15, v19, 10, v18
s_lshl_b32 s13, s7, 7
s_add_u32 s13, s13, {L_H2}
v_add_u32 v15, s13, v15
v_bfe_u32 v12, v1, 3, 1
v_lshlrev_b32 v12, 7, v12
v_lshl_add_u32 v12, v3, 4, v12
v_add_u32 v12, {L_HL}, v12
s_waitcnt vmcnt(16)""")
    for b in range(2):
        for k in range(4): unpack(BB + 2 * k, BB + 2 * k + 1, 24 + 4 * b + k)
        layernorm8(BB, BB + 8, "s68")
        A(f"v_add_u32 v16, {L_H2 + 1024*b}, v13\nds_write_b128 v16, v[{BB+12}:{BB+15}]")
    A(f"ds_read_b32 v22, v15\nv_mov_b32 v31, {OOB:#x}")
    for ks in range(2):
        for i in range(8 * ks, 8 * ks + 8):
            A(f"s_waitcnt vmcnt({15 - i})")
            A(f"ds_write_b128 v7, v[{W+4*i}:{W+4*i+3}] offset:{(i&7)*1024}")
        for tt in range(8):
            for jh in range(2):
                d = W + (ks * 8 + tt) * 4 + jh * 2
                A(f"ds_read_b64_tr_b16 v[{d}:{d+1}], v8 offset:{jh*1024+tt*32}")
    A(f"""s_waitcnt lgkmcnt(0)
s_add_u32 s10, s11, 0x9e3779b9
s_lshl_b32 s13, s7, 12
s_add_u32 s13, s13, {WS_MP}
v_mov_b32 v24, s10
v_lshrrev_b32 v60, 1, v13
v_lshrrev_b32 v61, 1, v6
s_lshl_b32 s95, s6, 13
s_lshl_b32 s64, s7, 10
s_add_u32 s64, s64, s95
s_lshr_b32 s92, s64, 1
s_add_u32 s92, s92, {WS_QP8}
s_add_u32 s64, s64, {WS_QP}
s_lshl_b32 s65, s8, 7
s_add_u32 s95, s95, s65
s_lshr_b32 s93, s95, 1
s_add_u32 s93, s93, {WS_QP8}
s_add_u32 s95, s95, {WS_QP}
s_add_u32 s65, s95, 4096
s_mov_b32 s70, {TMO}""")
    unpack(26, 27, 22)
    stamp(1)
    scalar_wait("L_sp1", "s13", [c * 32768 + rq * 1024 + 780 for c in range(2) for rq in range(4)])
    A("L_q_mp:")
    for rq in range(4): A(f"buffer_load_dwordx4 v[{BB+4*rq}:{BB+4*rq+3}], v14, s[52:55], s13 offen offset:{rq*1024} {gpol}")
    for rq in range(4): A(f"buffer_load_dwordx2 v[{48+2*rq}:{49+2*rq}], v14, s[52:55], s13 offen offset:{rq*1024+128} {gpol}")
    A("s_waitcnt vmcnt(0)")
    tagcheck([BB + 3, BB + 7, BB + 11, BB + 15, 49, 51, 53, 55], 24)
    poll_tail("L_q_mp")
    stamp(2)
    def sum4():
        for r in range(3): A(f"v_add_f32 v{BB+r}, v{BB+r}, v{BB+4+r}")
        A(f"v_add_f32 v{BB+3}, v48, v50")
        for r in range(3): A(f"v_add_f32 v{BB+8+r}, v{BB+8+r}, v{BB+12+r}")
        A(f"v_add_f32 v{BB+11}, v52, v54")
        for r in range(4): A(f"v_add_f32 v{BB+r}, v{BB+r}, v{BB+8+r}")
        A(f"v_permlane32_swap_b32 v{BB}, v{BB+2}\nv_permlane32_swap_b32 v{BB+1}, v{BB+3}")
    sum4()
    A(f"v_cvt_pk_bf16_f32 v20, v{BB}, v{BB+1}\nv_cvt_pk_bf16_f32 v21, v{BB+2}, v{BB+3}")
    unpack(18, 19, 21)
    unpack(16, 17, 20)
    A("v_add_f32 v18, 1.0, v18\nv_add_f32 v19, 1.0, v19\nv_cvt_pk_bf16_f32 v21, v18, v19")
    unpack(18, 19, 21)
    A("v_mul_f32 v18, v18, v26\nv_mul_f32 v19, v19, v27\nv_cvt_pk_bf16_f32 v21, v18, v19")
    unpack(18, 19, 21)
    A("v_add_f32 v18, v18, v16\nv_add_f32 v19, v19, v17\nv_cvt_pk_bf16_f32 v21, v18, v19")
    A("ds_write_b32 v11, v21")
    A(f"ds_read_b128 v[{BB}:{BB+3}], v12\nds_read_b128 v[{BB+4}:{BB+7}], v12 offset:64")
    for ks in range(2):
        A(f"s_waitcnt lgkmcnt({1-ks})")
        for tt in range(8): mfma32(TT + 4 * tt, W + (ks * 8 + tt) * 4, BB + 4 * ks, ks == 0)
    A("v_cmp_eq_u32 s[66:67], 1, v63")
    for tt in range(1, 8):
        cur = "s[66:67]" if tt & 1 else "vcc"
        nx = "vcc" if tt & 1 else "s[66:67]"
        if tt < 7: A(f"v_cmp_eq_u32 {nx}, {tt+1}, v63")
        for r in range(4): A(f"v_cndmask_b32 v{TT+r}, v{TT+r}, v{TT+4*tt+r}, {cur}")
    A(f"""v_mov_b32 v{TT+4}, v{TT+3}
v_mov_b32 v{TT+3}, s10
v_mov_b32 v{TT+5}, s10
buffer_store_dwordx4 v[{TT}:{TT+3}], v13, s[52:55], s64 offen sc1
buffer_store_dwordx2 v[{TT+4}:{TT+5}], v60, s[52:55], s92 offen sc1
s_mov_b32 s70, {TMO}""")
    stamp(3)
    scalar_wait("L_sp2", "s95", [r * 1024 + 780 for r in range(8)])
    A("L_q_qp:")
    for m in range(4): A(f"buffer_load_dwordx4 v[{BB+4*m}:{BB+4*m+3}], v6, s[52:55], {'s95' if m < 2 else 's65'} offen offset:{(m&1)*2048} {gpol}")
    for m in range(4): A(f"buffer_load_dwordx2 v[{48+2*m}:{49+2*m}], v61, s[52:55], s93 offen offset:{m*1024} {gpol}")
    A("s_waitcnt vmcnt(0)")
    tagcheck([BB + 3, BB + 7, BB + 11, BB + 15, 49, 51, 53, 55], 24)
    poll_tail("L_q_qp")
    stamp(4)
    sum4()
    A(f"v_add_f32 v{BB}, v{BB}, v{BB+2}\nv_add_f32 v{BB+1}, v{BB+1}, v{BB+3}\nv_cvt_pk_bf16_f32 v20, v{BB}, v{BB+1}")
    A("ds_write_b32 v23, v20")
    A("L_s_bar1:")
    A("s_waitcnt lgkmcnt(0)\ns_add_u32 s10, s11, 0x9e3779b9")
    A("s_barrier\ns_barrier")
    A(f"v_lshlrev_b32 v14, 2, v1\nv_and_b32 v14, 28, v14\nv_add_u32 v14, {L_FL}, v14\nv_mov_b32 v15, s11\nds_write_b32 v14, v15")
    if "c" in abl: A("s_branch L_s_wo")
    A(f"""s_cmp_lg_u32 s76, 4
s_cbranch_scc1 L_s_wo
s_cmp_lg_u32 s3, 6
s_cbranch_scc1 L_s_wo
v_lshlrev_b32 v14, 15, v3
v_lshl_add_u32 v14, v4, 10, v14
v_lshl_add_u32 v14, v5, 8, v14
s_and_b32 s13, s77, 28
s_lshl_b32 s13, s13, 10
s_lshr_b32 s14, s77, 5
s_lshl_b32 s14, s14, 6
s_add_u32 s13, s13, s14
s_and_b32 s14, s77, 3
s_lshl_b32 s14, s14, 4
s_add_u32 s13, s13, s14
s_add_u32 s13, s13, {WS_MP + 65536}
v_lshlrev_b32 v15, 12, v3
v_lshl_add_u32 v15, v5, 4, v15
v_cmp_eq_u32 vcc, 0, v4
v_cndmask_b32 v15, v31, v15, vcc
s_lshl_b32 s14, s77, 6
s_add_u32 s14, s14, {WS_G}
v_mov_b32 v24, s10
s_mov_b32 s70, {TMO}
L_s_g4p:
buffer_load_dwordx4 v[16:19], v14, s[52:55], s13 offen {gpol}
buffer_load_dwordx2 v[20:21], v14, s[52:55], s13 offen offset:128 {gpol}
s_waitcnt vmcnt(0)""")
    tagcheck([19, 21], 24)
    poll_tail("L_s_g4p", sleep=8)
    for c in ("row_ror:4", "row_ror:8"):
        for r in (16, 17, 18, 20): A(f"v_add_f32_dpp v{r}, v{r}, v{r} {c} row_mask:0xf bank_mask:0xf")
    A("""v_cvt_pk_bf16_f32 v16, v16, v17
v_cvt_pk_bf16_f32 v17, v18, v20
v_mov_b32 v18, s10
v_mov_b32 v19, s10
buffer_store_dwordx4 v[16:19], v15, s[52:55], s14 offen sc1""")
    A("L_s_wo:")
    A("s_load_dwordx2 s[24:25], s[0:1], 32")
    A(f"""v_lshlrev_b32 v14, 10, v3
v_lshl_add_u32 v14, v2, 4, v14
s_lshl_b32 s64, s6, 17
s_lshl_b32 s13, s12, 8
s_add_u32 s64, s64, s13
v_lshlrev_b32 v30, 4, v3
v_cmp_eq_u32 vcc, 0, v2
v_cndmask_b32 v30, v31, v30, vcc
s_lshl_b32 s74, s8, 18
s_lshl_b32 s13, s12, 16
s_add_u32 s74, s74, s13
s_lshl_b32 s13, s6, 2
s_add_u32 s13, s13, s9
s_lshl_b32 s13, s13, 6
s_add_u32 s74, s74, s13
s_add_u32 s74, s74, {WS_Y}
s_waitcnt vmcnt(0) lgkmcnt(0)""")
    if "w" in abl: A("s_branch L_s_now")
    srd(44, 24, 4096 * 1024)
    def wo_stage(i):
        A(f"ds_write_b128 v7, v[{W+4*i}:{W+4*i+3}] offset:{(i&7)*1024}")
        if i & 7 == 7:
            ks = i >> 3
            for tt in range(8):
                for jh in range(2):
                    d = W + (ks * 8 + tt) * 4 + jh * 2
                    A(f"ds_read_b64_tr_b16 v[{d}:{d+1}], v8 offset:{jh*1024+tt*32}")
    for i in range(32):
        if i >= SD:
            A(f"s_waitcnt vmcnt({SD-1})")
        A(f"buffer_load_dwordx4 v[{W+4*i}:{W+4*i+3}], v14, s[44:47], s64 offen {wpol}")
        if i < 31: A("s_addk_i32 s64, 0x1000")
        if i >= SD: wo_stage(i - SD)
    for i in range(max(0, 32 - SD), 32):
        A(f"s_waitcnt vmcnt({31 - i})")
        wo_stage(i)
    A("L_s_now:")
    stamp(5)
    if "f" in abl: A("s_branch L_s_noffn")
    W2 = 208
    A("s_cmp_lg_u32 s76, 1\ns_cbranch_scc1 L_s_noffn")
    A("s_load_dwordx4 s[28:31], s[0:1], 48")
    srd(44, 32, 1376 * 1024)
    A("s_lshl_b32 s64, s77, 15\ns_lshl_b32 s13, s12, 8\ns_add_u32 s64, s64, s13")
    for i in range(8):
        if i >= SF: A(f"s_waitcnt vmcnt({SF-1})")
        A(f"buffer_load_dwordx4 v[{W2+4*i}:{W2+4*i+3}], v14, s[44:47], s64 offen {tpol}\ns_addk_i32 s64, 0x1000")
    A(f"""v_lshrrev_b32 v9, 2, v1
v_mul_u32_u24 v9, 2752, v9
v_lshl_add_u32 v9, v5, 4, v9
s_and_b32 s13, s12, 1
s_mul_i32 s64, s13, {256*2752}
s_lshl_b32 s14, s77, 6
s_add_u32 s64, s64, s14
s_lshl_b32 s65, s12, 14
s_add_u32 s65, s65, {L_EXT}
s_waitcnt lgkmcnt(0)
s_cmp_lt_u32 s12, 2
s_cselect_b32 s44, s28, s30
s_cselect_b32 s45, s29, s31
s_mov_b32 s46, {512*2752:#x}""")
    for i in range(8):
        A(f"s_waitcnt vmcnt({7 - i})\nds_write_b128 v7, v[{W2+4*i}:{W2+4*i+3}] offset:{i*1024}")
    for tt in range(8):
        for jh in range(2):
            A(f"ds_read_b64_tr_b16 v[{W2+4*tt+2*jh}:{W2+4*tt+2*jh+1}], v8 offset:{jh*1024+tt*32}")
    for i in range(16):
        if i >= SF: A(f"s_waitcnt vmcnt({SF-1})")
        A(f"s_mov_b32 m0, s65\nbuffer_load_dwordx4 v9, s[44:47], s64 offen {fpol} lds\ns_add_u32 s64, s64, {16*2752:#x}\ns_addk_i32 s65, 0x400")
    A("L_s_noffn:")
    A(f"""v_mul_u32_u24 v15, {OSTR}, v5
v_lshl_add_u32 v15, v3, 4, v15
v_add_u32 v15, {L_O}, v15
v_and_b32 v10, 1, v1
v_lshlrev_b32 v29, 4, v3
s_mov_b32 s13, {32*3072}
v_mul_lo_u32 v11, v10, s13
v_add_u32 v29, v29, v11
v_cmp_gt_u32 vcc, 2, v2
v_cndmask_b32 v29, v31, v29, vcc
s_mul_i32 s75, s12, {8*3072}
s_lshl_b32 s13, s77, 6
s_add_u32 s75, s75, s13
s_add_u32 s75, s75, {WS_OP}
v_lshlrev_b32 v28, 6, v10
v_lshl_add_u32 v28, v3, 4, v28
v_add_u32 v28, {L_HH}, v28
v_mov_b32 v20, {L_FL}
v_mov_b32 v21, s10
v_mov_b32 v22, 0xffffff00
s_lshr_b32 s92, s10, 8
s_lshr_b32 s93, s10, 16
s_lshr_b32 s94, s10, 24
s_mov_b32 s70, {TMO*4}
s_waitcnt vmcnt(0) lgkmcnt(0)""")
    stamp(6)
    A("s_barrier")
    stamp(7)
    if "t" in abl: A("s_branch L_fin2")
    OB, DY = 192, 32
    TAGB = ["s10", "s92", "s93", "s94"]
    for ks in range(4): A(f"ds_read_b128 v[{OB+4*ks}:{OB+4*ks+3}], v15 offset:{ks*64}")
    def ypost(tt):
        D = DY + 4 * tt
        ops = [f"v_add_f32_dpp v{D+r}, v{D+r}, v{D+r} quad_perm:[1,0,3,2] row_mask:0xf bank_mask:0xf" for r in range(4)]
        ops += [f"v_add_f32_dpp v{D+r}, v{D+r}, v{D+r} quad_perm:[2,3,0,1] row_mask:0xf bank_mask:0xf" for r in range(4)]
        ops += [f"v_bfi_b32 v{D+r}, v22, v{D+r}, {TAGB[r]}" for r in range(4)]
        ops += [f"buffer_store_dwordx4 v[{D}:{D+3}], v30, s[52:55], s74 offen sc1" + ("\ns_addk_i32 s74, 0x2000" if tt < 7 else "")]
        return ops
    for tt in range(8):
        D = DY + 4 * tt
        for ks in range(4):
            if tt == 0: A(f"s_waitcnt lgkmcnt({3-ks})")
            mfma32(D, W + (ks * 8 + tt) * 4, OB + 4 * ks, ks == 0)
            if tt >= 2:
                po = ypost(tt - 2)
                for o in po[3 * ks: 3 * ks + 3]: A(o)
                if ks == 3: A(po[12])
    for tt in (6, 7):
        for o in ypost(tt): A(o)
    stamp(8)
    A("s_cmp_lg_u32 s76, 1\ns_cbranch_scc1 L_fin2")
    A("""L_f2:
ds_read_b128 v[24:27], v20 offset:16
ds_read_b128 v[16:19], v28
s_waitcnt lgkmcnt(0)""")
    tagcheck([24, 25, 26, 27], 21)
    poll_tail("L_f2", sleep=1)
    stamp(9)
    def opost(tt):
        D = W + 4 * tt
        for r in range(4): A(f"v_bfi_b32 v{D+r}, v22, v{D+r}, {TAGB[r]}")
        A(f"buffer_store_dwordx4 v[{D}:{D+3}], v29, s[52:55], s75 offen sc1\ns_addk_i32 s75, 0xc00")
    for tt in range(8):
        mfma32(W + 4 * tt, W2 + 4 * tt, 16, True)
        if tt >= 2: opost(tt - 2)
    opost(6); opost(7)
    stamp(10)
    A("L_fin2:")
    finish()
    if diag:
        A("L_dump:")
        A("s_memrealtime s[78:79]\ns_waitcnt lgkmcnt(0)\ns_mov_b32 s91, s78")
        A("v_mov_b32 v8, 0")
        for i in range(12): A(f"v_writelane_b32 v8, s{80+i}, {i}")
        if dbg:
            A("""s_cmp_ge_u32 s3, 4
s_cbranch_scc1 L_bail
s_load_dwordx2 s[40:41], s[0:1], 96
s_not_b32 s12, s80
s_not_b32 s13, s85
s_cmp_eq_u32 s76, 4
s_cselect_b32 s14, s88, 0
s_cselect_b32 s15, s90, 0
v_mov_b32 v8, 0
v_writelane_b32 v8, s12, 0
v_writelane_b32 v8, s80, 1
v_writelane_b32 v8, s81, 2
v_writelane_b32 v8, s82, 3
v_writelane_b32 v8, s83, 4
v_writelane_b32 v8, s13, 5
v_writelane_b32 v8, s85, 6
v_writelane_b32 v8, s14, 7
v_writelane_b32 v8, s15, 8
v_writelane_b32 v8, s91, 9
s_waitcnt lgkmcnt(0)""")
            srd(56, 40, 40)
            A("v_lshlrev_b32 v9, 2, v1\nbuffer_atomic_umax v8, v9, s[56:59], 0 offen sc1")
        else:
            A(f"""s_lshl_b32 s12, s2, 3
s_add_u32 s12, s12, s3
s_lshl_b32 s12, s12, 8
s_add_u32 s12, s12, {WS_STAMP}
s_mov_b32 s54, 0x300000
v_lshlrev_b32 v9, 2, v1
buffer_store_dword v8, v9, s[52:55], s12 offen""")
    A("L_bail:\ns_endpgm")
    A.raw("L_codeend:")
    A.raw(f""".section .rodata,"a"
.p2align 6
.amdhsa_kernel {KNAME}
  .amdhsa_next_free_vgpr 256
  .amdhsa_next_free_sgpr 102
  .amdhsa_accum_offset 256
  .amdhsa_group_segment_fixed_size 0
  .amdhsa_kernarg_size 112
  .amdhsa_user_sgpr_count 2
  .amdhsa_user_sgpr_kernarg_segment_ptr 1
  .amdhsa_system_sgpr_workgroup_id_x 1
  .amdhsa_float_denorm_mode_32 3
.end_amdhsa_kernel""")
    return A.text()

if __name__ == "__main__":
    out = sys.argv[1]
    kw = json.loads(sys.argv[2]) if len(sys.argv) > 2 else {}
    open(out, "w").write(gen(**kw))
```

```python
import sys, json
sys.path.insert(0, "dev")
from asmlib import Asm

KNAME = "adaLN_cond__mha_block_cached__glu_gated_swiglu__decode_kernel"

WS_G, WS_X1, WS_ML, WS_QP, WS_QP8, WS_Y, WS_OP, WS_MP = 0x1000, 0x6000, 0x8000, 0x10000, 0x50000, 0x70000, 0xf0000, 0x150000
WS_X1 = 0x180000
WS_END = 0x188000
WS_STAMP = 0x200000
OSTR = 272
LOG2E = 0x3fb8aa3b
SCALE = 0x3db504f3
EPS = 0x3727c5ac
OOB = 0x7ff00000
TMO = 1 << 18

def gen(R=48, X=28, CAP0=6, CAP=6, diag=False, NB=(128, 128, 128, 128), NBF=None, SD=3, SMD=8, SQ=16, FP=60, shr=3,
        dsleep=30, wpol="", fpol="", gpol="sc1", tpol="nt", kvpol="nt", prio=3, SF=3, abl="", bsleep=0, csleep=0, cpol="sc1", dbg=0, WUP=2, CAP2=None, SW=64, fastc=1, f2sleep=0, dry=0, x1pre=0, pp=1, stag=6, ppx=0, ppd=0, xrep=1, xsleep=0):
    A = Asm()
    NBF = NBF or NB
    assert sum(NB) == 512 and sum(NBF) == 512
    VARS = sorted({(n - w + 3) // 4 for n in list(NB) + list(NBF) for w in range(4)})
    NS = (4 * max(VARS) + 15) // 16
    L_EXT = 32768
    SM = L_EXT + 4096 * X
    SM = max(SM, L_EXT + 65536)
    L_HL, L_SC, L_Q, L_HH, L_FL, L_O, L_DUM, L_H2 = SM, SM + 256, SM + 768, SM + 1024, SM + 1152, SM + 1184, SM + 2272, SM + 3296
    LDS_BYTES = L_H2 + 2048
    assert LDS_BYTES <= 163840

    def stamp(idx):
        if not diag: return
        A("s_memrealtime s[78:79]\ns_waitcnt lgkmcnt(0)")
        A(f"s_mov_b32 s{80+idx}, s78")
    def srd(d, base, nrec, off_lo=None):
        if off_lo is None:
            A(f"s_mov_b32 s{d}, s{base}\ns_mov_b32 s{d+1}, s{base+1}")
        else:
            A(f"s_add_u32 s{d}, s{base}, {off_lo}\ns_addc_u32 s{d+1}, s{base+1}, 0")
        A(f"s_mov_b32 s{d+2}, {nrec if isinstance(nrec, str) else hex(nrec)}\ns_mov_b32 s{d+3}, 0x20000")
    def finish():
        A("s_branch L_dump" if diag else "s_endpgm")
    def poll_tail(lbl, cnt="s70", sleep=0):
        A(f"s_sub_u32 {cnt}, {cnt}, 1\ns_cbranch_scc1 L_bail")
        if sleep:
            ok = A.newlabel("L_ok")
            A(f"s_cbranch_vccz {ok}\ns_sleep {sleep}\ns_branch {lbl}\n{ok}:")
        else:
            A(f"s_cbranch_vccnz {lbl}")
    stubs = []
    def poll_dry(lbl):
        out = A.newlabel("L_out"); to = A.newlabel("L_to")
        A(f"s_sub_u32 s70, s70, 1\ns_cbranch_scc1 {to}\ns_cbranch_vccnz {lbl}\n{out}:")
        stubs.append(f"{to}:\ns_cmp_eq_u32 s98, 0\ns_cbranch_scc1 {out}\ns_endpgm")
    def unpack(lo, hi, src):
        A(f"v_lshlrev_b32 v{lo}, 16, v{src}\nv_and_b32 v{hi}, 0xffff0000, v{src}")
    def allreduce(op, regs):
        for c in ("row_ror:8", "row_ror:4", "row_ror:2", "row_ror:1"):
            for r in regs:
                A(f"{op}_dpp v{r}, v{r}, v{r} {c} row_mask:0xf bank_mask:0xf")
        for r in regs:
            A(f"{op}_dpp v{r}, v{r}, v{r} row_bcast:15 row_mask:0xa bank_mask:0xf")
        for r in regs:
            A(f"{op}_dpp v{r}, v{r}, v{r} row_bcast:31 row_mask:0xc bank_mask:0xf")
    def mfma32(D, a, b, first):
        A(f"v_mfma_f32_16x16x32_bf16 v[{D}:{D+3}], v[{a}:{a+3}], v[{b}:{b+3}], " + ("0" if first else f"v[{D}:{D+3}]"))
    def tagcheck(regs, tagv):
        for i, rr in enumerate(regs):
            if i == 0: A(f"v_cmp_ne_u32 vcc, v{tagv}, v{rr}")
            else: A(f"v_cmp_ne_u32 s[66:67], v{tagv}, v{rr}\ns_or_b64 vcc, vcc, s[66:67]")
    def scalar_wait(lbl, soff, offs):
        A(f"s_add_u32 s96, s42, {soff}\ns_addc_u32 s97, s43, 0\ns_mov_b32 s71, 64")
        A(f"{lbl}:")
        for i, o in enumerate(offs): A(f"s_load_dword s{16+i}, s[96:97], {o} glc")
        A("s_waitcnt lgkmcnt(0)")
        for i in range(len(offs)): A(f"s_xor_b32 s{16+i}, s{16+i}, s10")
        for i in range(1, len(offs)): A(f"s_or_b32 s16, s16, s{16+i}")
        A(f"s_sub_u32 s71, s71, 1\ns_cbranch_scc1 {lbl}x\ns_cmp_lg_u32 s16, 0\ns_cbranch_scc1 {lbl}\n{lbl}x:")
    def roles():
        l = A.newlabel("L_role")
        A(f"""s_lshr_b32 s12, s2, 4
s_lshl_b32 s77, s4, 3
s_and_b32 s13, s12, 7
s_add_u32 s77, s77, s13
s_mov_b32 s72, s77
s_lshr_b32 s76, s12, 3
s_lshl_b32 s76, s76, 2
s_cmp_ge_u32 s9, 2
s_cbranch_scc1 {l}
s_lshl_b32 s72, s4, 4
s_add_u32 s72, s72, s12
s_add_u32 s72, s72, 64
s_lshr_b32 s77, s4, 1
s_mul_i32 s77, s77, 11
s_add_u32 s77, s77, s12
s_cmp_lt_u32 s77, 43
s_cselect_b32 s76, 1, 0
s_cmp_lt_u32 s12, 11
s_cselect_b32 s76, s76, 0
s_cmp_eq_u32 s9, 0
s_cselect_b32 s76, s76, 0
{l}:""")
    def layernorm8(X_, T, eps_s):
        X = X_
        A(f"""v_add_f32 v{T}, v{X}, v{X+1}
v_add_f32 v{T+1}, v{X+2}, v{X+3}
v_add_f32 v{T+2}, v{X+4}, v{X+5}
v_add_f32 v{T+3}, v{X+6}, v{X+7}
v_add_f32 v{T}, v{T}, v{T+1}
v_add_f32 v{T+2}, v{T+2}, v{T+3}
v_add_f32 v{T}, v{T}, v{T+2}""")
        allreduce("v_add_f32", [T])
        A(f"v_readlane_b32 s71, v{T}, 63")
        A(f"v_mov_b32 v{T+1}, 0x3b000000\nv_mul_f32 v{T}, s71, v{T+1}")
        A(f"v_cvt_pk_bf16_f32 v{T+2}, v{T}, v{T}")
        for k in range(8): A(f"v_sub_f32 v{T+4+k}, v{X+k}, v{T}")
        A(f"v_and_b32 v{T+2}, 0xffff0000, v{T+2}")
        A(f"v_mul_f32 v{T+3}, v{T+4}, v{T+4}\nv_mul_f32 v{T}, v{T+5}, v{T+5}")
        for k in range(2, 8, 2):
            A(f"v_fmac_f32 v{T+3}, v{T+4+k}, v{T+4+k}\nv_fmac_f32 v{T}, v{T+5+k}, v{T+5+k}")
        A(f"v_add_f32 v{T+3}, v{T+3}, v{T}")
        steps = ["row_ror:8 row_mask:0xf", "row_ror:4 row_mask:0xf", "row_ror:2 row_mask:0xf", "row_ror:1 row_mask:0xf", "row_bcast:15 row_mask:0xa", "row_bcast:31 row_mask:0xc"]
        fill = [f"v_sub_f32 v{X+k}, v{X+k}, v{T+2}" for k in range(8)] + [f"v_cvt_pk_bf16_f32 v{T+4+k}, v{X+2*k}, v{X+2*k+1}" for k in range(4)]
        for si, st in enumerate(steps):
            A(fill[2 * si]); A(fill[2 * si + 1])
            A(f"v_add_f32_dpp v{T+3}, v{T+3}, v{T+3} {st} bank_mask:0xf")
        unpack(X, X + 1, T + 4)
        A(f"v_readlane_b32 s71, v{T+3}, 63")
        unpack(X + 2, X + 3, T + 5)
        A(f"v_mul_f32 v{T}, s71, v{T+1}")
        unpack(X + 4, X + 5, T + 6)
        A(f"v_cvt_pk_bf16_f32 v{T}, v{T}, v{T}")
        unpack(X + 6, X + 7, T + 7)
        A(f"v_and_b32 v{T}, 0xffff0000, v{T}")
        A(f"v_add_f32 v{T}, {eps_s}, v{T}")
        A(f"v_cvt_pk_bf16_f32 v{T}, v{T}, v{T}\nv_and_b32 v{T}, 0xffff0000, v{T}")
        A(f"v_sqrt_f32 v{T}, v{T}")
        A(f"v_cvt_pk_bf16_f32 v{T}, v{T}, v{T}\nv_and_b32 v{T}, 0xffff0000, v{T}")
        A(f"v_rcp_f32 v{T}, v{T}")
        for k in range(8): A(f"v_mul_f32 v{X+k}, v{X+k}, v{T}")
        for k in range(4): A(f"v_cvt_pk_bf16_f32 v{T+4+k}, v{X+2*k}, v{X+2*k+1}")
        for k in range(4): unpack(X + 2 * k, X + 2 * k + 1, T + 4 + k)

    hdr = open("adaLN_cond__mha_block_cached__glu_gated_swiglu__decode.s.ref").read().split("\n")
    for l in hdr:
        if l.startswith("; @launch"): break
        A.raw(l)
    A.raw(f"; @launch grid=(256,1,1) block=(512,1,1) lds={LDS_BYTES}")
    A.raw('.amdgcn_target "amdgcn-amd-amdhsa--gfx950"\n.text')
    A.raw(f".globl {KNAME}\n.p2align 8\n.type {KNAME},@function\n{KNAME}:")
    A("s_cmp_ge_u32 s2, 256\ns_cbranch_scc1 L_bail")
    A("s_load_dwordx16 s[16:31], s[0:1], 0\ns_load_dwordx8 s[32:39], s[0:1], 64\ns_load_dwordx4 s[40:43], s[0:1], 96")
    if diag:
        for i in range(12): A(f"s_mov_b32 s{80+i}, 0")
        A("s_memrealtime s[78:79]")
    A(f"""v_and_b32 v1, 63, v0
v_lshrrev_b32 v2, 6, v0
v_readfirstlane_b32 s3, v2
s_mov_b32 s98, {TMO*4}
s_mov_b32 s99, 0
s_and_b32 s4, s2, 7
s_lshr_b32 s5, s2, 3
s_lshr_b32 s8, s2, 7
s_lshr_b32 s6, s2, 4
s_and_b32 s6, s6, 7
s_lshl_b32 s6, s6, 2
s_bfe_u32 s7, s2, 0x20001
s_add_u32 s6, s6, s7
s_and_b32 s9, s5, 1
s_lshl_b32 s9, s9, 1
s_and_b32 s7, s2, 1
s_add_u32 s9, s9, s7
s_lshl_b32 s7, s8, 2
s_add_u32 s7, s7, s9
v_and_b32 v2, 15, v1
v_lshrrev_b32 v3, 4, v1
v_bfe_u32 v4, v1, 2, 2
v_and_b32 v5, 3, v1
s_cmp_ge_u32 s3, 4
s_cbranch_scc1 L_service""")
    RING = 256 - 4 * R
    QOP, MSK, DB, OA, SR = 8, 24, 28, 36, 40
    assert RING >= SR + NS
    VK, VV = 6, 7
    base = [0, NB[0], NB[0] + NB[1], NB[0] + NB[1] + NB[2]]
    basef = [0, NBF[0], NBF[0] + NBF[1], NBF[0] + NBF[1] + NBF[2]]
    A(f"""s_lshl_b32 s12, s3, 12
v_lshlrev_b32 v{VK}, 8, v4
v_lshl_add_u32 v{VK}, v3, 6, v{VK}
v_lshl_add_u32 v{VK}, v5, 4, v{VK}
v_add_u32 v{VK}, s12, v{VK}
v_lshlrev_b32 v{VV}, 4, v1
v_add_u32 v{VV}, s12, v{VV}
s_lshl_b32 s13, s2, 19
s_and_b32 s13, s13, 0xff800000
s_lshl_b32 s14, s6, 21
s_and_b32 s14, s14, 0x600000
s_add_u32 s13, s13, s14
s_lshr_b32 s12, s4, 1
s_mul_i32 s12, s12, 11
s_lshr_b32 s15, s2, 4
s_add_u32 s12, s12, s15
s_max_u32 s15, s15, 10
s_add_u32 s12, s12, s15
s_mov_b32 s14, {base[0] | base[1] << 16:#x}
s_mov_b32 s15, {base[2] | base[3] << 16:#x}
s_mov_b32 s75, {NB[0] | NB[1] << 8 | NB[2] << 16 | NB[3] << 24:#x}
s_lshr_b32 s64, s2, 4
s_cmp_lt_u32 s64, 11
s_cselect_b32 s12, s12, 99
s_cmp_lt_u32 s12, 53
s_cselect_b32 s14, {basef[0] | basef[1] << 16:#x}, s14
s_cselect_b32 s15, {basef[2] | basef[3] << 16:#x}, s15
s_cselect_b32 s75, {NBF[0] | NBF[1] << 8 | NBF[2] << 16 | NBF[3] << 24:#x}, s75
s_lshl_b32 s12, s9, 4
s_lshr_b64 s[14:15], s[14:15], s12
s_and_b32 s14, s14, 0xffff
s_lshl_b32 s14, s14, 12
s_add_u32 s13, s13, s14
s_lshl_b32 s12, s9, 3
s_lshr_b32 s75, s75, s12
s_and_b32 s75, s75, 0xff
s_lshl_b32 s74, s75, 12
s_mov_b32 s64, 0
s_mov_b32 s65, 0
s_waitcnt lgkmcnt(0)""")
    if diag: A("s_mov_b32 s80, s78")
    srd(44, 18, "s74", "s13")
    srd(48, 20, "s74", "s13")
    import copy
    class St: pass
    S = St()
    S.issued = []; S.known = 0; S.slot_of = {}; S.free = [RING + 4 * k for k in range(R)][::-1]
    S.n = R + X; S.l = R; S.done = None; S.NP = 4 * min(VARS)
    def kv_load(i, lds=False):
        NP = S.NP
        if not lds: S.slot_of[i] = S.free.pop()
        slot = S.slot_of.get(i)
        j = i % NP
        va, sr, so = (VK, 44, "s64") if i < NP else (VV, 48, "s65")
        if lds:
            if j & 3 == 0: A(f"s_add_u32 m0, s73, {(i - R) * 1024}")
            A(f"buffer_load_dwordx4 v{va}, s[{sr}:{sr+3}], {so} offen offset:{(j&3)*1024} {kvpol} lds")
        else:
            A(f"buffer_load_dwordx4 v[{slot}:{slot+3}], v{va}, s[{sr}:{sr+3}], {so} offen offset:{(j&3)*1024} {kvpol}")
        if j & 3 == 3: A(f"s_addk_i32 {so}, 0x4000")
        S.issued.append(i)
    def wait_out(n):
        if len(S.issued) - S.known > n:
            A(f"s_waitcnt vmcnt({n})")
            S.known = len(S.issued) - n
    def wait_piece(p):
        wait_out(len(S.issued) - 1 - S.issued.index(p))
    assert R % 4 == 0 and X % 4 == 0
    for i in range(CAP0): kv_load(i)
    A("s_load_dword s11, s[42:43], 0")
    A(f"""v_and_b32 v28, 1, v1
v_cmp_eq_u32 vcc, 1, v28
v_mov_b32 v29, 0xffff
v_mov_b32 v30, 0xffff0000
v_cndmask_b32 v29, v29, v30, vcc
v_lshrrev_b32 v28, 1, v2""")
    for r in range(4):
        A(f"v_cmp_eq_u32 vcc, {r}, v28\nv_cndmask_b32 v{MSK+r}, 0, v29, vcc")
    srd(52, 42, WS_END)
    roles()
    A(f"""v_lshrrev_b32 v37, 2, v2
v_lshlrev_b32 v36, 6, v3
v_lshl_add_u32 v36, v37, 4, v36
v_add_u32 v36, {L_Q}, v36
s_mul_i32 s73, s3, {X*1024}
s_add_u32 s73, s73, {L_EXT}
v_lshlrev_b32 v38, 4, v1
v_add_u32 v38, s73, v38
s_sub_u32 s75, s75, s3
s_add_u32 s75, s75, 3
s_lshr_b32 s75, s75, 2
v_mov_b32 v{SR+NS-1}, 0xff800000
v_mov_b32 v{SR+NS-2}, 0xff800000""")
    for i in range(CAP0, R + X):
        wait_out(CAP0 - 1)
        kv_load(i, lds=(i >= R))
    A("s_waitcnt lgkmcnt(0)")
    A("s_add_u32 s10, s11, 0x9e3779b9")
    stamp(1)
    A("s_barrier")
    stamp(2)
    A(f"ds_read_b128 v[{DB}:{DB+3}], v36")
    A("s_waitcnt lgkmcnt(0)")
    for t in range(4):
        A(f"v_cmp_eq_u32 vcc, {t}, v5")
        for r in range(4): A(f"v_cndmask_b32 v{QOP+4*t+r}, 0, v{DB+r}, vcc")
    def post_ops(G):
        u = G & 3; Sg = SR + (G >> 2); D = DB + 4 * (G & 1)
        ops = [f"v_mov_b32_dpp v{Sg}, v{D+u} quad_perm:[0,1,2,3] row_mask:0xf bank_mask:{1<<u:#x}"]
        for b in range(4):
            if b == u: continue
            ops.append(f"v_add_f32_dpp v{Sg}, v{D+b}, v{Sg} row_ror:{4 * ((u - b) % 4)} row_mask:0xf bank_mask:{1<<u:#x}")
        return ops
    def cap(c):
        return CAP2 if (CAP2 and c >= S.NP + SW) else CAP
    def prefill(c):
        while S.n < 2 * S.NP and S.n - c <= cap(c) and S.free:
            wait_out(cap(c) - 1)
            kv_load(S.n)
            S.n += 1
            S.done = c
    def refill(c):
        S.free.append(S.slot_of[c])
        if S.done == c: return
        if S.n < 2 * S.NP and (S.n - c <= CAP or c % shr == shr - 1):
            wait_out(CAP - 1)
            kv_load(S.n)
            S.n += 1
        elif S.l < R + X and len(S.free) >= 2:
            p = S.l; slot = S.slot_of[p] = S.free.pop(0)
            wait_piece(p)
            A(f"ds_read_b128 v[{slot}:{slot+3}], v38 offset:{(p-R)*1024}")
            S.l = p + 1
    def k_step(i):
        slot = S.slot_of[i]
        G = i >> 2; t = i & 3; D = DB + 4 * (G & 1)
        if i == R: A("s_waitcnt lgkmcnt(0)\ns_barrier"); assert S.l == R + X
        wait_piece(i)
        prefill(i)
        mfma32(D, slot, QOP + 4 * t, t == 0)
        po = post_ops(G - 1) if (G > 0 and t >= 2) else None
        if po: A(po[2 * (t - 2)])
        refill(i)
        if po: A(po[2 * (t - 2) + 1])
    ic = 0
    while S.n < S.NP - 1:
        k_step(ic); ic += 1
    assert ic > R
    for v in VARS[1:]:
        A(f"s_cmp_eq_u32 s75, {v}\ns_cbranch_scc1 L_var{v}")
    snap = copy.deepcopy(S.__dict__); hist = list(A.hist)
    T0 = 8; AB = 8
    def sel(i):
        P = SR + (i >> 4); c = i & 15; a = AB + 4 * (i & 1)
        for r in range(4):
            A(f"v_and_b32_dpp v{a+r}, v{P}, v{MSK+r} row_newbcast:{c} row_mask:0xf bank_mask:0xf")
    def ml_loads(hf):
        A(f"""s_load_dwordx16 s[16:31], s[96:97], {hf*128} glc
s_load_dwordx8 s[32:39], s[96:97], {hf*128+64} glc
s_load_dwordx8 s[56:63], s[96:97], {hf*128+96} glc""")
    for v in VARS:
        S.__dict__.update(copy.deepcopy(snap)); A.hist = list(hist)
        NP = S.NP = 4 * v
        ns = (NP + 15) // 16
        A(f"L_var{v}:")
        for i in range(ic, NP): k_step(i)
        for o in post_ops(NP // 4 - 1): A(o)
        stamp(3)
        A(f"s_mov_b32 s12, {SCALE:#x}\ns_mov_b32 s13, {LOG2E:#x}")
        def round_pairs():
            for k in range(0, ns, 2):
                A(f"v_cvt_pk_bf16_f32 v{T0+k//2}, v{SR+k}, v{SR+min(k+1, ns-1)}")
            for k in range(0, ns, 2):
                if k + 1 < ns: unpack(SR + k, SR + k + 1, T0 + k // 2)
                else: A(f"v_lshlrev_b32 v{SR+k}, 16, v{T0+k//2}")
        round_pairs()
        for k in range(ns): A(f"v_mul_f32 v{SR+k}, s12, v{SR+k}")
        round_pairs()
        A(f"v_max3_f32 v{T0}, v{SR}, v{SR+1}, v{SR+2}\nv_max3_f32 v{T0+1}, v{SR+3}, v{SR+4}, v{SR+5}\nv_max3_f32 v{T0}, v{T0}, v{SR+6}, v{SR+7}")
        if ns > 8: A(f"v_max_f32 v{T0+1}, v{T0+1}, v{SR+8}")
        A(f"v_max_f32 v{T0}, v{T0}, v{T0+1}")
        allreduce("v_max_f32", [T0])
        A(f"v_readlane_b32 s73, v{T0}, 63")
        for k in range(ns): A(f"v_subrev_f32 v{SR+k}, s73, v{SR+k}")
        for k in range(ns): A(f"v_mul_f32 v{SR+k}, s13, v{SR+k}")
        for k in range(ns): A(f"v_exp_f32 v{SR+k}, v{SR+k}")
        A(f"""v_add_f32 v{T0}, v{SR}, v{SR+1}
v_add_f32 v{T0+1}, v{SR+2}, v{SR+3}
v_add_f32 v{T0+2}, v{SR+4}, v{SR+5}
v_add_f32 v{T0+3}, v{SR+6}, v{SR+7}
v_add_f32 v{T0}, v{T0}, v{T0+1}
v_add_f32 v{T0+2}, v{T0+2}, v{T0+3}""")
        if ns > 8: A(f"v_add_f32 v{T0}, v{T0}, v{SR+8}")
        A(f"v_add_f32 v18, v{T0}, v{T0+2}")
        for k in range(ns): A(f"v_cvt_pk_bf16_f32 v{SR+k}, v{SR+k}, v{SR+k}")
        allreduce("v_add_f32", [18])
        A(f"""v_mov_b32 v16, s73
v_mov_b32 v17, s10
v_mov_b32 v19, s10
s_lshl_b32 s12, s8, 5
s_add_u32 s12, s12, s6
s_lshl_b32 s12, s12, 8
s_add_u32 s12, s12, {WS_ML}
s_add_u32 s96, s42, s12
s_addc_u32 s97, s43, 0
s_lshl_b32 s13, s9, 6
s_add_u32 s12, s12, s13
s_lshl_b32 s13, s3, 4
s_add_u32 s12, s12, s13
v_mov_b32 v20, {OOB:#x}
v_mov_b32 v21, 0
v_cmp_eq_u32 vcc, 63, v1
v_cndmask_b32 v20, v20, v21, vcc
v_lshlrev_b32 v22, 3, v1
v_add_u32 v22, {L_DUM}, v22
buffer_store_dwordx4 v[16:19], v20, s[52:55], s12 offen sc1""")
        S.issued.append("ml")
        A(f"""s_mul_i32 s12, s3, {OSTR}
s_add_u32 s12, s12, {L_O}
v_lshlrev_b32 v28, 4, v2
v_lshl_add_u32 v28, v3, 3, v28
v_add_u32 v28, s12, v28
v_cmp_gt_u32 vcc, 32, v1
v_cndmask_b32 v28, v22, v28, vcc""")
        stamp(4)
        sel(0)
        for i in range(NP):
            gi = NP + i
            slot = S.slot_of[gi]; a = AB + 4 * (i & 1)
            wait_piece(gi)
            prefill(gi)
            mfma32(OA, a, slot, i == 0)
            if i < NP - 1: sel(i + 1)
            refill(gi)
            if i == NP - FP:
                A(f"s_mov_b32 s70, {TMO}\ns_mov_b32 s13, {LOG2E:#x}\nv_mov_b32 v30, s73\nv_mov_b32 v31, 0")
                ml_loads(0)
            if i in (NP - FP + 16, NP - FP + 32):
                hf = 0 if i == NP - FP + 16 else 1
                regs = [16, 20, 24, 28, 32, 36, 56, 60]
                A(f"s_branch L_fchk{hf}_{v}\nL_fpoll{hf}_{v}:")
                ml_loads(hf)
                A(f"L_fchk{hf}_{v}:\ns_waitcnt lgkmcnt(0)\ns_mov_b32 s12, 0")
                for g in regs:
                    A(f"s_xor_b32 s14, s{g+1}, s10\ns_or_b32 s12, s12, s14\ns_xor_b32 s14, s{g+3}, s10\ns_or_b32 s12, s12, s14")
                A(f"s_sub_u32 s70, s70, 1\ns_cbranch_scc1 L_bail\ns_cmp_lg_u32 s12, 0\ns_cbranch_scc1 L_fpoll{hf}_{v}")
                A("v_mov_b32 v29, v30")
                for g in regs: A(f"v_max_f32 v30, s{g}, v30")
                A("v_sub_f32 v29, v29, v30")
                for k, g in enumerate(regs): A(f"v_sub_f32 v{16+k}, s{g}, v30")
                A("v_mul_f32 v29, s13, v29")
                for k in range(8): A(f"v_mul_f32 v{16+k}, s13, v{16+k}")
                A("v_exp_f32 v29, v29")
                for k in range(8): A(f"v_exp_f32 v{16+k}, v{16+k}")
                A("v_mul_f32 v31, v31, v29")
                for k, g in enumerate(regs): A(f"v_fmac_f32 v31, s{g+2}, v{16+k}")
                if hf == 0:
                    ml_loads(1)
                else:
                    A("""v_sub_f32 v30, s73, v30
v_rcp_f32 v31, v31
v_mul_f32 v30, s13, v30
v_exp_f32 v30, v30
s_load_dwordx2 s[16:17], s[0:1], 0
s_load_dwordx2 s[38:39], s[0:1], 88
v_mul_f32 v30, v30, v31""")
        for r in range(4): A(f"v_mul_f32 v{OA+r}, v30, v{OA+r}")
        A(f"v_cvt_pk_bf16_f32 v32, v{OA}, v{OA+1}\nv_cvt_pk_bf16_f32 v33, v{OA+2}, v{OA+3}")
        A("ds_write_b64 v28, v[32:33]")
        if v != VARS[-1]: A("s_branch L_vdone")
    A("L_vdone:\ns_waitcnt lgkmcnt(0)")
    stamp(5)
    A("s_barrier")
    stamp(6)
    if "t" in abl: A("s_branch L_fin")
    A("""L_tail:
s_cmp_eq_u32 s76, 4
s_cbranch_scc1 L_stepB
s_cmp_lg_u32 s76, 1
s_cbranch_scc1 L_fin""")
    WA = [64 + 4 * k for k in range(16)]; HB = [128 + 4 * k for k in range(16)]
    SB, C1, XX = 16, 24, 32
    A(f"""v_lshlrev_b32 v9, 9, v3
v_lshl_add_u32 v9, v4, 6, v9
v_and_b32 v11, 1, v1
v_lshl_add_u32 v9, v11, 3, v9
v_lshrrev_b32 v10, 1, v5
v_lshl_add_u32 v9, v10, 15, v9
s_lshl_b32 s12, s3, 4
s_add_u32 s14, s12, {L_EXT}
v_add_u32 v9, s14, v9""")
    for ks in range(16):
        for jh in range(2):
            A(f"ds_read_b64_tr_b16 v[{WA[ks]+2*jh}:{WA[ks]+2*jh+1}], v9 offset:{ks*2048+jh*256}")
    A(f"""v_mov_b32 v57, s10
v_lshlrev_b32 v12, 10, v11
v_lshl_add_u32 v12, v3, 4, v12
v_add_u32 v12, {L_H2}, v12
v_lshlrev_b32 v13, 6, v11
v_and_b32 v14, 1, v3
v_lshl_add_u32 v13, v14, 3, v13
v_lshrrev_b32 v14, 1, v3
v_lshl_add_u32 v13, v14, 2, v13
s_add_u32 s12, s12, {L_HH}
v_add_u32 v13, s12, v13
v_lshlrev_b32 v14, 2, v1
v_add_u32 v14, {L_DUM}, v14
s_min_u32 s14, s98, 2
v_cmp_gt_u32 vcc, s14, v2
v_cndmask_b32 v13, v14, v13, vcc
s_mov_b32 s68, {EPS:#x}
s_mov_b32 s69, {LOG2E:#x}
s_mov_b32 s70, s98
v_mov_b32 v15, {L_FL}
s_lshl_b32 s12, s3, 2
s_add_u32 s12, s12, {L_FL}
s_cmp_eq_u32 s98, 0
s_cselect_b32 s12, {L_DUM}, s12
v_mov_b32 v56, s12
s_sub_u32 s13, s3, 1
s_cmp_ge_u32 s13, 2
s_cbranch_scc1 L_c_h2s
s_lshl_b32 s14, s13, 11
s_add_u32 s14, s14, {WS_G + 4096}
s_add_u32 s15, s14, 4096
v_lshlrev_b32 v8, 5, v1
L_c_sbcb:""")
    for k, (so, of) in enumerate((("s14", 0), ("s14", 16), ("s15", 0), ("s15", 16))):
        A(f"buffer_load_dwordx4 v[{40+4*k}:{43+4*k}], v8, s[52:55], {so} offen offset:{of} sc1")
    A("s_waitcnt vmcnt(0)")
    tagcheck([42, 43, 46, 47, 50, 51, 54, 55], 57)
    poll_dry("L_c_sbcb")
    for k, rr in enumerate((40, 41, 44, 45)): unpack(SB + 2 * k, SB + 2 * k + 1, rr)
    for k, rr in enumerate((48, 49, 52, 53)): unpack(C1 + 2 * k, C1 + 2 * k + 1, rr)
    for k in range(8): A(f"v_add_f32 v{C1+k}, 1.0, v{C1+k}")
    for k in range(4): A(f"v_cvt_pk_bf16_f32 v{40+k}, v{C1+2*k}, v{C1+2*k+1}")
    for k in range(4): unpack(C1 + 2 * k, C1 + 2 * k + 1, 40 + k)
    A(f"""s_lshl_b32 s14, s13, 10
s_add_u32 s15, s14, {L_H2}
s_cmp_eq_u32 s98, 0
s_cselect_b32 s15, {L_DUM}, s15
s_lshl_b32 s14, s13, 12
s_add_u32 s14, s14, {WS_X1}
s_lshr_b32 s12, s4, 1
s_lshl_b32 s12, s12, {13 if xrep else 31}
s_andn2_b32 s12, s12, 0x80000000
s_add_u32 s14, s14, s12
v_lshlrev_b32 v8, 4, v1
v_add_u32 v10, s15, v8
v_lshrrev_b32 v8, 1, v1
v_lshlrev_b32 v8, 7, v8
v_lshl_add_u32 v8, v11, 5, v8
s_mov_b32 s12, 0x05040100
s_waitcnt lgkmcnt(0)""")
    stamp(7)
    def x1_loads(b):
        A(f"buffer_load_dwordx4 v[{b}:{b+3}], v8, s[52:55], s14 offen sc1\nbuffer_load_dwordx4 v[{b+4}:{b+7}], v8, s[52:55], s14 offen offset:16 sc1")
    def x1_check(b, extra):
        A(f"s_waitcnt vmcnt({extra})")
        for k in range(4): A(f"v_perm_b32 v{40+k}, v{b+2*k+1}, v{b+2*k}, s12")
        for k in range(4):
            A(f"v_sad_u8 v44, v{40+k}, v57, {'0' if k == 0 else 'v44'}")
            A(f"v_and_b32 v{XX+2*k}, 0xffff0000, v{b+2*k}\nv_and_b32 v{XX+2*k+1}, 0xffff0000, v{b+2*k+1}")
        A("v_cmp_ne_u32 vcc, 0, v44")
    A("s_mov_b32 s70, s98")
    if not ppx:
        if xsleep: A(f"s_branch L_c_x1\nL_c_x1s:\ns_sleep {xsleep}")
        A("L_c_x1:"); x1_loads(192); x1_check(192, 0); poll_dry("L_c_x1s" if xsleep else "L_c_x1")
    else:
        x1_loads(192)
        A(f"s_sleep {stag}\nL_c_x1:"); x1_loads(200); x1_check(192, 2)
        A("s_cbranch_vccz L_c_got")
        x1_loads(192); x1_check(200, 2)
        poll_dry("L_c_x1")
        A("L_c_got:")
    stamp(8)
    if not fastc:
        layernorm8(XX, 44, "s68")
        for k in range(8): A(f"v_mul_f32 v{XX+k}, v{XX+k}, v{C1+k}")
        for k in range(4): A(f"v_cvt_pk_bf16_f32 v{44+k}, v{XX+2*k}, v{XX+2*k+1}")
        for k in range(4): unpack(XX + 2 * k, XX + 2 * k + 1, 44 + k)
        for k in range(8): A(f"v_add_f32 v{XX+k}, v{XX+k}, v{SB+k}")
        for k in range(4): A(f"v_cvt_pk_bf16_f32 v{44+k}, v{XX+2*k}, v{XX+2*k+1}")
    else:
        A(f"v_readfirstlane_b32 s71, v{XX}")
        Dd = 44
        for k in range(8): A(f"v_subrev_f32 v{Dd+k}, s71, v{XX+k}")
        A(f"""v_add_f32 v40, v{Dd}, v{Dd+1}
v_mul_f32 v41, v{Dd}, v{Dd}
v_add_f32 v42, v{Dd+2}, v{Dd+3}
v_mul_f32 v43, v{Dd+1}, v{Dd+1}
v_add_f32 v52, v{Dd+4}, v{Dd+5}
v_fmac_f32 v41, v{Dd+2}, v{Dd+2}
v_add_f32 v53, v{Dd+6}, v{Dd+7}
v_fmac_f32 v43, v{Dd+3}, v{Dd+3}
v_add_f32 v40, v40, v42
v_fmac_f32 v41, v{Dd+4}, v{Dd+4}
v_add_f32 v52, v52, v53
v_fmac_f32 v43, v{Dd+5}, v{Dd+5}
v_fmac_f32 v41, v{Dd+6}, v{Dd+6}
v_fmac_f32 v43, v{Dd+7}, v{Dd+7}
v_add_f32 v40, v40, v52
v_add_f32 v41, v41, v43""")
        allreduce("v_add_f32", [40, 41])
        A(f"""v_readlane_b32 s72, v40, 63
v_readlane_b32 s73, v41, 63
v_mov_b32 v42, 0x3b000000
v_mul_f32 v40, s72, v42
v_mul_f32 v41, s73, v42
v_add_f32 v43, s71, v40
v_fma_f32 v41, -v40, v40, v41
v_cvt_pk_bf16_f32 v43, v43, v43
v_max_f32 v41, 0, v41
v_and_b32 v43, 0xffff0000, v43
v_cvt_pk_bf16_f32 v41, v41, v41
v_sub_f32 v{XX}, v{XX}, v43
v_and_b32 v41, 0xffff0000, v41
v_sub_f32 v{XX+1}, v{XX+1}, v43
v_add_f32 v41, s68, v41
v_sub_f32 v{XX+2}, v{XX+2}, v43
v_cvt_pk_bf16_f32 v41, v41, v41
v_sub_f32 v{XX+3}, v{XX+3}, v43
v_and_b32 v41, 0xffff0000, v41
v_sub_f32 v{XX+4}, v{XX+4}, v43
v_sqrt_f32 v41, v41
v_sub_f32 v{XX+5}, v{XX+5}, v43
v_sub_f32 v{XX+6}, v{XX+6}, v43
v_cvt_pk_bf16_f32 v41, v41, v41
v_sub_f32 v{XX+7}, v{XX+7}, v43
v_and_b32 v41, 0xffff0000, v41""")
        for k in range(4): A(f"v_mul_f32 v{XX+k}, v{XX+k}, v{C1+k}")
        A("v_rcp_f32 v41, v41")
        for k in range(4, 8): A(f"v_mul_f32 v{XX+k}, v{XX+k}, v{C1+k}")
        for k in range(8): A(f"v_fma_f32 v{XX+k}, v{XX+k}, v41, v{SB+k}")
        for k in range(4): A(f"v_cvt_pk_bf16_f32 v{44+k}, v{XX+2*k}, v{XX+2*k+1}")
    A("ds_write_b128 v10, v[44:47]\nds_write_b32 v56, v57\ns_mov_b32 s70, s98\ns_branch L_c_h2")
    A("L_c_h2s:\ns_sleep 1")
    A("L_c_h2:\nds_read2_b32 v[44:45], v15 offset0:1 offset1:2\ns_waitcnt lgkmcnt(0)")
    tagcheck([44, 45], 57)
    poll_dry("L_c_h2s")
    for ks in range(16): A(f"ds_read_b128 v[{HB[ks]}:{HB[ks]+3}], v12 offset:{ks*64}")
    for ks in range(16):
        A(f"s_waitcnt lgkmcnt({15-ks})")
        mfma32(40, WA[ks], HB[ks], ks == 0)
    A("v_permlane32_swap_b32 v40, v42\nv_permlane32_swap_b32 v41, v43")
    A("v_cvt_pk_bf16_f32 v44, v40, v41\nv_cvt_pk_bf16_f32 v45, v42, v43")
    unpack(40, 41, 44); unpack(42, 43, 45)
    A("""v_mul_f32 v44, s69, v40
v_mul_f32 v45, s69, v41
v_exp_f32 v44, -v44
v_exp_f32 v45, -v45
v_add_f32 v44, 1.0, v44
v_add_f32 v45, 1.0, v45
v_rcp_f32 v44, v44
v_rcp_f32 v45, v45
v_mul_f32 v40, v40, v44
v_mul_f32 v41, v41, v45
v_cvt_pk_bf16_f32 v44, v40, v41""")
    unpack(40, 41, 44)
    A("""v_mul_f32 v40, v40, v42
v_mul_f32 v41, v41, v43
v_cvt_pk_bf16_f32 v44, v40, v41
ds_write_b32 v13, v44
ds_write_b32 v56, v57 offset:16""")
    stamp(9)
    A("L_fin:\ns_cmp_eq_u32 s98, 0\ns_cbranch_scc1 L_dryret")
    finish()
    A("L_stepB:")
    A("s_cmp_lg_u32 s3, 0\ns_cbranch_scc1 L_fin")
    srd(56, 16, 2048)
    srd(60, 38, 2048)
    A(f"""s_lshl_b32 s14, s77, 6
s_add_u32 s14, s14, {WS_G}
s_add_u32 s13, s14, {3*4096}
s_lshl_b32 s15, s77, 5
s_lshl_b32 s72, s77, 13
s_add_u32 s72, s72, {WS_Y}
s_add_u32 s75, s72, 4096
s_lshl_b32 s73, s77, 7
s_add_u32 s73, s73, {WS_X1}
s_mul_i32 s74, s77, 3072
s_add_u32 s74, s74, {WS_OP}
v_lshlrev_b32 v8, 4, v5
v_lshlrev_b32 v9, 4, v1
v_lshlrev_b32 v12, 3, v5
v_lshl_add_u32 v13, v3, 1, v12
v_mov_b32 v10, {OOB:#x}
v_cmp_gt_u32 vcc, 44, v1
v_cndmask_b32 v14, v10, v9, vcc
v_cmp_gt_u32 vcc, 4, v1
v_cndmask_b32 v12, v10, v12, vcc
v_cmp_eq_u32 vcc, 0, v1
v_cndmask_b32 v10, v10, v1, vcc
v_mov_b32 v11, s10
v_and_b32 v15, 1, v3
v_lshlrev_b32 v15, 4, v15
v_sub_u32 v15, 16, v15
s_mov_b32 s12, 0x03020706
s_mov_b32 s68, 0x0c0c0400
v_and_b32 v38, 0xffff, v11
v_lshrrev_b32 v39, 16, v11
v_cmp_gt_u32 vcc, 44, v1
v_cndmask_b32 v40, 0, v38, vcc
v_cndmask_b32 v41, 0, v39, vcc
v_mov_b32 v42, 0xffff0000
v_cmp_eq_u32 vcc, 16, v15
v_cndmask_b32 v43, v39, v38, vcc
v_or_b32 v12, s99, v12
v_or_b32 v10, s99, v10
v_lshlrev_b32 v44, 13, v4
v_lshl_add_u32 v44, v5, 4, v44
v_mov_b32 v45, {OOB:#x}
v_cmp_gt_u32 vcc, {16 if xrep else 4}, v1
v_cndmask_b32 v44, v45, v44, vcc
v_or_b32 v44, s99, v44
s_mov_b32 s70, s98
buffer_load_ushort v16, v13, s[56:59], s15 offen""")
    A("L_b_ga:")
    A("buffer_load_dwordx4 v[20:23], v8, s[52:55], s14 offen sc1\nbuffer_load_dwordx4 v[24:27], v8, s[52:55], s13 offen sc1\ns_waitcnt vmcnt(0)")
    tagcheck([22, 23, 26, 27], 11)
    poll_dry("L_b_ga")
    A("""v_cmp_gt_u32 vcc, 32, v1
v_cndmask_b32 v17, v21, v20, vcc
v_cndmask_b32 v18, v25, v24, vcc
v_lshlrev_b32 v17, v15, v17
v_lshlrev_b32 v18, v15, v18
v_and_b32 v17, 0xffff0000, v17
v_and_b32 v18, 0xffff0000, v18
v_lshlrev_b32 v16, 16, v16""")
    A("s_mov_b32 s70, s98")
    def gatherN(lbl, n, so0, so1, lastv):
        def loads(base):
            for i in range(n):
                A(f"buffer_load_dwordx4 v[{base+4*i}:{base+3+4*i}], v{lastv if i == n - 1 else 9}, s[52:55], {so0 if i < 4 else so1} offen offset:{(i&3)*1024} sc1")
        def check(base, extra):
            for i in range(n):
                r = base + 4 * i
                lo, hi = (40, 41) if (i == n - 1 and lastv != 9) else (38, 39)
                A(f"s_waitcnt vmcnt({n-1-i+extra})")
                A(f"v_perm_b32 v36, v{r+1}, v{r}, s68\nv_perm_b32 v37, v{r+3}, v{r+2}, s68")
                if i: A(f"v_add_f32 v32, v{base if i == 1 else 32}, v{r}\nv_add_f32 v33, v{base+1 if i == 1 else 33}, v{r+1}")
                A(f"v_sad_u8 v28, v36, v{lo}, {'0' if i == 0 else 'v28'}")
                if i: A(f"v_add_f32 v34, v{base+2 if i == 1 else 34}, v{r+2}\nv_add_f32 v35, v{base+3 if i == 1 else 35}, v{r+3}")
                A(f"v_sad_u8 v28, v37, v{hi}, v28")
            A("v_cmp_ne_u32 vcc, 0, v28")
        if not (pp if n == 8 else ppd):
            A(f"{lbl}:"); loads(64); check(64, 0); poll_dry(lbl)
        else:
            done = A.newlabel("L_got")
            A(f"{lbl}:"); loads(64)
            A(f"s_sleep {stag}")
            A(f"{lbl}_l:"); loads(128); check(64, n)
            A(f"s_cbranch_vccz {done}")
            loads(64); check(128, n)
            poll_dry(f"{lbl}_l")
            A(f"{done}:")
    def red16(G, Xr):
        A("""v_permlane32_swap_b32 v32, v34
v_permlane32_swap_b32 v33, v35
v_add_f32 v32, v32, v34
v_add_f32 v33, v33, v35
v_permlane16_swap_b32 v32, v33
v_add_f32 v32, v32, v33
v_add_f32_dpp v32, v32, v32 row_ror:4 row_mask:0xf bank_mask:0xf
v_add_f32_dpp v32, v32, v32 row_ror:8 row_mask:0xf bank_mask:0xf
v_cvt_pk_bf16_f32 v32, v32, v32
v_and_b32 v32, 0xffff0000, v32""")
        A(f"""v_mul_f32 v32, v32, v{G}
v_cvt_pk_bf16_f32 v32, v32, v32
v_and_b32 v32, 0xffff0000, v32
v_add_f32 v32, v32, v{Xr}
v_cvt_pk_bf16_f32 v30, v32, v32""")
    stamp(7)
    gatherN("L_b_y", 8, "s72", "s75", 9)
    stamp(8)
    red16(17, 16)
    A("""v_bfi_b32 v32, v42, v30, v43
v_bfi_b32 v33, v42, v30, v43
v_permlane16_swap_b32 v32, v33
v_mov_b32 v34, v32
v_mov_b32 v35, v33
v_permlane32_swap_b32 v32, v34
v_permlane32_swap_b32 v33, v35
buffer_store_dwordx4 v[32:35], v44, s[52:55], s73 offen sc1""")
    stamp(9)
    A("v_and_b32 v16, 0xffff0000, v30")
    A("s_mov_b32 s70, s98")
    if dsleep: A(f"s_cmp_eq_u32 s98, 0\ns_cbranch_scc1 L_d_op\ns_sleep {dsleep}")
    gatherN("L_d_op", 3, "s74", "s74", 14)
    stamp(10)
    red16(18, 16)
    A("""v_mov_b32 v32, v30
v_mov_b32 v33, v30
v_permlane16_swap_b32 v32, v33
v_perm_b32 v32, v32, v33, s12
v_mov_b32 v33, v32
v_permlane32_swap_b32 v32, v33""")
    A("buffer_store_dwordx2 v[32:33], v12, s[60:63], s15 offen")
    A("s_cmp_lg_u32 s77, 0\ns_cbranch_scc1 L_fin3")
    A("buffer_store_dword v11, v10, s[52:55], 0 offen sc1")
    A("L_fin3:\ns_branch L_fin")
    A("L_service:")
    if prio: A(f"s_setprio {prio}")
    W, TT, BB = 64, 192, 32
    roles()
    A(f"""s_sub_u32 s12, s3, 4
s_lshl_b32 s13, s12, 13
v_lshlrev_b32 v13, 4, v1
v_add_u32 v7, s13, v13
v_lshlrev_b32 v8, 11, v3
v_lshl_add_u32 v8, v4, 8, v8
v_lshl_add_u32 v8, v5, 3, v8
v_add_u32 v8, s13, v8
v_mov_b32 v31, {OOB:#x}
s_mov_b32 s68, {EPS:#x}
s_mov_b32 s69, {LOG2E:#x}
s_waitcnt lgkmcnt(0)""")
    if diag: A("s_mov_b32 s80, s78")
    A("s_load_dword s11, s[42:43], 0")
    srd(52, 42, WS_END)
    if "q" in abl: A("s_cmp_eq_u32 s3, 4\ns_cbranch_scc1 L_s_bar1")
    if "u" in abl: A("s_cmp_eq_u32 s3, 7\ns_cbranch_scc1 L_s_bar1")
    A("""s_cmp_eq_u32 s3, 4
s_cbranch_scc1 L_s_q
s_cmp_eq_u32 s3, 5
s_cbranch_scc1 L_s_warm
s_cmp_eq_u32 s3, 6
s_cbranch_scc1 L_s_bar1
s_cmp_eq_u32 s76, 4
s_cbranch_scc1 L_s_bar1""")
    srd(48, 36, 512 * 6144)
    srd(60, 34, 2048)
    A(f"""s_lshr_b32 s13, s72, 2
s_and_b32 s14, s72, 3
s_lshl_b32 s65, s13, 7
s_mul_i32 s64, s14, {128*6144}
s_add_u32 s65, s65, s64
s_lshl_b32 s64, s14, 8
v_lshrrev_b32 v9, 3, v1
v_mul_u32_u24 v9, 6144, v9
v_and_b32 v11, 7, v1
v_lshl_add_u32 v9, v11, 4, v9
v_lshrrev_b32 v11, 5, v1
v_and_b32 v12, 31, v1
v_lshlrev_b32 v12, 3, v12
v_lshl_add_u32 v14, v11, 10, v12
buffer_load_dwordx2 v[16:17], v14, s[60:63], s64 offen""")
    for i in range(16):
        if i >= SMD: A(f"s_waitcnt vmcnt({SMD-1})")
        A(f"buffer_load_dwordx4 v[{TT+4*i}:{TT+4*i+3}], v9, s[48:51], s65 offen {tpol}")
        if i < 15: A(f"s_add_u32 s65, s65, {8*6144:#x}")
        if i == min(SMD, 16) - 1:
            A(f"""v_lshl_add_u32 v15, v11, 8, v12
v_add_u32 v15, {L_SC}, v15
v_lshlrev_b32 v11, 10, v3
v_lshl_add_u32 v11, v4, 7, v11
v_lshl_add_u32 v11, v5, 3, v11
v_add_u32 v11, {3*8192}, v11
v_and_b32 v28, 1, v4
v_lshlrev_b32 v12, 8, v28
v_lshl_add_u32 v12, v3, 4, v12
v_add_u32 v12, {L_SC}, v12
s_waitcnt vmcnt({i+1})""")
            unpack(20, 21, 16); unpack(22, 23, 17)
            for k in range(4): A(f"v_mul_f32 v{24+k}, s69, v{20+k}")
            for k in range(4): A(f"v_exp_f32 v{24+k}, -v{24+k}")
            for k in range(4): A(f"v_add_f32 v{24+k}, 1.0, v{24+k}")
            for k in range(4): A(f"v_rcp_f32 v{24+k}, v{24+k}")
            for k in range(4): A(f"v_mul_f32 v{20+k}, v{20+k}, v{24+k}")
            A("v_cvt_pk_bf16_f32 v16, v20, v21\nv_cvt_pk_bf16_f32 v17, v22, v23\nds_write_b64 v15, v[16:17]")
            for ks in range(4): A(f"ds_read_b128 v[{BB+4*ks}:{BB+4*ks+3}], v12 offset:{ks*64}")
    for ks in range(4):
        for i in range(4 * ks, 4 * ks + 4):
            A(f"s_waitcnt vmcnt({15 - i})")
            A(f"ds_write_b128 v7, v[{TT+4*i}:{TT+4*i+3}] offset:{(i&7)*1024}")
        for tt in range(4):
            for jh in range(2):
                d = TT + (ks * 4 + tt) * 4 + jh * 2
                A(f"ds_read_b64_tr_b16 v[{d}:{d+1}], v11 offset:{(ks&1)*4096+jh*512+tt*32}")
    for ks in range(4):
        A(f"s_waitcnt lgkmcnt({0 if ks == 3 else 12})")
        for tt in range(4): mfma32(48 + 4 * tt, TT + (ks * 4 + tt) * 4, BB + 4 * ks, ks == 0)
    A("s_add_u32 s10, s11, 0x9e3779b9")
    for tt in range(1, 4):
        A(f"v_cmp_eq_u32 vcc, {tt}, v5")
        for r in range(4): A(f"v_cndmask_b32 v{48+r}, v{48+r}, v{48+4*tt+r}, vcc")
    A(f"""v_cmp_gt_u32 vcc, 8, v2
v_mov_b32 v52, s10
v_cndmask_b32 v48, v51, v48, vcc
v_cndmask_b32 v49, v52, v49, vcc
v_cndmask_b32 v50, v52, v50, vcc
v_mov_b32 v51, s10
s_lshl_b32 s13, s72, 10
s_add_u32 s13, s13, {WS_MP}
buffer_store_dwordx4 v[48:51], v13, s[52:55], s13 offen sc1""")
    stamp(1)
    A("s_branch L_s_bar1")
    A(f"""L_s_warm:
s_getpc_b64 s[66:67]
L_pc:
s_sub_u32 s66, s66, L_pc-{KNAME}
s_subb_u32 s67, s67, 0
s_mul_i32 s13, s5, {WUP*1024}
v_add_u32 v14, s13, v13""")
    for k in range(WUP):
        A(f"v_min_u32 v15, L_codeend-{KNAME}-16, v14\nglobal_load_dwordx4 v[20:23], v15, s[66:67]\nv_add_u32 v14, 1024, v14")
    A("s_branch L_s_bar1")
    A("L_s_q:")
    srd(44, 22, 512 * 8192)
    srd(56, 16, 2048)
    A(f"""v_lshlrev_b32 v6, 13, v3
v_lshl_add_u32 v6, v2, 4, v6
s_lshl_b32 s64, s6, 8
s_lshl_b32 s13, s7, 19
s_add_u32 s64, s64, s13
buffer_load_dwordx4 v[24:27], v13, s[56:59], 0 offen
buffer_load_dwordx4 v[28:31], v13, s[56:59], 0 offen offset:1024""")
    for i in range(16):
        if i >= SQ: A(f"s_waitcnt vmcnt({SQ-1})")
        A(f"buffer_load_dwordx4 v[{W+4*i}:{W+4*i+3}], v6, s[44:47], s64 offen {tpol}")
        if i < 15: A("s_add_u32 s64, s64, 0x8000")
    A(f"""v_and_b32 v63, 7, v1
v_lshrrev_b32 v16, 5, v1
v_and_b32 v19, 1, v3
v_lshlrev_b32 v14, 15, v16
v_lshl_add_u32 v14, v5, 8, v14
v_lshl_add_u32 v14, v19, 6, v14
v_lshl_add_u32 v14, v4, 4, v14
v_bfe_u32 v17, v1, 3, 2
v_lshlrev_b32 v6, 10, v16
v_lshl_add_u32 v6, v17, 8, v6
v_lshl_add_u32 v6, v63, 4, v6
v_lshlrev_b32 v23, 5, v63
v_lshl_add_u32 v23, v17, 3, v23
v_lshl_add_u32 v23, v16, 2, v23
v_add_u32 v23, {L_Q}, v23
v_lshlrev_b32 v18, 3, v2
v_lshl_add_u32 v18, v16, 2, v18
v_lshl_add_u32 v11, v19, 7, v18
v_add_u32 v11, {L_HL}, v11
v_lshl_add_u32 v15, v19, 10, v18
s_lshl_b32 s13, s7, 7
s_add_u32 s13, s13, {L_H2}
v_add_u32 v15, s13, v15
v_bfe_u32 v12, v1, 3, 1
v_lshlrev_b32 v12, 7, v12
v_lshl_add_u32 v12, v3, 4, v12
v_add_u32 v12, {L_HL}, v12
s_waitcnt vmcnt(16)""")
    for b in range(2):
        for k in range(4): unpack(BB + 2 * k, BB + 2 * k + 1, 24 + 4 * b + k)
        layernorm8(BB, BB + 8, "s68")
        A(f"v_add_u32 v16, {L_H2 + 1024*b}, v13\nds_write_b128 v16, v[{BB+12}:{BB+15}]")
    A(f"ds_read_b32 v22, v15\nv_mov_b32 v31, {OOB:#x}")
    for ks in range(2):
        for i in range(8 * ks, 8 * ks + 8):
            A(f"s_waitcnt vmcnt({15 - i})")
            A(f"ds_write_b128 v7, v[{W+4*i}:{W+4*i+3}] offset:{(i&7)*1024}")
        for tt in range(8):
            for jh in range(2):
                d = W + (ks * 8 + tt) * 4 + jh * 2
                A(f"ds_read_b64_tr_b16 v[{d}:{d+1}], v8 offset:{jh*1024+tt*32}")
    A(f"""s_waitcnt lgkmcnt(0)
s_add_u32 s10, s11, 0x9e3779b9
s_lshl_b32 s13, s7, 12
s_add_u32 s13, s13, {WS_MP}
v_mov_b32 v24, s10
v_lshrrev_b32 v60, 1, v13
v_lshrrev_b32 v61, 1, v6
s_lshl_b32 s95, s6, 13
s_lshl_b32 s64, s7, 10
s_add_u32 s64, s64, s95
s_lshr_b32 s92, s64, 1
s_add_u32 s92, s92, {WS_QP8}
s_add_u32 s64, s64, {WS_QP}
s_lshl_b32 s65, s8, 7
s_add_u32 s95, s95, s65
s_lshr_b32 s93, s95, 1
s_add_u32 s93, s93, {WS_QP8}
s_add_u32 s95, s95, {WS_QP}
s_add_u32 s65, s95, 4096
s_mov_b32 s70, {TMO}""")
    unpack(26, 27, 22)
    stamp(1)
    scalar_wait("L_sp1", "s13", [c * 32768 + rq * 1024 + 780 for c in range(2) for rq in range(4)])
    A("L_q_mp:")
    for rq in range(4): A(f"buffer_load_dwordx4 v[{BB+4*rq}:{BB+4*rq+3}], v14, s[52:55], s13 offen offset:{rq*1024} {gpol}")
    for rq in range(4): A(f"buffer_load_dwordx2 v[{48+2*rq}:{49+2*rq}], v14, s[52:55], s13 offen offset:{rq*1024+128} {gpol}")
    A("s_waitcnt vmcnt(0)")
    tagcheck([BB + 3, BB + 7, BB + 11, BB + 15, 49, 51, 53, 55], 24)
    poll_tail("L_q_mp")
    stamp(2)
    def sum4():
        for r in range(3): A(f"v_add_f32 v{BB+r}, v{BB+r}, v{BB+4+r}")
        A(f"v_add_f32 v{BB+3}, v48, v50")
        for r in range(3): A(f"v_add_f32 v{BB+8+r}, v{BB+8+r}, v{BB+12+r}")
        A(f"v_add_f32 v{BB+11}, v52, v54")
        for r in range(4): A(f"v_add_f32 v{BB+r}, v{BB+r}, v{BB+8+r}")
        A(f"v_permlane32_swap_b32 v{BB}, v{BB+2}\nv_permlane32_swap_b32 v{BB+1}, v{BB+3}")
    sum4()
    A(f"v_cvt_pk_bf16_f32 v20, v{BB}, v{BB+1}\nv_cvt_pk_bf16_f32 v21, v{BB+2}, v{BB+3}")
    unpack(18, 19, 21)
    unpack(16, 17, 20)
    A("v_add_f32 v18, 1.0, v18\nv_add_f32 v19, 1.0, v19\nv_cvt_pk_bf16_f32 v21, v18, v19")
    unpack(18, 19, 21)
    A("v_mul_f32 v18, v18, v26\nv_mul_f32 v19, v19, v27\nv_cvt_pk_bf16_f32 v21, v18, v19")
    unpack(18, 19, 21)
    A("v_add_f32 v18, v18, v16\nv_add_f32 v19, v19, v17\nv_cvt_pk_bf16_f32 v21, v18, v19")
    A("ds_write_b32 v11, v21")
    A(f"ds_read_b128 v[{BB}:{BB+3}], v12\nds_read_b128 v[{BB+4}:{BB+7}], v12 offset:64")
    for ks in range(2):
        A(f"s_waitcnt lgkmcnt({1-ks})")
        for tt in range(8): mfma32(TT + 4 * tt, W + (ks * 8 + tt) * 4, BB + 4 * ks, ks == 0)
    A("v_cmp_eq_u32 s[66:67], 1, v63")
    for tt in range(1, 8):
        cur = "s[66:67]" if tt & 1 else "vcc"
        nx = "vcc" if tt & 1 else "s[66:67]"
        if tt < 7: A(f"v_cmp_eq_u32 {nx}, {tt+1}, v63")
        for r in range(4): A(f"v_cndmask_b32 v{TT+r}, v{TT+r}, v{TT+4*tt+r}, {cur}")
    A(f"""v_mov_b32 v{TT+4}, v{TT+3}
v_mov_b32 v{TT+3}, s10
v_mov_b32 v{TT+5}, s10
buffer_store_dwordx4 v[{TT}:{TT+3}], v13, s[52:55], s64 offen sc1
buffer_store_dwordx2 v[{TT+4}:{TT+5}], v60, s[52:55], s92 offen sc1
s_mov_b32 s70, {TMO}""")
    stamp(3)
    scalar_wait("L_sp2", "s95", [r * 1024 + 780 for r in range(8)])
    A("L_q_qp:")
    for m in range(4): A(f"buffer_load_dwordx4 v[{BB+4*m}:{BB+4*m+3}], v6, s[52:55], {'s95' if m < 2 else 's65'} offen offset:{(m&1)*2048} {gpol}")
    for m in range(4): A(f"buffer_load_dwordx2 v[{48+2*m}:{49+2*m}], v61, s[52:55], s93 offen offset:{m*1024} {gpol}")
    A("s_waitcnt vmcnt(0)")
    tagcheck([BB + 3, BB + 7, BB + 11, BB + 15, 49, 51, 53, 55], 24)
    poll_tail("L_q_qp")
    stamp(4)
    sum4()
    A(f"v_add_f32 v{BB}, v{BB}, v{BB+2}\nv_add_f32 v{BB+1}, v{BB+1}, v{BB+3}\nv_cvt_pk_bf16_f32 v20, v{BB}, v{BB+1}")
    A("ds_write_b32 v23, v20")
    A("L_s_bar1:")
    A("s_waitcnt lgkmcnt(0)\ns_add_u32 s10, s11, 0x9e3779b9")
    A("s_barrier\ns_barrier")
    A(f"v_lshlrev_b32 v14, 2, v1\nv_and_b32 v14, 28, v14\nv_add_u32 v14, {L_FL}, v14\nv_mov_b32 v15, s11\nds_write_b32 v14, v15")
    if "c" in abl: A("s_branch L_s_wo")
    if dry:
        A(f"""s_cmp_lg_u32 s3, 7
s_cbranch_scc1 L_nodry
s_mov_b32 s98, 0
s_mov_b32 s99, {OOB:#x}
s_cmp_eq_u32 s76, 4
s_cselect_b32 s3, 0, 1
s_branch L_tail
L_dryret:
s_mov_b32 s3, 7
s_mov_b32 s12, 3
s_mov_b32 s98, {TMO*4}
s_mov_b32 s99, 0
v_mov_b32 v31, {OOB:#x}
v_lshlrev_b32 v13, 4, v1
v_lshlrev_b32 v8, 11, v3
v_lshl_add_u32 v8, v4, 8, v8
v_lshl_add_u32 v8, v5, 3, v8
v_add_u32 v8, {3*8192}, v8
s_waitcnt vmcnt(0) lgkmcnt(0)
L_nodry:""")
    else:
        A("L_dryret:")
    A(f"""s_cmp_lg_u32 s76, 4
s_cbranch_scc1 L_s_wo
s_cmp_lg_u32 s3, 6
s_cbranch_scc1 L_s_wo
v_lshlrev_b32 v14, 15, v3
v_lshl_add_u32 v14, v4, 10, v14
v_lshl_add_u32 v14, v5, 8, v14
s_and_b32 s13, s77, 28
s_lshl_b32 s13, s13, 10
s_lshr_b32 s14, s77, 5
s_lshl_b32 s14, s14, 6
s_add_u32 s13, s13, s14
s_and_b32 s14, s77, 3
s_lshl_b32 s14, s14, 4
s_add_u32 s13, s13, s14
s_add_u32 s13, s13, {WS_MP + 65536}
v_lshlrev_b32 v15, 12, v3
v_lshl_add_u32 v15, v5, 4, v15
v_cmp_eq_u32 vcc, 0, v4
v_cndmask_b32 v15, v31, v15, vcc
s_lshl_b32 s14, s77, 6
s_add_u32 s14, s14, {WS_G}
v_mov_b32 v24, s10
s_mov_b32 s70, {TMO}
L_s_g4p:
buffer_load_dwordx4 v[16:19], v14, s[52:55], s13 offen {gpol}
buffer_load_dwordx2 v[20:21], v14, s[52:55], s13 offen offset:128 {gpol}
s_waitcnt vmcnt(0)""")
    tagcheck([19, 21], 24)
    poll_tail("L_s_g4p", sleep=8)
    for c in ("row_ror:4", "row_ror:8"):
        for r in (16, 17, 18, 20): A(f"v_add_f32_dpp v{r}, v{r}, v{r} {c} row_mask:0xf bank_mask:0xf")
    A("""v_cvt_pk_bf16_f32 v16, v16, v17
v_cvt_pk_bf16_f32 v17, v18, v20
v_mov_b32 v18, s10
v_mov_b32 v19, s10
buffer_store_dwordx4 v[16:19], v15, s[52:55], s14 offen sc1""")
    if x1pre:
        A(f"""v_cmp_gt_u32 vcc, 8, v1
v_cndmask_b32 v15, v31, v13, vcc
v_mov_b32 v20, s11
v_mov_b32 v21, s11
v_mov_b32 v22, s11
v_mov_b32 v23, s11
s_lshl_b32 s13, s77, 7
s_add_u32 s13, s13, {WS_X1}
buffer_store_dwordx4 v[20:23], v15, s[52:55], s13 offen sc1""")
    A("L_s_wo:")
    A("s_load_dwordx2 s[24:25], s[0:1], 32")
    A(f"""v_lshlrev_b32 v14, 10, v3
v_lshl_add_u32 v14, v2, 4, v14
s_lshl_b32 s64, s6, 17
s_lshl_b32 s13, s12, 8
s_add_u32 s64, s64, s13
v_lshlrev_b32 v30, 4, v3
v_cmp_eq_u32 vcc, 0, v2
v_cndmask_b32 v30, v31, v30, vcc
s_lshl_b32 s74, s8, 18
s_lshl_b32 s13, s12, 16
s_add_u32 s74, s74, s13
s_lshl_b32 s13, s6, 2
s_add_u32 s13, s13, s9
s_lshl_b32 s13, s13, 6
s_add_u32 s74, s74, s13
s_add_u32 s74, s74, {WS_Y}
s_waitcnt vmcnt(0) lgkmcnt(0)""")
    if "w" in abl: A("s_branch L_s_now")
    srd(44, 24, 4096 * 1024)
    def wo_stage(i):
        A(f"ds_write_b128 v7, v[{W+4*i}:{W+4*i+3}] offset:{(i&7)*1024}")
        if i & 7 == 7:
            ks = i >> 3
            for tt in range(8):
                for jh in range(2):
                    d = W + (ks * 8 + tt) * 4 + jh * 2
                    A(f"ds_read_b64_tr_b16 v[{d}:{d+1}], v8 offset:{jh*1024+tt*32}")
    for i in range(32):
        if i >= SD:
            A(f"s_waitcnt vmcnt({SD-1})")
        A(f"buffer_load_dwordx4 v[{W+4*i}:{W+4*i+3}], v14, s[44:47], s64 offen {wpol}")
        if i < 31: A("s_addk_i32 s64, 0x1000")
        if i >= SD: wo_stage(i - SD)
    for i in range(max(0, 32 - SD), 32):
        A(f"s_waitcnt vmcnt({31 - i})")
        wo_stage(i)
    A("L_s_now:")
    stamp(5)
    if "f" in abl: A("s_branch L_s_noffn")
    W2 = 208
    A("s_cmp_lg_u32 s76, 1\ns_cbranch_scc1 L_s_noffn")
    A("s_load_dwordx4 s[28:31], s[0:1], 48")
    srd(44, 32, 1376 * 1024)
    A("s_lshl_b32 s64, s77, 15\ns_lshl_b32 s13, s12, 8\ns_add_u32 s64, s64, s13")
    for i in range(8):
        if i >= SF: A(f"s_waitcnt vmcnt({SF-1})")
        A(f"buffer_load_dwordx4 v[{W2+4*i}:{W2+4*i+3}], v14, s[44:47], s64 offen {tpol}\ns_addk_i32 s64, 0x1000")
    A(f"""v_lshrrev_b32 v9, 2, v1
v_mul_u32_u24 v9, 2752, v9
v_lshl_add_u32 v9, v5, 4, v9
s_and_b32 s13, s12, 1
s_mul_i32 s64, s13, {256*2752}
s_lshl_b32 s14, s77, 6
s_add_u32 s64, s64, s14
s_lshl_b32 s65, s12, 14
s_add_u32 s65, s65, {L_EXT}
s_waitcnt lgkmcnt(0)
s_cmp_lt_u32 s12, 2
s_cselect_b32 s44, s28, s30
s_cselect_b32 s45, s29, s31
s_mov_b32 s46, {512*2752:#x}""")
    for i in range(8):
        A(f"s_waitcnt vmcnt({7 - i})\nds_write_b128 v7, v[{W2+4*i}:{W2+4*i+3}] offset:{i*1024}")
    for tt in range(8):
        for jh in range(2):
            A(f"ds_read_b64_tr_b16 v[{W2+4*tt+2*jh}:{W2+4*tt+2*jh+1}], v8 offset:{jh*1024+tt*32}")
    for i in range(16):
        if i >= SF: A(f"s_waitcnt vmcnt({SF-1})")
        A(f"s_mov_b32 m0, s65\nbuffer_load_dwordx4 v9, s[44:47], s64 offen {fpol} lds\ns_add_u32 s64, s64, {16*2752:#x}\ns_addk_i32 s65, 0x400")
    A("L_s_noffn:")
    A(f"""v_mul_u32_u24 v15, {OSTR}, v5
v_lshl_add_u32 v15, v3, 4, v15
v_add_u32 v15, {L_O}, v15
v_and_b32 v10, 1, v1
v_lshlrev_b32 v29, 4, v3
s_mov_b32 s13, {32*3072}
v_mul_lo_u32 v11, v10, s13
v_add_u32 v29, v29, v11
v_cmp_gt_u32 vcc, 2, v2
v_cndmask_b32 v29, v31, v29, vcc
s_mul_i32 s75, s12, {8*3072}
s_lshl_b32 s13, s77, 6
s_add_u32 s75, s75, s13
s_add_u32 s75, s75, {WS_OP}
v_lshlrev_b32 v28, 6, v10
v_lshl_add_u32 v28, v3, 4, v28
v_add_u32 v28, {L_HH}, v28
v_mov_b32 v20, {L_FL}
v_mov_b32 v21, s10
v_mov_b32 v22, 0xffffff00
s_lshr_b32 s92, s10, 8
s_lshr_b32 s93, s10, 16
s_lshr_b32 s94, s10, 24
s_waitcnt vmcnt(0) lgkmcnt(0)""")
    if dry:
        A(f"""s_mov_b32 s98, 0
s_mov_b32 s70, 0
s_mov_b32 s64, s74
s_mov_b32 s65, s75
v_mov_b32 v10, v29
v_mov_b32 v11, v30
v_mov_b32 v29, v31
v_mov_b32 v30, v31
s_branch L_stepA
L_dryret2:
s_mov_b32 s74, s64
s_mov_b32 s75, s65
v_mov_b32 v29, v10
v_mov_b32 v30, v11
s_waitcnt vmcnt(0) lgkmcnt(0)""")
    A(f"s_mov_b32 s98, {TMO*4}\ns_mov_b32 s70, {TMO*4}")
    stamp(6)
    A("s_barrier\nL_stepA:")
    stamp(7)
    if "t" in abl: A("s_branch L_fin2")
    OB, DY = 192, 32
    TAGB = ["s10", "s92", "s93", "s94"]
    for ks in range(4): A(f"ds_read_b128 v[{OB+4*ks}:{OB+4*ks+3}], v15 offset:{ks*64}")
    def ypost(tt):
        D = DY + 4 * tt
        ops = [f"v_add_f32_dpp v{D+r}, v{D+r}, v{D+r} quad_perm:[1,0,3,2] row_mask:0xf bank_mask:0xf" for r in range(4)]
        ops += [f"v_add_f32_dpp v{D+r}, v{D+r}, v{D+r} quad_perm:[2,3,0,1] row_mask:0xf bank_mask:0xf" for r in range(4)]
        ops += [f"v_bfi_b32 v{D+r}, v22, v{D+r}, {TAGB[r]}" for r in range(4)]
        ops += [f"buffer_store_dwordx4 v[{D}:{D+3}], v30, s[52:55], s74 offen sc1" + ("\ns_addk_i32 s74, 0x2000" if tt < 7 else "")]
        return ops
    for tt in range(8):
        D = DY + 4 * tt
        for ks in range(4):
            if tt == 0: A(f"s_waitcnt lgkmcnt({3-ks})")
            mfma32(D, W + (ks * 8 + tt) * 4, OB + 4 * ks, ks == 0)
            if tt >= 2:
                po = ypost(tt - 2)
                for o in po[3 * ks: 3 * ks + 3]: A(o)
                if ks == 3: A(po[12])
    for tt in (6, 7):
        for o in ypost(tt): A(o)
    stamp(8)
    A("s_cmp_lg_u32 s76, 1\ns_cbranch_scc1 L_fin2")
    A("""L_f2:
ds_read_b128 v[24:27], v20 offset:16
ds_read_b128 v[16:19], v28
s_waitcnt lgkmcnt(0)""")
    tagcheck([24, 25, 26, 27], 21)
    poll_dry("L_f2")
    stamp(9)
    def opost(tt):
        D = DY + 4 * tt
        for r in range(4): A(f"v_bfi_b32 v{D+r}, v22, v{D+r}, {TAGB[r]}")
        A(f"buffer_store_dwordx4 v[{D}:{D+3}], v29, s[52:55], s75 offen sc1\ns_addk_i32 s75, 0xc00")
    for tt in range(8):
        mfma32(DY + 4 * tt, W2 + 4 * tt, 16, True)
        if tt >= 2: opost(tt - 2)
    opost(6); opost(7)
    stamp(10)
    A("L_fin2:")
    if dry: A("s_cmp_eq_u32 s98, 0\ns_cbranch_scc1 L_dryret2")
    finish()
    for st in stubs: A(st)
    if diag:
        A("L_dump:")
        A("s_memrealtime s[78:79]\ns_waitcnt lgkmcnt(0)\ns_mov_b32 s91, s78")
        A("v_mov_b32 v8, 0")
        for i in range(12): A(f"v_writelane_b32 v8, s{80+i}, {i}")
        if dbg:
            A("""s_cmp_ge_u32 s3, 4
s_cbranch_scc1 L_bail
s_load_dwordx2 s[40:41], s[0:1], 96
s_not_b32 s12, s80
s_not_b32 s13, s85
s_cmp_eq_u32 s76, 4
s_cselect_b32 s14, s88, 0
s_cselect_b32 s15, s90, 0
v_mov_b32 v8, 0
v_writelane_b32 v8, s12, 0
v_writelane_b32 v8, s80, 1
v_writelane_b32 v8, s81, 2
v_writelane_b32 v8, s82, 3
v_writelane_b32 v8, s83, 4
v_writelane_b32 v8, s13, 5
v_writelane_b32 v8, s85, 6
v_writelane_b32 v8, s14, 7
v_writelane_b32 v8, s15, 8
v_writelane_b32 v8, s91, 9
s_waitcnt lgkmcnt(0)""")
            srd(56, 40, 40)
            A("v_lshlrev_b32 v9, 2, v1\nbuffer_atomic_umax v8, v9, s[56:59], 0 offen sc1")
        else:
            A(f"""s_lshl_b32 s12, s2, 3
s_add_u32 s12, s12, s3
s_lshl_b32 s12, s12, 8
s_add_u32 s12, s12, {WS_STAMP}
s_mov_b32 s54, 0x300000
v_lshlrev_b32 v9, 2, v1
buffer_store_dword v8, v9, s[52:55], s12 offen""")
    A("L_bail:\ns_endpgm")
    A.raw("L_codeend:")
    A.raw(f""".section .rodata,"a"
.p2align 6
.amdhsa_kernel {KNAME}
  .amdhsa_next_free_vgpr 256
  .amdhsa_next_free_sgpr 102
  .amdhsa_accum_offset 256
  .amdhsa_group_segment_fixed_size 0
  .amdhsa_kernarg_size 112
  .amdhsa_user_sgpr_count 2
  .amdhsa_user_sgpr_kernarg_segment_ptr 1
  .amdhsa_system_sgpr_workgroup_id_x 1
  .amdhsa_float_denorm_mode_32 3
.end_amdhsa_kernel""")
    return A.text()

if __name__ == "__main__":
    out = sys.argv[1]
    kw = json.loads(sys.argv[2]) if len(sys.argv) > 2 else {}
    open(out, "w").write(gen(**kw))
```

```python
import sys, json
sys.path.insert(0, "dev")
from asmlib import Asm

KNAME = "adaLN_cond__mha_block_cached__glu_gated_swiglu__decode_kernel"

WS_G, WS_X1, WS_ML, WS_QP, WS_QP8, WS_Y, WS_OP, WS_MP = 0x1000, 0x6000, 0x8000, 0x10000, 0x50000, 0x70000, 0xf0000, 0x150000
WS_X1 = 0x180000
WS_END = 0x188000
WS_STAMP = 0x200000
OSTR = 272
LOG2E = 0x3fb8aa3b
SCALE = 0x3db504f3
EPS = 0x3727c5ac
OOB = 0x7ff00000
TMO = 1 << 18

def gen(R=48, X=28, CAP0=6, CAP=6, diag=False, NB=(128, 128, 128, 128), NBF=None, SD=3, SMD=8, SQ=16, FP=60, shr=3,
        dsleep=30, wpol="", fpol="", gpol="sc1", tpol="nt", kvpol="nt", prio=3, SF=3, abl="", bsleep=0, csleep=0, cpol="sc1", dbg=0, WUP=2, CAP2=None, SW=64, fastc=1, f2sleep=0, dry=1, x1pre=0, pp=1, stag=6, ppx=0, ppd=0, xrep=1, xsleep=0, wmask=31):
    A = Asm()
    NBF = NBF or NB
    assert sum(NB) == 512 and sum(NBF) == 512
    VARS = sorted({(n - w + 3) // 4 for n in list(NB) + list(NBF) for w in range(4)})
    NS = (4 * max(VARS) + 15) // 16
    L_EXT = 32768
    SM = L_EXT + 4096 * X
    SM = max(SM, L_EXT + 65536)
    L_HL, L_SC, L_Q, L_HH, L_FL, L_O, L_DUM, L_H2 = SM, SM + 256, SM + 768, SM + 1024, SM + 1152, SM + 1184, SM + 2272, SM + 3296
    LDS_BYTES = L_H2 + 2048
    assert LDS_BYTES <= 163840

    def stamp(idx):
        if not diag: return
        A("s_memrealtime s[78:79]\ns_waitcnt lgkmcnt(0)")
        A(f"s_mov_b32 s{80+idx}, s78")
    def srd(d, base, nrec, off_lo=None):
        if off_lo is None:
            A(f"s_mov_b32 s{d}, s{base}\ns_mov_b32 s{d+1}, s{base+1}")
        else:
            A(f"s_add_u32 s{d}, s{base}, {off_lo}\ns_addc_u32 s{d+1}, s{base+1}, 0")
        A(f"s_mov_b32 s{d+2}, {nrec if isinstance(nrec, str) else hex(nrec)}\ns_mov_b32 s{d+3}, 0x20000")
    def finish():
        A("s_branch L_dump" if diag else "s_endpgm")
    def poll_tail(lbl, cnt="s70", sleep=0):
        A(f"s_sub_u32 {cnt}, {cnt}, 1\ns_cbranch_scc1 L_bail")
        if sleep:
            ok = A.newlabel("L_ok")
            A(f"s_cbranch_vccz {ok}\ns_sleep {sleep}\ns_branch {lbl}\n{ok}:")
        else:
            A(f"s_cbranch_vccnz {lbl}")
    stubs = []
    def poll_dry(lbl):
        out = A.newlabel("L_out"); to = A.newlabel("L_to")
        A(f"s_sub_u32 s70, s70, 1\ns_cbranch_scc1 {to}\ns_cbranch_vccnz {lbl}\n{out}:")
        stubs.append(f"{to}:\ns_cmp_eq_u32 s98, 0\ns_cbranch_scc1 {out}\ns_endpgm")
    def unpack(lo, hi, src):
        A(f"v_lshlrev_b32 v{lo}, 16, v{src}\nv_and_b32 v{hi}, 0xffff0000, v{src}")
    def allreduce(op, regs):
        for c in ("row_ror:8", "row_ror:4", "row_ror:2", "row_ror:1"):
            for r in regs:
                A(f"{op}_dpp v{r}, v{r}, v{r} {c} row_mask:0xf bank_mask:0xf")
        for r in regs:
            A(f"{op}_dpp v{r}, v{r}, v{r} row_bcast:15 row_mask:0xa bank_mask:0xf")
        for r in regs:
            A(f"{op}_dpp v{r}, v{r}, v{r} row_bcast:31 row_mask:0xc bank_mask:0xf")
    def mfma32(D, a, b, first):
        A(f"v_mfma_f32_16x16x32_bf16 v[{D}:{D+3}], v[{a}:{a+3}], v[{b}:{b+3}], " + ("0" if first else f"v[{D}:{D+3}]"))
    def tagcheck(regs, tagv):
        for i, rr in enumerate(regs):
            if i == 0: A(f"v_cmp_ne_u32 vcc, v{tagv}, v{rr}")
            else: A(f"v_cmp_ne_u32 s[66:67], v{tagv}, v{rr}\ns_or_b64 vcc, vcc, s[66:67]")
    def scalar_wait(lbl, soff, offs):
        A(f"s_add_u32 s96, s42, {soff}\ns_addc_u32 s97, s43, 0\ns_mov_b32 s71, 64")
        A(f"{lbl}:")
        for i, o in enumerate(offs): A(f"s_load_dword s{16+i}, s[96:97], {o} glc")
        A("s_waitcnt lgkmcnt(0)")
        for i in range(len(offs)): A(f"s_xor_b32 s{16+i}, s{16+i}, s10")
        for i in range(1, len(offs)): A(f"s_or_b32 s16, s16, s{16+i}")
        A(f"s_sub_u32 s71, s71, 1\ns_cbranch_scc1 {lbl}x\ns_cmp_lg_u32 s16, 0\ns_cbranch_scc1 {lbl}\n{lbl}x:")
    def roles():
        l = A.newlabel("L_role")
        A(f"""s_lshr_b32 s12, s2, 4
s_lshl_b32 s77, s4, 3
s_and_b32 s13, s12, 7
s_add_u32 s77, s77, s13
s_mov_b32 s72, s77
s_lshr_b32 s76, s12, 3
s_lshl_b32 s76, s76, 2
s_cmp_ge_u32 s9, 2
s_cbranch_scc1 {l}
s_lshl_b32 s72, s4, 4
s_add_u32 s72, s72, s12
s_add_u32 s72, s72, 64
s_lshr_b32 s77, s4, 1
s_mul_i32 s77, s77, 11
s_add_u32 s77, s77, s12
s_cmp_lt_u32 s77, 43
s_cselect_b32 s76, 1, 0
s_cmp_lt_u32 s12, 11
s_cselect_b32 s76, s76, 0
s_cmp_eq_u32 s9, 0
s_cselect_b32 s76, s76, 0
{l}:""")
    def layernorm8(X_, T, eps_s):
        X = X_
        A(f"""v_add_f32 v{T}, v{X}, v{X+1}
v_add_f32 v{T+1}, v{X+2}, v{X+3}
v_add_f32 v{T+2}, v{X+4}, v{X+5}
v_add_f32 v{T+3}, v{X+6}, v{X+7}
v_add_f32 v{T}, v{T}, v{T+1}
v_add_f32 v{T+2}, v{T+2}, v{T+3}
v_add_f32 v{T}, v{T}, v{T+2}""")
        allreduce("v_add_f32", [T])
        A(f"v_readlane_b32 s71, v{T}, 63")
        A(f"v_mov_b32 v{T+1}, 0x3b000000\nv_mul_f32 v{T}, s71, v{T+1}")
        A(f"v_cvt_pk_bf16_f32 v{T+2}, v{T}, v{T}")
        for k in range(8): A(f"v_sub_f32 v{T+4+k}, v{X+k}, v{T}")
        A(f"v_and_b32 v{T+2}, 0xffff0000, v{T+2}")
        A(f"v_mul_f32 v{T+3}, v{T+4}, v{T+4}\nv_mul_f32 v{T}, v{T+5}, v{T+5}")
        for k in range(2, 8, 2):
            A(f"v_fmac_f32 v{T+3}, v{T+4+k}, v{T+4+k}\nv_fmac_f32 v{T}, v{T+5+k}, v{T+5+k}")
        A(f"v_add_f32 v{T+3}, v{T+3}, v{T}")
        steps = ["row_ror:8 row_mask:0xf", "row_ror:4 row_mask:0xf", "row_ror:2 row_mask:0xf", "row_ror:1 row_mask:0xf", "row_bcast:15 row_mask:0xa", "row_bcast:31 row_mask:0xc"]
        fill = [f"v_sub_f32 v{X+k}, v{X+k}, v{T+2}" for k in range(8)] + [f"v_cvt_pk_bf16_f32 v{T+4+k}, v{X+2*k}, v{X+2*k+1}" for k in range(4)]
        for si, st in enumerate(steps):
            A(fill[2 * si]); A(fill[2 * si + 1])
            A(f"v_add_f32_dpp v{T+3}, v{T+3}, v{T+3} {st} bank_mask:0xf")
        unpack(X, X + 1, T + 4)
        A(f"v_readlane_b32 s71, v{T+3}, 63")
        unpack(X + 2, X + 3, T + 5)
        A(f"v_mul_f32 v{T}, s71, v{T+1}")
        unpack(X + 4, X + 5, T + 6)
        A(f"v_cvt_pk_bf16_f32 v{T}, v{T}, v{T}")
        unpack(X + 6, X + 7, T + 7)
        A(f"v_and_b32 v{T}, 0xffff0000, v{T}")
        A(f"v_add_f32 v{T}, {eps_s}, v{T}")
        A(f"v_cvt_pk_bf16_f32 v{T}, v{T}, v{T}\nv_and_b32 v{T}, 0xffff0000, v{T}")
        A(f"v_sqrt_f32 v{T}, v{T}")
        A(f"v_cvt_pk_bf16_f32 v{T}, v{T}, v{T}\nv_and_b32 v{T}, 0xffff0000, v{T}")
        A(f"v_rcp_f32 v{T}, v{T}")
        for k in range(8): A(f"v_mul_f32 v{X+k}, v{X+k}, v{T}")
        for k in range(4): A(f"v_cvt_pk_bf16_f32 v{T+4+k}, v{X+2*k}, v{X+2*k+1}")
        for k in range(4): unpack(X + 2 * k, X + 2 * k + 1, T + 4 + k)

    hdr = open("adaLN_cond__mha_block_cached__glu_gated_swiglu__decode.s.ref").read().split("\n")
    for l in hdr:
        if l.startswith("; @launch"): break
        A.raw(l)
    A.raw(f"; @launch grid=(256,1,1) block=(512,1,1) lds={LDS_BYTES}")
    A.raw('.amdgcn_target "amdgcn-amd-amdhsa--gfx950"\n.text')
    A.raw(f".globl {KNAME}\n.p2align 8\n.type {KNAME},@function\n{KNAME}:")
    A("s_cmp_ge_u32 s2, 256\ns_cbranch_scc1 L_bail")
    A("s_load_dwordx16 s[16:31], s[0:1], 0\ns_load_dwordx8 s[32:39], s[0:1], 64\ns_load_dwordx4 s[40:43], s[0:1], 96")
    if diag:
        for i in range(12): A(f"s_mov_b32 s{80+i}, 0")
        A("s_memrealtime s[78:79]")
    A(f"""v_and_b32 v1, 63, v0
v_lshrrev_b32 v2, 6, v0
v_readfirstlane_b32 s3, v2
s_mov_b32 s98, {TMO*4}
s_mov_b32 s99, 0
s_and_b32 s4, s2, 7
s_lshr_b32 s5, s2, 3
s_lshr_b32 s8, s2, 7
s_lshr_b32 s6, s2, 4
s_and_b32 s6, s6, 7
s_lshl_b32 s6, s6, 2
s_bfe_u32 s7, s2, 0x20001
s_add_u32 s6, s6, s7
s_and_b32 s9, s5, 1
s_lshl_b32 s9, s9, 1
s_and_b32 s7, s2, 1
s_add_u32 s9, s9, s7
s_lshl_b32 s7, s8, 2
s_add_u32 s7, s7, s9
v_and_b32 v2, 15, v1
v_lshrrev_b32 v3, 4, v1
v_bfe_u32 v4, v1, 2, 2
v_and_b32 v5, 3, v1
s_cmp_ge_u32 s3, 4
s_cbranch_scc1 L_service""")
    RING = 256 - 4 * R
    QOP, MSK, DB, OA, SR = 8, 24, 28, 36, 40
    assert RING >= SR + NS
    VK, VV = 6, 7
    base = [0, NB[0], NB[0] + NB[1], NB[0] + NB[1] + NB[2]]
    basef = [0, NBF[0], NBF[0] + NBF[1], NBF[0] + NBF[1] + NBF[2]]
    A(f"""s_lshl_b32 s12, s3, 12
v_lshlrev_b32 v{VK}, 8, v4
v_lshl_add_u32 v{VK}, v3, 6, v{VK}
v_lshl_add_u32 v{VK}, v5, 4, v{VK}
v_add_u32 v{VK}, s12, v{VK}
v_lshlrev_b32 v{VV}, 4, v1
v_add_u32 v{VV}, s12, v{VV}
s_lshl_b32 s13, s2, 19
s_and_b32 s13, s13, 0xff800000
s_lshl_b32 s14, s6, 21
s_and_b32 s14, s14, 0x600000
s_add_u32 s13, s13, s14
s_lshr_b32 s12, s4, 1
s_mul_i32 s12, s12, 11
s_lshr_b32 s15, s2, 4
s_add_u32 s12, s12, s15
s_max_u32 s15, s15, 10
s_add_u32 s12, s12, s15
s_mov_b32 s14, {base[0] | base[1] << 16:#x}
s_mov_b32 s15, {base[2] | base[3] << 16:#x}
s_mov_b32 s75, {NB[0] | NB[1] << 8 | NB[2] << 16 | NB[3] << 24:#x}
s_lshr_b32 s64, s2, 4
s_cmp_lt_u32 s64, 11
s_cselect_b32 s12, s12, 99
s_cmp_lt_u32 s12, 53
s_cselect_b32 s14, {basef[0] | basef[1] << 16:#x}, s14
s_cselect_b32 s15, {basef[2] | basef[3] << 16:#x}, s15
s_cselect_b32 s75, {NBF[0] | NBF[1] << 8 | NBF[2] << 16 | NBF[3] << 24:#x}, s75
s_lshl_b32 s12, s9, 4
s_lshr_b64 s[14:15], s[14:15], s12
s_and_b32 s14, s14, 0xffff
s_lshl_b32 s14, s14, 12
s_add_u32 s13, s13, s14
s_lshl_b32 s12, s9, 3
s_lshr_b32 s75, s75, s12
s_and_b32 s75, s75, 0xff
s_lshl_b32 s74, s75, 12
s_mov_b32 s64, 0
s_mov_b32 s65, 0
s_waitcnt lgkmcnt(0)""")
    if diag: A("s_mov_b32 s80, s78")
    srd(44, 18, "s74", "s13")
    srd(48, 20, "s74", "s13")
    import copy
    class St: pass
    S = St()
    S.issued = []; S.known = 0; S.slot_of = {}; S.free = [RING + 4 * k for k in range(R)][::-1]
    S.n = R + X; S.l = R; S.done = None; S.NP = 4 * min(VARS)
    def kv_load(i, lds=False):
        NP = S.NP
        if not lds: S.slot_of[i] = S.free.pop()
        slot = S.slot_of.get(i)
        j = i % NP
        va, sr, so = (VK, 44, "s64") if i < NP else (VV, 48, "s65")
        if lds:
            if j & 3 == 0: A(f"s_add_u32 m0, s73, {(i - R) * 1024}")
            A(f"buffer_load_dwordx4 v{va}, s[{sr}:{sr+3}], {so} offen offset:{(j&3)*1024} {kvpol} lds")
        else:
            A(f"buffer_load_dwordx4 v[{slot}:{slot+3}], v{va}, s[{sr}:{sr+3}], {so} offen offset:{(j&3)*1024} {kvpol}")
        if j & 3 == 3: A(f"s_addk_i32 {so}, 0x4000")
        S.issued.append(i)
    def wait_out(n):
        if len(S.issued) - S.known > n:
            A(f"s_waitcnt vmcnt({n})")
            S.known = len(S.issued) - n
    def wait_piece(p):
        wait_out(len(S.issued) - 1 - S.issued.index(p))
    assert R % 4 == 0 and X % 4 == 0
    for i in range(CAP0): kv_load(i)
    A("s_load_dword s11, s[42:43], 0")
    A(f"""v_and_b32 v28, 1, v1
v_cmp_eq_u32 vcc, 1, v28
v_mov_b32 v29, 0xffff
v_mov_b32 v30, 0xffff0000
v_cndmask_b32 v29, v29, v30, vcc
v_lshrrev_b32 v28, 1, v2""")
    for r in range(4):
        A(f"v_cmp_eq_u32 vcc, {r}, v28\nv_cndmask_b32 v{MSK+r}, 0, v29, vcc")
    srd(52, 42, WS_END)
    roles()
    A(f"""v_lshrrev_b32 v37, 2, v2
v_lshlrev_b32 v36, 6, v3
v_lshl_add_u32 v36, v37, 4, v36
v_add_u32 v36, {L_Q}, v36
s_mul_i32 s73, s3, {X*1024}
s_add_u32 s73, s73, {L_EXT}
v_lshlrev_b32 v38, 4, v1
v_add_u32 v38, s73, v38
s_sub_u32 s75, s75, s3
s_add_u32 s75, s75, 3
s_lshr_b32 s75, s75, 2
v_mov_b32 v{SR+NS-1}, 0xff800000
v_mov_b32 v{SR+NS-2}, 0xff800000""")
    for i in range(CAP0, R + X):
        wait_out(CAP0 - 1)
        kv_load(i, lds=(i >= R))
    A("s_waitcnt lgkmcnt(0)")
    A("s_add_u32 s10, s11, 0x9e3779b9")
    stamp(1)
    A("s_barrier")
    stamp(2)
    A(f"ds_read_b128 v[{DB}:{DB+3}], v36")
    A("s_waitcnt lgkmcnt(0)")
    for t in range(4):
        A(f"v_cmp_eq_u32 vcc, {t}, v5")
        for r in range(4): A(f"v_cndmask_b32 v{QOP+4*t+r}, 0, v{DB+r}, vcc")
    def post_ops(G):
        u = G & 3; Sg = SR + (G >> 2); D = DB + 4 * (G & 1)
        ops = [f"v_mov_b32_dpp v{Sg}, v{D+u} quad_perm:[0,1,2,3] row_mask:0xf bank_mask:{1<<u:#x}"]
        for b in range(4):
            if b == u: continue
            ops.append(f"v_add_f32_dpp v{Sg}, v{D+b}, v{Sg} row_ror:{4 * ((u - b) % 4)} row_mask:0xf bank_mask:{1<<u:#x}")
        return ops
    def cap(c):
        return CAP2 if (CAP2 and c >= S.NP + SW) else CAP
    def prefill(c):
        while S.n < 2 * S.NP and S.n - c <= cap(c) and S.free:
            wait_out(cap(c) - 1)
            kv_load(S.n)
            S.n += 1
            S.done = c
    def refill(c):
        S.free.append(S.slot_of[c])
        if S.done == c: return
        if S.n < 2 * S.NP and (S.n - c <= CAP or c % shr == shr - 1):
            wait_out(CAP - 1)
            kv_load(S.n)
            S.n += 1
        elif S.l < R + X and len(S.free) >= 2:
            p = S.l; slot = S.slot_of[p] = S.free.pop(0)
            wait_piece(p)
            A(f"ds_read_b128 v[{slot}:{slot+3}], v38 offset:{(p-R)*1024}")
            S.l = p + 1
    def k_step(i):
        slot = S.slot_of[i]
        G = i >> 2; t = i & 3; D = DB + 4 * (G & 1)
        if i == R: A("s_waitcnt lgkmcnt(0)\ns_barrier"); assert S.l == R + X
        wait_piece(i)
        prefill(i)
        mfma32(D, slot, QOP + 4 * t, t == 0)
        po = post_ops(G - 1) if (G > 0 and t >= 2) else None
        if po: A(po[2 * (t - 2)])
        refill(i)
        if po: A(po[2 * (t - 2) + 1])
    ic = 0
    while S.n < S.NP - 1:
        k_step(ic); ic += 1
    assert ic > R
    for v in VARS[1:]:
        A(f"s_cmp_eq_u32 s75, {v}\ns_cbranch_scc1 L_var{v}")
    snap = copy.deepcopy(S.__dict__); hist = list(A.hist)
    T0 = 8; AB = 8
    def sel(i):
        P = SR + (i >> 4); c = i & 15; a = AB + 4 * (i & 1)
        for r in range(4):
            A(f"v_and_b32_dpp v{a+r}, v{P}, v{MSK+r} row_newbcast:{c} row_mask:0xf bank_mask:0xf")
    def ml_loads(hf):
        A(f"""s_load_dwordx16 s[16:31], s[96:97], {hf*128} glc
s_load_dwordx8 s[32:39], s[96:97], {hf*128+64} glc
s_load_dwordx8 s[56:63], s[96:97], {hf*128+96} glc""")
    for v in VARS:
        S.__dict__.update(copy.deepcopy(snap)); A.hist = list(hist)
        NP = S.NP = 4 * v
        ns = (NP + 15) // 16
        A(f"L_var{v}:")
        for i in range(ic, NP): k_step(i)
        for o in post_ops(NP // 4 - 1): A(o)
        stamp(3)
        A(f"s_mov_b32 s12, {SCALE:#x}\ns_mov_b32 s13, {LOG2E:#x}")
        def round_pairs():
            for k in range(0, ns, 2):
                A(f"v_cvt_pk_bf16_f32 v{T0+k//2}, v{SR+k}, v{SR+min(k+1, ns-1)}")
            for k in range(0, ns, 2):
                if k + 1 < ns: unpack(SR + k, SR + k + 1, T0 + k // 2)
                else: A(f"v_lshlrev_b32 v{SR+k}, 16, v{T0+k//2}")
        round_pairs()
        for k in range(ns): A(f"v_mul_f32 v{SR+k}, s12, v{SR+k}")
        round_pairs()
        A(f"v_max3_f32 v{T0}, v{SR}, v{SR+1}, v{SR+2}\nv_max3_f32 v{T0+1}, v{SR+3}, v{SR+4}, v{SR+5}\nv_max3_f32 v{T0}, v{T0}, v{SR+6}, v{SR+7}")
        if ns > 8: A(f"v_max_f32 v{T0+1}, v{T0+1}, v{SR+8}")
        A(f"v_max_f32 v{T0}, v{T0}, v{T0+1}")
        allreduce("v_max_f32", [T0])
        A(f"v_readlane_b32 s73, v{T0}, 63")
        for k in range(ns): A(f"v_subrev_f32 v{SR+k}, s73, v{SR+k}")
        for k in range(ns): A(f"v_mul_f32 v{SR+k}, s13, v{SR+k}")
        for k in range(ns): A(f"v_exp_f32 v{SR+k}, v{SR+k}")
        A(f"""v_add_f32 v{T0}, v{SR}, v{SR+1}
v_add_f32 v{T0+1}, v{SR+2}, v{SR+3}
v_add_f32 v{T0+2}, v{SR+4}, v{SR+5}
v_add_f32 v{T0+3}, v{SR+6}, v{SR+7}
v_add_f32 v{T0}, v{T0}, v{T0+1}
v_add_f32 v{T0+2}, v{T0+2}, v{T0+3}""")
        if ns > 8: A(f"v_add_f32 v{T0}, v{T0}, v{SR+8}")
        A(f"v_add_f32 v18, v{T0}, v{T0+2}")
        for k in range(ns): A(f"v_cvt_pk_bf16_f32 v{SR+k}, v{SR+k}, v{SR+k}")
        allreduce("v_add_f32", [18])
        A(f"""v_mov_b32 v16, s73
v_mov_b32 v17, s10
v_mov_b32 v19, s10
s_lshl_b32 s12, s8, 5
s_add_u32 s12, s12, s6
s_lshl_b32 s12, s12, 8
s_add_u32 s12, s12, {WS_ML}
s_add_u32 s96, s42, s12
s_addc_u32 s97, s43, 0
s_lshl_b32 s13, s9, 6
s_add_u32 s12, s12, s13
s_lshl_b32 s13, s3, 4
s_add_u32 s12, s12, s13
v_mov_b32 v20, {OOB:#x}
v_mov_b32 v21, 0
v_cmp_eq_u32 vcc, 63, v1
v_cndmask_b32 v20, v20, v21, vcc
v_lshlrev_b32 v22, 3, v1
v_add_u32 v22, {L_DUM}, v22
buffer_store_dwordx4 v[16:19], v20, s[52:55], s12 offen sc1""")
        S.issued.append("ml")
        A(f"""s_mul_i32 s12, s3, {OSTR}
s_add_u32 s12, s12, {L_O}
v_lshlrev_b32 v28, 4, v2
v_lshl_add_u32 v28, v3, 3, v28
v_add_u32 v28, s12, v28
v_cmp_gt_u32 vcc, 32, v1
v_cndmask_b32 v28, v22, v28, vcc""")
        stamp(4)
        sel(0)
        for i in range(NP):
            gi = NP + i
            slot = S.slot_of[gi]; a = AB + 4 * (i & 1)
            wait_piece(gi)
            prefill(gi)
            mfma32(OA, a, slot, i == 0)
            if i < NP - 1: sel(i + 1)
            refill(gi)
            if i == NP - FP:
                A(f"s_mov_b32 s70, {TMO}\ns_mov_b32 s13, {LOG2E:#x}\nv_mov_b32 v30, s73\nv_mov_b32 v31, 0")
                ml_loads(0)
            if i in (NP - FP + 16, NP - FP + 32):
                hf = 0 if i == NP - FP + 16 else 1
                regs = [16, 20, 24, 28, 32, 36, 56, 60]
                A(f"s_branch L_fchk{hf}_{v}\nL_fpoll{hf}_{v}:")
                ml_loads(hf)
                A(f"L_fchk{hf}_{v}:\ns_waitcnt lgkmcnt(0)\ns_mov_b32 s12, 0")
                for g in regs:
                    A(f"s_xor_b32 s14, s{g+1}, s10\ns_or_b32 s12, s12, s14\ns_xor_b32 s14, s{g+3}, s10\ns_or_b32 s12, s12, s14")
                A(f"s_sub_u32 s70, s70, 1\ns_cbranch_scc1 L_bail\ns_cmp_lg_u32 s12, 0\ns_cbranch_scc1 L_fpoll{hf}_{v}")
                A("v_mov_b32 v29, v30")
                for g in regs: A(f"v_max_f32 v30, s{g}, v30")
                A("v_sub_f32 v29, v29, v30")
                for k, g in enumerate(regs): A(f"v_sub_f32 v{16+k}, s{g}, v30")
                A("v_mul_f32 v29, s13, v29")
                for k in range(8): A(f"v_mul_f32 v{16+k}, s13, v{16+k}")
                A("v_exp_f32 v29, v29")
                for k in range(8): A(f"v_exp_f32 v{16+k}, v{16+k}")
                A("v_mul_f32 v31, v31, v29")
                for k, g in enumerate(regs): A(f"v_fmac_f32 v31, s{g+2}, v{16+k}")
                if hf == 0:
                    ml_loads(1)
                else:
                    A("""v_sub_f32 v30, s73, v30
v_rcp_f32 v31, v31
v_mul_f32 v30, s13, v30
v_exp_f32 v30, v30
s_load_dwordx2 s[16:17], s[0:1], 0
s_load_dwordx2 s[38:39], s[0:1], 88
v_mul_f32 v30, v30, v31""")
        for r in range(4): A(f"v_mul_f32 v{OA+r}, v30, v{OA+r}")
        A(f"v_cvt_pk_bf16_f32 v32, v{OA}, v{OA+1}\nv_cvt_pk_bf16_f32 v33, v{OA+2}, v{OA+3}")
        A("ds_write_b64 v28, v[32:33]")
        if v != VARS[-1]: A("s_branch L_vdone")
    A("L_vdone:\ns_waitcnt lgkmcnt(0)")
    stamp(5)
    A("s_barrier")
    stamp(6)
    if "t" in abl: A("s_branch L_fin")
    A("""L_tail:
s_cmp_eq_u32 s76, 4
s_cbranch_scc1 L_stepB
s_cmp_lg_u32 s76, 1
s_cbranch_scc1 L_fin""")
    WA = [64 + 4 * k for k in range(16)]; HB = [128 + 4 * k for k in range(16)]
    SB, C1, XX = 16, 24, 32
    A(f"""v_lshlrev_b32 v9, 9, v3
v_lshl_add_u32 v9, v4, 6, v9
v_and_b32 v11, 1, v1
v_lshl_add_u32 v9, v11, 3, v9
v_lshrrev_b32 v10, 1, v5
v_lshl_add_u32 v9, v10, 15, v9
s_lshl_b32 s12, s3, 4
s_add_u32 s14, s12, {L_EXT}
v_add_u32 v9, s14, v9""")
    for ks in range(16):
        for jh in range(2):
            A(f"ds_read_b64_tr_b16 v[{WA[ks]+2*jh}:{WA[ks]+2*jh+1}], v9 offset:{ks*2048+jh*256}")
    A(f"""v_mov_b32 v57, s10
v_lshlrev_b32 v12, 10, v11
v_lshl_add_u32 v12, v3, 4, v12
v_add_u32 v12, {L_H2}, v12
v_lshlrev_b32 v13, 6, v11
v_and_b32 v14, 1, v3
v_lshl_add_u32 v13, v14, 3, v13
v_lshrrev_b32 v14, 1, v3
v_lshl_add_u32 v13, v14, 2, v13
s_add_u32 s12, s12, {L_HH}
v_add_u32 v13, s12, v13
v_lshlrev_b32 v14, 2, v1
v_add_u32 v14, {L_DUM}, v14
s_min_u32 s14, s98, 2
v_cmp_gt_u32 vcc, s14, v2
v_cndmask_b32 v13, v14, v13, vcc
s_mov_b32 s68, {EPS:#x}
s_mov_b32 s69, {LOG2E:#x}
s_mov_b32 s70, s98
v_mov_b32 v15, {L_FL}
s_lshl_b32 s12, s3, 2
s_add_u32 s12, s12, {L_FL}
s_cmp_eq_u32 s98, 0
s_cselect_b32 s12, {L_DUM}, s12
v_mov_b32 v56, s12
s_sub_u32 s13, s3, 1
s_cmp_ge_u32 s13, 2
s_cbranch_scc1 L_c_h2s
s_lshl_b32 s14, s13, 11
s_add_u32 s14, s14, {WS_G + 4096}
s_add_u32 s15, s14, 4096
v_lshlrev_b32 v8, 5, v1
L_c_sbcb:""")
    for k, (so, of) in enumerate((("s14", 0), ("s14", 16), ("s15", 0), ("s15", 16))):
        A(f"buffer_load_dwordx4 v[{40+4*k}:{43+4*k}], v8, s[52:55], {so} offen offset:{of} sc1")
    A("s_waitcnt vmcnt(0)")
    tagcheck([42, 43, 46, 47, 50, 51, 54, 55], 57)
    poll_dry("L_c_sbcb")
    for k, rr in enumerate((40, 41, 44, 45)): unpack(SB + 2 * k, SB + 2 * k + 1, rr)
    for k, rr in enumerate((48, 49, 52, 53)): unpack(C1 + 2 * k, C1 + 2 * k + 1, rr)
    for k in range(8): A(f"v_add_f32 v{C1+k}, 1.0, v{C1+k}")
    for k in range(4): A(f"v_cvt_pk_bf16_f32 v{40+k}, v{C1+2*k}, v{C1+2*k+1}")
    for k in range(4): unpack(C1 + 2 * k, C1 + 2 * k + 1, 40 + k)
    A(f"""s_lshl_b32 s14, s13, 10
s_add_u32 s15, s14, {L_H2}
s_cmp_eq_u32 s98, 0
s_cselect_b32 s15, {L_DUM}, s15
s_lshl_b32 s14, s13, 12
s_add_u32 s14, s14, {WS_X1}
s_lshr_b32 s12, s4, 1
s_lshl_b32 s12, s12, {13 if xrep else 31}
s_andn2_b32 s12, s12, 0x80000000
s_add_u32 s14, s14, s12
v_lshlrev_b32 v8, 4, v1
v_add_u32 v10, s15, v8
v_lshrrev_b32 v8, 1, v1
v_lshlrev_b32 v8, 7, v8
v_lshl_add_u32 v8, v11, 5, v8
s_mov_b32 s12, 0x05040100
s_waitcnt lgkmcnt(0)""")
    stamp(7)
    def x1_loads(b):
        A(f"buffer_load_dwordx4 v[{b}:{b+3}], v8, s[52:55], s14 offen sc1\nbuffer_load_dwordx4 v[{b+4}:{b+7}], v8, s[52:55], s14 offen offset:16 sc1")
    def x1_check(b, extra):
        A(f"s_waitcnt vmcnt({extra})")
        for k in range(4): A(f"v_perm_b32 v{40+k}, v{b+2*k+1}, v{b+2*k}, s12")
        for k in range(4):
            A(f"v_sad_u8 v44, v{40+k}, v57, {'0' if k == 0 else 'v44'}")
            A(f"v_and_b32 v{XX+2*k}, 0xffff0000, v{b+2*k}\nv_and_b32 v{XX+2*k+1}, 0xffff0000, v{b+2*k+1}")
        A("v_cmp_ne_u32 vcc, 0, v44")
    A("s_mov_b32 s70, s98")
    if not ppx:
        if xsleep: A(f"s_branch L_c_x1\nL_c_x1s:\ns_sleep {xsleep}")
        A("L_c_x1:"); x1_loads(192); x1_check(192, 0); poll_dry("L_c_x1s" if xsleep else "L_c_x1")
    else:
        x1_loads(192)
        A(f"s_sleep {stag}\nL_c_x1:"); x1_loads(200); x1_check(192, 2)
        A("s_cbranch_vccz L_c_got")
        x1_loads(192); x1_check(200, 2)
        poll_dry("L_c_x1")
        A("L_c_got:")
    stamp(8)
    if not fastc:
        layernorm8(XX, 44, "s68")
        for k in range(8): A(f"v_mul_f32 v{XX+k}, v{XX+k}, v{C1+k}")
        for k in range(4): A(f"v_cvt_pk_bf16_f32 v{44+k}, v{XX+2*k}, v{XX+2*k+1}")
        for k in range(4): unpack(XX + 2 * k, XX + 2 * k + 1, 44 + k)
        for k in range(8): A(f"v_add_f32 v{XX+k}, v{XX+k}, v{SB+k}")
        for k in range(4): A(f"v_cvt_pk_bf16_f32 v{44+k}, v{XX+2*k}, v{XX+2*k+1}")
    else:
        A(f"v_readfirstlane_b32 s71, v{XX}")
        Dd = 44
        for k in range(8): A(f"v_subrev_f32 v{Dd+k}, s71, v{XX+k}")
        A(f"""v_add_f32 v40, v{Dd}, v{Dd+1}
v_mul_f32 v41, v{Dd}, v{Dd}
v_add_f32 v42, v{Dd+2}, v{Dd+3}
v_mul_f32 v43, v{Dd+1}, v{Dd+1}
v_add_f32 v52, v{Dd+4}, v{Dd+5}
v_fmac_f32 v41, v{Dd+2}, v{Dd+2}
v_add_f32 v53, v{Dd+6}, v{Dd+7}
v_fmac_f32 v43, v{Dd+3}, v{Dd+3}
v_add_f32 v40, v40, v42
v_fmac_f32 v41, v{Dd+4}, v{Dd+4}
v_add_f32 v52, v52, v53
v_fmac_f32 v43, v{Dd+5}, v{Dd+5}
v_fmac_f32 v41, v{Dd+6}, v{Dd+6}
v_fmac_f32 v43, v{Dd+7}, v{Dd+7}
v_add_f32 v40, v40, v52
v_add_f32 v41, v41, v43""")
        allreduce("v_add_f32", [40, 41])
        A(f"""v_readlane_b32 s72, v40, 63
v_readlane_b32 s73, v41, 63
v_mov_b32 v42, 0x3b000000
v_mul_f32 v40, s72, v42
v_mul_f32 v41, s73, v42
v_add_f32 v43, s71, v40
v_fma_f32 v41, -v40, v40, v41
v_cvt_pk_bf16_f32 v43, v43, v43
v_max_f32 v41, 0, v41
v_and_b32 v43, 0xffff0000, v43
v_cvt_pk_bf16_f32 v41, v41, v41
v_sub_f32 v{XX}, v{XX}, v43
v_and_b32 v41, 0xffff0000, v41
v_sub_f32 v{XX+1}, v{XX+1}, v43
v_add_f32 v41, s68, v41
v_sub_f32 v{XX+2}, v{XX+2}, v43
v_cvt_pk_bf16_f32 v41, v41, v41
v_sub_f32 v{XX+3}, v{XX+3}, v43
v_and_b32 v41, 0xffff0000, v41
v_sub_f32 v{XX+4}, v{XX+4}, v43
v_sqrt_f32 v41, v41
v_sub_f32 v{XX+5}, v{XX+5}, v43
v_sub_f32 v{XX+6}, v{XX+6}, v43
v_cvt_pk_bf16_f32 v41, v41, v41
v_sub_f32 v{XX+7}, v{XX+7}, v43
v_and_b32 v41, 0xffff0000, v41""")
        for k in range(4): A(f"v_mul_f32 v{XX+k}, v{XX+k}, v{C1+k}")
        A("v_rcp_f32 v41, v41")
        for k in range(4, 8): A(f"v_mul_f32 v{XX+k}, v{XX+k}, v{C1+k}")
        for k in range(8): A(f"v_fma_f32 v{XX+k}, v{XX+k}, v41, v{SB+k}")
        for k in range(4): A(f"v_cvt_pk_bf16_f32 v{44+k}, v{XX+2*k}, v{XX+2*k+1}")
    A("ds_write_b128 v10, v[44:47]\nds_write_b32 v56, v57\ns_mov_b32 s70, s98\ns_branch L_c_h2")
    A("L_c_h2s:\ns_sleep 1")
    A("L_c_h2:\nds_read2_b32 v[44:45], v15 offset0:1 offset1:2\ns_waitcnt lgkmcnt(0)")
    tagcheck([44, 45], 57)
    poll_dry("L_c_h2s")
    for ks in range(16): A(f"ds_read_b128 v[{HB[ks]}:{HB[ks]+3}], v12 offset:{ks*64}")
    for ks in range(16):
        A(f"s_waitcnt lgkmcnt({15-ks})")
        mfma32(40, WA[ks], HB[ks], ks == 0)
    A("v_permlane32_swap_b32 v40, v42\nv_permlane32_swap_b32 v41, v43")
    A("v_cvt_pk_bf16_f32 v44, v40, v41\nv_cvt_pk_bf16_f32 v45, v42, v43")
    unpack(40, 41, 44); unpack(42, 43, 45)
    A("""v_mul_f32 v44, s69, v40
v_mul_f32 v45, s69, v41
v_exp_f32 v44, -v44
v_exp_f32 v45, -v45
v_add_f32 v44, 1.0, v44
v_add_f32 v45, 1.0, v45
v_rcp_f32 v44, v44
v_rcp_f32 v45, v45
v_mul_f32 v40, v40, v44
v_mul_f32 v41, v41, v45
v_cvt_pk_bf16_f32 v44, v40, v41""")
    unpack(40, 41, 44)
    A("""v_mul_f32 v40, v40, v42
v_mul_f32 v41, v41, v43
v_cvt_pk_bf16_f32 v44, v40, v41
ds_write_b32 v13, v44
ds_write_b32 v56, v57 offset:16""")
    stamp(9)
    A("L_fin:\ns_cmp_eq_u32 s98, 0\ns_cbranch_scc1 L_dryret")
    finish()
    A("L_stepB:")
    A("s_cmp_lg_u32 s3, 0\ns_cbranch_scc1 L_fin")
    srd(56, 16, 2048)
    srd(60, 38, 2048)
    A(f"""s_lshl_b32 s14, s77, 6
s_add_u32 s14, s14, {WS_G}
s_add_u32 s13, s14, {3*4096}
s_lshl_b32 s15, s77, 5
s_lshl_b32 s72, s77, 13
s_add_u32 s72, s72, {WS_Y}
s_add_u32 s75, s72, 4096
s_lshl_b32 s73, s77, 7
s_add_u32 s73, s73, {WS_X1}
s_mul_i32 s74, s77, 3072
s_add_u32 s74, s74, {WS_OP}
v_lshlrev_b32 v8, 4, v5
v_lshlrev_b32 v9, 4, v1
v_lshlrev_b32 v12, 3, v5
v_lshl_add_u32 v13, v3, 1, v12
v_mov_b32 v10, {OOB:#x}
v_cmp_gt_u32 vcc, 44, v1
v_cndmask_b32 v14, v10, v9, vcc
v_cmp_gt_u32 vcc, 4, v1
v_cndmask_b32 v12, v10, v12, vcc
v_cmp_eq_u32 vcc, 0, v1
v_cndmask_b32 v10, v10, v1, vcc
v_mov_b32 v11, s10
v_and_b32 v15, 1, v3
v_lshlrev_b32 v15, 4, v15
v_sub_u32 v15, 16, v15
s_mov_b32 s12, 0x03020706
s_mov_b32 s68, 0x0c0c0400
v_and_b32 v38, 0xffff, v11
v_lshrrev_b32 v39, 16, v11
v_cmp_gt_u32 vcc, 44, v1
v_cndmask_b32 v40, 0, v38, vcc
v_cndmask_b32 v41, 0, v39, vcc
v_mov_b32 v42, 0xffff0000
v_cmp_eq_u32 vcc, 16, v15
v_cndmask_b32 v43, v39, v38, vcc
v_or_b32 v12, s99, v12
v_or_b32 v10, s99, v10
v_lshlrev_b32 v44, 13, v4
v_lshl_add_u32 v44, v5, 4, v44
v_mov_b32 v45, {OOB:#x}
v_cmp_gt_u32 vcc, {16 if xrep else 4}, v1
v_cndmask_b32 v44, v45, v44, vcc
v_or_b32 v44, s99, v44
s_mov_b32 s70, s98
buffer_load_ushort v16, v13, s[56:59], s15 offen""")
    A("L_b_ga:")
    A("buffer_load_dwordx4 v[20:23], v8, s[52:55], s14 offen sc1\nbuffer_load_dwordx4 v[24:27], v8, s[52:55], s13 offen sc1\ns_waitcnt vmcnt(0)")
    tagcheck([22, 23, 26, 27], 11)
    poll_dry("L_b_ga")
    A("""v_cmp_gt_u32 vcc, 32, v1
v_cndmask_b32 v17, v21, v20, vcc
v_cndmask_b32 v18, v25, v24, vcc
v_lshlrev_b32 v17, v15, v17
v_lshlrev_b32 v18, v15, v18
v_and_b32 v17, 0xffff0000, v17
v_and_b32 v18, 0xffff0000, v18
v_lshlrev_b32 v16, 16, v16""")
    A("s_mov_b32 s70, s98")
    def gatherN(lbl, n, so0, so1, lastv):
        def loads(base):
            for i in range(n):
                A(f"buffer_load_dwordx4 v[{base+4*i}:{base+3+4*i}], v{lastv if i == n - 1 else 9}, s[52:55], {so0 if i < 4 else so1} offen offset:{(i&3)*1024} sc1")
        def check(base, extra):
            for i in range(n):
                r = base + 4 * i
                lo, hi = (40, 41) if (i == n - 1 and lastv != 9) else (38, 39)
                A(f"s_waitcnt vmcnt({n-1-i+extra})")
                A(f"v_perm_b32 v36, v{r+1}, v{r}, s68\nv_perm_b32 v37, v{r+3}, v{r+2}, s68")
                if i: A(f"v_add_f32 v32, v{base if i == 1 else 32}, v{r}\nv_add_f32 v33, v{base+1 if i == 1 else 33}, v{r+1}")
                A(f"v_sad_u8 v28, v36, v{lo}, {'0' if i == 0 else 'v28'}")
                if i: A(f"v_add_f32 v34, v{base+2 if i == 1 else 34}, v{r+2}\nv_add_f32 v35, v{base+3 if i == 1 else 35}, v{r+3}")
                A(f"v_sad_u8 v28, v37, v{hi}, v28")
            A("v_cmp_ne_u32 vcc, 0, v28")
        if not (pp if n == 8 else ppd):
            A(f"{lbl}:"); loads(64); check(64, 0); poll_dry(lbl)
        else:
            done = A.newlabel("L_got")
            A(f"{lbl}:"); loads(64)
            A(f"s_sleep {stag}")
            A(f"{lbl}_l:"); loads(128); check(64, n)
            A(f"s_cbranch_vccz {done}")
            loads(64); check(128, n)
            poll_dry(f"{lbl}_l")
            A(f"{done}:")
    def red16(G, Xr):
        A("""v_permlane32_swap_b32 v32, v34
v_permlane32_swap_b32 v33, v35
v_add_f32 v32, v32, v34
v_add_f32 v33, v33, v35
v_permlane16_swap_b32 v32, v33
v_add_f32 v32, v32, v33
v_add_f32_dpp v32, v32, v32 row_ror:4 row_mask:0xf bank_mask:0xf
v_add_f32_dpp v32, v32, v32 row_ror:8 row_mask:0xf bank_mask:0xf
v_cvt_pk_bf16_f32 v32, v32, v32
v_and_b32 v32, 0xffff0000, v32""")
        A(f"""v_mul_f32 v32, v32, v{G}
v_cvt_pk_bf16_f32 v32, v32, v32
v_and_b32 v32, 0xffff0000, v32
v_add_f32 v32, v32, v{Xr}
v_cvt_pk_bf16_f32 v30, v32, v32""")
    stamp(7)
    gatherN("L_b_y", 8, "s72", "s75", 9)
    stamp(8)
    red16(17, 16)
    A("""v_bfi_b32 v32, v42, v30, v43
v_bfi_b32 v33, v42, v30, v43
v_permlane16_swap_b32 v32, v33
v_mov_b32 v34, v32
v_mov_b32 v35, v33
v_permlane32_swap_b32 v32, v34
v_permlane32_swap_b32 v33, v35
buffer_store_dwordx4 v[32:35], v44, s[52:55], s73 offen sc1""")
    stamp(9)
    A("v_and_b32 v16, 0xffff0000, v30")
    A("s_mov_b32 s70, s98")
    if dsleep: A(f"s_cmp_eq_u32 s98, 0\ns_cbranch_scc1 L_d_op\ns_sleep {dsleep}")
    gatherN("L_d_op", 3, "s74", "s74", 14)
    stamp(10)
    red16(18, 16)
    A("""v_mov_b32 v32, v30
v_mov_b32 v33, v30
v_permlane16_swap_b32 v32, v33
v_perm_b32 v32, v32, v33, s12
v_mov_b32 v33, v32
v_permlane32_swap_b32 v32, v33""")
    A("buffer_store_dwordx2 v[32:33], v12, s[60:63], s15 offen")
    A("s_cmp_lg_u32 s77, 0\ns_cbranch_scc1 L_fin3")
    A("buffer_store_dword v11, v10, s[52:55], 0 offen sc1")
    A("L_fin3:\ns_branch L_fin")
    A("L_service:")
    if prio: A(f"s_setprio {prio}")
    W, TT, BB = 64, 192, 32
    roles()
    A(f"""s_sub_u32 s12, s3, 4
s_lshl_b32 s13, s12, 13
v_lshlrev_b32 v13, 4, v1
v_add_u32 v7, s13, v13
v_lshlrev_b32 v8, 11, v3
v_lshl_add_u32 v8, v4, 8, v8
v_lshl_add_u32 v8, v5, 3, v8
v_add_u32 v8, s13, v8
v_mov_b32 v31, {OOB:#x}
s_mov_b32 s68, {EPS:#x}
s_mov_b32 s69, {LOG2E:#x}
s_waitcnt lgkmcnt(0)""")
    if diag: A("s_mov_b32 s80, s78")
    A("s_load_dword s11, s[42:43], 0")
    srd(52, 42, WS_END)
    if "q" in abl: A("s_cmp_eq_u32 s3, 4\ns_cbranch_scc1 L_s_bar1")
    if "u" in abl: A("s_cmp_eq_u32 s3, 7\ns_cbranch_scc1 L_s_bar1")
    A("""s_cmp_eq_u32 s3, 4
s_cbranch_scc1 L_s_q
s_cmp_eq_u32 s3, 5
s_cbranch_scc1 L_s_warm
s_cmp_eq_u32 s3, 6
s_cbranch_scc1 L_s_bar1
s_cmp_eq_u32 s76, 4
s_cbranch_scc1 L_s_bar1""")
    srd(48, 36, 512 * 6144)
    srd(60, 34, 2048)
    A(f"""s_lshr_b32 s13, s72, 2
s_and_b32 s14, s72, 3
s_lshl_b32 s65, s13, 7
s_mul_i32 s64, s14, {128*6144}
s_add_u32 s65, s65, s64
s_lshl_b32 s64, s14, 8
v_lshrrev_b32 v9, 3, v1
v_mul_u32_u24 v9, 6144, v9
v_and_b32 v11, 7, v1
v_lshl_add_u32 v9, v11, 4, v9
v_lshrrev_b32 v11, 5, v1
v_and_b32 v12, 31, v1
v_lshlrev_b32 v12, 3, v12
v_lshl_add_u32 v14, v11, 10, v12
buffer_load_dwordx2 v[16:17], v14, s[60:63], s64 offen""")
    for i in range(16):
        if i >= SMD: A(f"s_waitcnt vmcnt({SMD-1})")
        A(f"buffer_load_dwordx4 v[{TT+4*i}:{TT+4*i+3}], v9, s[48:51], s65 offen {tpol}")
        if i < 15: A(f"s_add_u32 s65, s65, {8*6144:#x}")
        if i == min(SMD, 16) - 1:
            A(f"""v_lshl_add_u32 v15, v11, 8, v12
v_add_u32 v15, {L_SC}, v15
v_lshlrev_b32 v11, 10, v3
v_lshl_add_u32 v11, v4, 7, v11
v_lshl_add_u32 v11, v5, 3, v11
v_add_u32 v11, {3*8192}, v11
v_and_b32 v28, 1, v4
v_lshlrev_b32 v12, 8, v28
v_lshl_add_u32 v12, v3, 4, v12
v_add_u32 v12, {L_SC}, v12
s_waitcnt vmcnt({i+1})""")
            unpack(20, 21, 16); unpack(22, 23, 17)
            for k in range(4): A(f"v_mul_f32 v{24+k}, s69, v{20+k}")
            for k in range(4): A(f"v_exp_f32 v{24+k}, -v{24+k}")
            for k in range(4): A(f"v_add_f32 v{24+k}, 1.0, v{24+k}")
            for k in range(4): A(f"v_rcp_f32 v{24+k}, v{24+k}")
            for k in range(4): A(f"v_mul_f32 v{20+k}, v{20+k}, v{24+k}")
            A("v_cvt_pk_bf16_f32 v16, v20, v21\nv_cvt_pk_bf16_f32 v17, v22, v23\nds_write_b64 v15, v[16:17]")
            for ks in range(4): A(f"ds_read_b128 v[{BB+4*ks}:{BB+4*ks+3}], v12 offset:{ks*64}")
    for ks in range(4):
        for i in range(4 * ks, 4 * ks + 4):
            A(f"s_waitcnt vmcnt({15 - i})")
            A(f"ds_write_b128 v7, v[{TT+4*i}:{TT+4*i+3}] offset:{(i&7)*1024}")
        for tt in range(4):
            for jh in range(2):
                d = TT + (ks * 4 + tt) * 4 + jh * 2
                A(f"ds_read_b64_tr_b16 v[{d}:{d+1}], v11 offset:{(ks&1)*4096+jh*512+tt*32}")
    for ks in range(4):
        A(f"s_waitcnt lgkmcnt({0 if ks == 3 else 12})")
        for tt in range(4): mfma32(48 + 4 * tt, TT + (ks * 4 + tt) * 4, BB + 4 * ks, ks == 0)
    A("s_add_u32 s10, s11, 0x9e3779b9")
    for tt in range(1, 4):
        A(f"v_cmp_eq_u32 vcc, {tt}, v5")
        for r in range(4): A(f"v_cndmask_b32 v{48+r}, v{48+r}, v{48+4*tt+r}, vcc")
    A(f"""v_cmp_gt_u32 vcc, 8, v2
v_mov_b32 v52, s10
v_cndmask_b32 v48, v51, v48, vcc
v_cndmask_b32 v49, v52, v49, vcc
v_cndmask_b32 v50, v52, v50, vcc
v_mov_b32 v51, s10
s_lshl_b32 s13, s72, 10
s_add_u32 s13, s13, {WS_MP}
buffer_store_dwordx4 v[48:51], v13, s[52:55], s13 offen sc1""")
    stamp(1)
    A("s_branch L_s_bar1")
    A(f"""L_s_warm:
s_getpc_b64 s[66:67]
L_pc:
s_sub_u32 s66, s66, L_pc-{KNAME}
s_subb_u32 s67, s67, 0
s_and_b32 s13, s5, {wmask}
s_mul_i32 s13, s13, {WUP*1024}
v_add_u32 v14, s13, v13""")
    for k in range(WUP):
        if k >= 4: A("s_waitcnt vmcnt(3)")
        A(f"v_min_u32 v15, L_codeend-{KNAME}-16, v14\nglobal_load_dwordx4 v[20:23], v15, s[66:67]\nv_add_u32 v14, 1024, v14")
    A("s_branch L_s_bar1")
    A("L_s_q:")
    srd(44, 22, 512 * 8192)
    srd(56, 16, 2048)
    A(f"""v_lshlrev_b32 v6, 13, v3
v_lshl_add_u32 v6, v2, 4, v6
s_lshl_b32 s64, s6, 8
s_lshl_b32 s13, s7, 19
s_add_u32 s64, s64, s13
buffer_load_dwordx4 v[24:27], v13, s[56:59], 0 offen
buffer_load_dwordx4 v[28:31], v13, s[56:59], 0 offen offset:1024""")
    for i in range(16):
        if i >= SQ: A(f"s_waitcnt vmcnt({SQ-1})")
        A(f"buffer_load_dwordx4 v[{W+4*i}:{W+4*i+3}], v6, s[44:47], s64 offen {tpol}")
        if i < 15: A("s_add_u32 s64, s64, 0x8000")
    A(f"""v_and_b32 v63, 7, v1
v_lshrrev_b32 v16, 5, v1
v_and_b32 v19, 1, v3
v_lshlrev_b32 v14, 15, v16
v_lshl_add_u32 v14, v5, 8, v14
v_lshl_add_u32 v14, v19, 6, v14
v_lshl_add_u32 v14, v4, 4, v14
v_bfe_u32 v17, v1, 3, 2
v_lshlrev_b32 v6, 10, v16
v_lshl_add_u32 v6, v17, 8, v6
v_lshl_add_u32 v6, v63, 4, v6
v_lshlrev_b32 v23, 5, v63
v_lshl_add_u32 v23, v17, 3, v23
v_lshl_add_u32 v23, v16, 2, v23
v_add_u32 v23, {L_Q}, v23
v_lshlrev_b32 v18, 3, v2
v_lshl_add_u32 v18, v16, 2, v18
v_lshl_add_u32 v11, v19, 7, v18
v_add_u32 v11, {L_HL}, v11
v_lshl_add_u32 v15, v19, 10, v18
s_lshl_b32 s13, s7, 7
s_add_u32 s13, s13, {L_H2}
v_add_u32 v15, s13, v15
v_bfe_u32 v12, v1, 3, 1
v_lshlrev_b32 v12, 7, v12
v_lshl_add_u32 v12, v3, 4, v12
v_add_u32 v12, {L_HL}, v12
s_waitcnt vmcnt(16)""")
    for b in range(2):
        for k in range(4): unpack(BB + 2 * k, BB + 2 * k + 1, 24 + 4 * b + k)
        layernorm8(BB, BB + 8, "s68")
        A(f"v_add_u32 v16, {L_H2 + 1024*b}, v13\nds_write_b128 v16, v[{BB+12}:{BB+15}]")
    A(f"ds_read_b32 v22, v15\nv_mov_b32 v31, {OOB:#x}")
    for ks in range(2):
        for i in range(8 * ks, 8 * ks + 8):
            A(f"s_waitcnt vmcnt({15 - i})")
            A(f"ds_write_b128 v7, v[{W+4*i}:{W+4*i+3}] offset:{(i&7)*1024}")
        for tt in range(8):
            for jh in range(2):
                d = W + (ks * 8 + tt) * 4 + jh * 2
                A(f"ds_read_b64_tr_b16 v[{d}:{d+1}], v8 offset:{jh*1024+tt*32}")
    A(f"""s_waitcnt lgkmcnt(0)
s_add_u32 s10, s11, 0x9e3779b9
s_lshl_b32 s13, s7, 12
s_add_u32 s13, s13, {WS_MP}
v_mov_b32 v24, s10
v_lshrrev_b32 v60, 1, v13
v_lshrrev_b32 v61, 1, v6
s_lshl_b32 s95, s6, 13
s_lshl_b32 s64, s7, 10
s_add_u32 s64, s64, s95
s_lshr_b32 s92, s64, 1
s_add_u32 s92, s92, {WS_QP8}
s_add_u32 s64, s64, {WS_QP}
s_lshl_b32 s65, s8, 7
s_add_u32 s95, s95, s65
s_lshr_b32 s93, s95, 1
s_add_u32 s93, s93, {WS_QP8}
s_add_u32 s95, s95, {WS_QP}
s_add_u32 s65, s95, 4096
s_mov_b32 s70, {TMO}""")
    unpack(26, 27, 22)
    stamp(1)
    scalar_wait("L_sp1", "s13", [c * 32768 + rq * 1024 + 780 for c in range(2) for rq in range(4)])
    A("L_q_mp:")
    for rq in range(4): A(f"buffer_load_dwordx4 v[{BB+4*rq}:{BB+4*rq+3}], v14, s[52:55], s13 offen offset:{rq*1024} {gpol}")
    for rq in range(4): A(f"buffer_load_dwordx2 v[{48+2*rq}:{49+2*rq}], v14, s[52:55], s13 offen offset:{rq*1024+128} {gpol}")
    A("s_waitcnt vmcnt(0)")
    tagcheck([BB + 3, BB + 7, BB + 11, BB + 15, 49, 51, 53, 55], 24)
    poll_tail("L_q_mp")
    stamp(2)
    def sum4():
        for r in range(3): A(f"v_add_f32 v{BB+r}, v{BB+r}, v{BB+4+r}")
        A(f"v_add_f32 v{BB+3}, v48, v50")
        for r in range(3): A(f"v_add_f32 v{BB+8+r}, v{BB+8+r}, v{BB+12+r}")
        A(f"v_add_f32 v{BB+11}, v52, v54")
        for r in range(4): A(f"v_add_f32 v{BB+r}, v{BB+r}, v{BB+8+r}")
        A(f"v_permlane32_swap_b32 v{BB}, v{BB+2}\nv_permlane32_swap_b32 v{BB+1}, v{BB+3}")
    sum4()
    A(f"v_cvt_pk_bf16_f32 v20, v{BB}, v{BB+1}\nv_cvt_pk_bf16_f32 v21, v{BB+2}, v{BB+3}")
    unpack(18, 19, 21)
    unpack(16, 17, 20)
    A("v_add_f32 v18, 1.0, v18\nv_add_f32 v19, 1.0, v19\nv_cvt_pk_bf16_f32 v21, v18, v19")
    unpack(18, 19, 21)
    A("v_mul_f32 v18, v18, v26\nv_mul_f32 v19, v19, v27\nv_cvt_pk_bf16_f32 v21, v18, v19")
    unpack(18, 19, 21)
    A("v_add_f32 v18, v18, v16\nv_add_f32 v19, v19, v17\nv_cvt_pk_bf16_f32 v21, v18, v19")
    A("ds_write_b32 v11, v21")
    A(f"ds_read_b128 v[{BB}:{BB+3}], v12\nds_read_b128 v[{BB+4}:{BB+7}], v12 offset:64")
    for ks in range(2):
        A(f"s_waitcnt lgkmcnt({1-ks})")
        for tt in range(8): mfma32(TT + 4 * tt, W + (ks * 8 + tt) * 4, BB + 4 * ks, ks == 0)
    A("v_cmp_eq_u32 s[66:67], 1, v63")
    for tt in range(1, 8):
        cur = "s[66:67]" if tt & 1 else "vcc"
        nx = "vcc" if tt & 1 else "s[66:67]"
        if tt < 7: A(f"v_cmp_eq_u32 {nx}, {tt+1}, v63")
        for r in range(4): A(f"v_cndmask_b32 v{TT+r}, v{TT+r}, v{TT+4*tt+r}, {cur}")
    A(f"""v_mov_b32 v{TT+4}, v{TT+3}
v_mov_b32 v{TT+3}, s10
v_mov_b32 v{TT+5}, s10
buffer_store_dwordx4 v[{TT}:{TT+3}], v13, s[52:55], s64 offen sc1
buffer_store_dwordx2 v[{TT+4}:{TT+5}], v60, s[52:55], s92 offen sc1
s_mov_b32 s70, {TMO}""")
    stamp(3)
    scalar_wait("L_sp2", "s95", [r * 1024 + 780 for r in range(8)])
    A("L_q_qp:")
    for m in range(4): A(f"buffer_load_dwordx4 v[{BB+4*m}:{BB+4*m+3}], v6, s[52:55], {'s95' if m < 2 else 's65'} offen offset:{(m&1)*2048} {gpol}")
    for m in range(4): A(f"buffer_load_dwordx2 v[{48+2*m}:{49+2*m}], v61, s[52:55], s93 offen offset:{m*1024} {gpol}")
    A("s_waitcnt vmcnt(0)")
    tagcheck([BB + 3, BB + 7, BB + 11, BB + 15, 49, 51, 53, 55], 24)
    poll_tail("L_q_qp")
    stamp(4)
    sum4()
    A(f"v_add_f32 v{BB}, v{BB}, v{BB+2}\nv_add_f32 v{BB+1}, v{BB+1}, v{BB+3}\nv_cvt_pk_bf16_f32 v20, v{BB}, v{BB+1}")
    A("ds_write_b32 v23, v20")
    A("L_s_bar1:")
    A("s_waitcnt lgkmcnt(0)\ns_add_u32 s10, s11, 0x9e3779b9")
    A("s_barrier\ns_barrier")
    A(f"v_lshlrev_b32 v14, 2, v1\nv_and_b32 v14, 28, v14\nv_add_u32 v14, {L_FL}, v14\nv_mov_b32 v15, s11\nds_write_b32 v14, v15")
    if "c" in abl: A("s_branch L_s_wo")
    if dry:
        A(f"""s_cmp_lg_u32 s3, 7
s_cbranch_scc1 L_nodry
s_mov_b32 s98, 0
s_mov_b32 s99, {OOB:#x}
s_cmp_eq_u32 s76, 4
s_cselect_b32 s3, 0, 1
s_branch L_tail
L_dryret:
s_mov_b32 s3, 7
s_mov_b32 s12, 3
s_mov_b32 s98, {TMO*4}
s_mov_b32 s99, 0
v_mov_b32 v31, {OOB:#x}
v_lshlrev_b32 v13, 4, v1
v_lshlrev_b32 v8, 11, v3
v_lshl_add_u32 v8, v4, 8, v8
v_lshl_add_u32 v8, v5, 3, v8
v_add_u32 v8, {3*8192}, v8
s_waitcnt vmcnt(0) lgkmcnt(0)
L_nodry:""")
    else:
        A("L_dryret:")
    A(f"""s_cmp_lg_u32 s76, 4
s_cbranch_scc1 L_s_wo
s_cmp_lg_u32 s3, 6
s_cbranch_scc1 L_s_wo
v_lshlrev_b32 v14, 15, v3
v_lshl_add_u32 v14, v4, 10, v14
v_lshl_add_u32 v14, v5, 8, v14
s_and_b32 s13, s77, 28
s_lshl_b32 s13, s13, 10
s_lshr_b32 s14, s77, 5
s_lshl_b32 s14, s14, 6
s_add_u32 s13, s13, s14
s_and_b32 s14, s77, 3
s_lshl_b32 s14, s14, 4
s_add_u32 s13, s13, s14
s_add_u32 s13, s13, {WS_MP + 65536}
v_lshlrev_b32 v15, 12, v3
v_lshl_add_u32 v15, v5, 4, v15
v_cmp_eq_u32 vcc, 0, v4
v_cndmask_b32 v15, v31, v15, vcc
s_lshl_b32 s14, s77, 6
s_add_u32 s14, s14, {WS_G}
v_mov_b32 v24, s10
s_mov_b32 s70, {TMO}
L_s_g4p:
buffer_load_dwordx4 v[16:19], v14, s[52:55], s13 offen {gpol}
buffer_load_dwordx2 v[20:21], v14, s[52:55], s13 offen offset:128 {gpol}
s_waitcnt vmcnt(0)""")
    tagcheck([19, 21], 24)
    poll_tail("L_s_g4p", sleep=8)
    for c in ("row_ror:4", "row_ror:8"):
        for r in (16, 17, 18, 20): A(f"v_add_f32_dpp v{r}, v{r}, v{r} {c} row_mask:0xf bank_mask:0xf")
    A("""v_cvt_pk_bf16_f32 v16, v16, v17
v_cvt_pk_bf16_f32 v17, v18, v20
v_mov_b32 v18, s10
v_mov_b32 v19, s10
buffer_store_dwordx4 v[16:19], v15, s[52:55], s14 offen sc1""")
    if x1pre:
        A(f"""v_cmp_gt_u32 vcc, 8, v1
v_cndmask_b32 v15, v31, v13, vcc
v_mov_b32 v20, s11
v_mov_b32 v21, s11
v_mov_b32 v22, s11
v_mov_b32 v23, s11
s_lshl_b32 s13, s77, 7
s_add_u32 s13, s13, {WS_X1}
buffer_store_dwordx4 v[20:23], v15, s[52:55], s13 offen sc1""")
    A("L_s_wo:")
    A("s_load_dwordx2 s[24:25], s[0:1], 32")
    A(f"""v_lshlrev_b32 v14, 10, v3
v_lshl_add_u32 v14, v2, 4, v14
s_lshl_b32 s64, s6, 17
s_lshl_b32 s13, s12, 8
s_add_u32 s64, s64, s13
v_lshlrev_b32 v30, 4, v3
v_cmp_eq_u32 vcc, 0, v2
v_cndmask_b32 v30, v31, v30, vcc
s_lshl_b32 s74, s8, 18
s_lshl_b32 s13, s12, 16
s_add_u32 s74, s74, s13
s_lshl_b32 s13, s6, 2
s_add_u32 s13, s13, s9
s_lshl_b32 s13, s13, 6
s_add_u32 s74, s74, s13
s_add_u32 s74, s74, {WS_Y}
s_waitcnt vmcnt(0) lgkmcnt(0)""")
    if "w" in abl: A("s_branch L_s_now")
    srd(44, 24, 4096 * 1024)
    def wo_stage(i):
        A(f"ds_write_b128 v7, v[{W+4*i}:{W+4*i+3}] offset:{(i&7)*1024}")
        if i & 7 == 7:
            ks = i >> 3
            for tt in range(8):
                for jh in range(2):
                    d = W + (ks * 8 + tt) * 4 + jh * 2
                    A(f"ds_read_b64_tr_b16 v[{d}:{d+1}], v8 offset:{jh*1024+tt*32}")
    for i in range(32):
        if i >= SD:
            A(f"s_waitcnt vmcnt({SD-1})")
        A(f"buffer_load_dwordx4 v[{W+4*i}:{W+4*i+3}], v14, s[44:47], s64 offen {wpol}")
        if i < 31: A("s_addk_i32 s64, 0x1000")
        if i >= SD: wo_stage(i - SD)
    for i in range(max(0, 32 - SD), 32):
        A(f"s_waitcnt vmcnt({31 - i})")
        wo_stage(i)
    A("L_s_now:")
    stamp(5)
    if "f" in abl: A("s_branch L_s_noffn")
    W2 = 208
    A("s_cmp_lg_u32 s76, 1\ns_cbranch_scc1 L_s_noffn")
    A("s_load_dwordx4 s[28:31], s[0:1], 48")
    srd(44, 32, 1376 * 1024)
    A("s_lshl_b32 s64, s77, 15\ns_lshl_b32 s13, s12, 8\ns_add_u32 s64, s64, s13")
    for i in range(8):
        if i >= SF: A(f"s_waitcnt vmcnt({SF-1})")
        A(f"buffer_load_dwordx4 v[{W2+4*i}:{W2+4*i+3}], v14, s[44:47], s64 offen {tpol}\ns_addk_i32 s64, 0x1000")
    A(f"""v_lshrrev_b32 v9, 2, v1
v_mul_u32_u24 v9, 2752, v9
v_lshl_add_u32 v9, v5, 4, v9
s_and_b32 s13, s12, 1
s_mul_i32 s64, s13, {256*2752}
s_lshl_b32 s14, s77, 6
s_add_u32 s64, s64, s14
s_lshl_b32 s65, s12, 14
s_add_u32 s65, s65, {L_EXT}
s_waitcnt lgkmcnt(0)
s_cmp_lt_u32 s12, 2
s_cselect_b32 s44, s28, s30
s_cselect_b32 s45, s29, s31
s_mov_b32 s46, {512*2752:#x}""")
    for i in range(8):
        A(f"s_waitcnt vmcnt({7 - i})\nds_write_b128 v7, v[{W2+4*i}:{W2+4*i+3}] offset:{i*1024}")
    for tt in range(8):
        for jh in range(2):
            A(f"ds_read_b64_tr_b16 v[{W2+4*tt+2*jh}:{W2+4*tt+2*jh+1}], v8 offset:{jh*1024+tt*32}")
    for i in range(16):
        if i >= SF: A(f"s_waitcnt vmcnt({SF-1})")
        A(f"s_mov_b32 m0, s65\nbuffer_load_dwordx4 v9, s[44:47], s64 offen {fpol} lds\ns_add_u32 s64, s64, {16*2752:#x}\ns_addk_i32 s65, 0x400")
    A("L_s_noffn:")
    A(f"""v_mul_u32_u24 v15, {OSTR}, v5
v_lshl_add_u32 v15, v3, 4, v15
v_add_u32 v15, {L_O}, v15
v_and_b32 v10, 1, v1
v_lshlrev_b32 v29, 4, v3
s_mov_b32 s13, {32*3072}
v_mul_lo_u32 v11, v10, s13
v_add_u32 v29, v29, v11
v_cmp_gt_u32 vcc, 2, v2
v_cndmask_b32 v29, v31, v29, vcc
s_mul_i32 s75, s12, {8*3072}
s_lshl_b32 s13, s77, 6
s_add_u32 s75, s75, s13
s_add_u32 s75, s75, {WS_OP}
v_lshlrev_b32 v28, 6, v10
v_lshl_add_u32 v28, v3, 4, v28
v_add_u32 v28, {L_HH}, v28
v_mov_b32 v20, {L_FL}
v_mov_b32 v21, s10
v_mov_b32 v22, 0xffffff00
s_lshr_b32 s92, s10, 8
s_lshr_b32 s93, s10, 16
s_lshr_b32 s94, s10, 24
s_waitcnt vmcnt(0) lgkmcnt(0)""")
    if dry:
        A(f"""s_mov_b32 s98, 0
s_mov_b32 s70, 0
s_mov_b32 s64, s74
s_mov_b32 s65, s75
v_mov_b32 v10, v29
v_mov_b32 v11, v30
v_mov_b32 v29, v31
v_mov_b32 v30, v31
s_branch L_stepA
L_dryret2:
s_mov_b32 s74, s64
s_mov_b32 s75, s65
v_mov_b32 v29, v10
v_mov_b32 v30, v11
s_waitcnt vmcnt(0) lgkmcnt(0)""")
    A(f"s_mov_b32 s98, {TMO*4}\ns_mov_b32 s70, {TMO*4}")
    stamp(6)
    A("s_barrier\nL_stepA:")
    stamp(7)
    if "t" in abl: A("s_branch L_fin2")
    OB, DY = 192, 32
    TAGB = ["s10", "s92", "s93", "s94"]
    for ks in range(4): A(f"ds_read_b128 v[{OB+4*ks}:{OB+4*ks+3}], v15 offset:{ks*64}")
    def ypost(tt):
        D = DY + 4 * tt
        ops = [f"v_add_f32_dpp v{D+r}, v{D+r}, v{D+r} quad_perm:[1,0,3,2] row_mask:0xf bank_mask:0xf" for r in range(4)]
        ops += [f"v_add_f32_dpp v{D+r}, v{D+r}, v{D+r} quad_perm:[2,3,0,1] row_mask:0xf bank_mask:0xf" for r in range(4)]
        ops += [f"v_bfi_b32 v{D+r}, v22, v{D+r}, {TAGB[r]}" for r in range(4)]
        ops += [f"buffer_store_dwordx4 v[{D}:{D+3}], v30, s[52:55], s74 offen sc1" + ("\ns_addk_i32 s74, 0x2000" if tt < 7 else "")]
        return ops
    for tt in range(8):
        D = DY + 4 * tt
        for ks in range(4):
            if tt == 0: A(f"s_waitcnt lgkmcnt({3-ks})")
            mfma32(D, W + (ks * 8 + tt) * 4, OB + 4 * ks, ks == 0)
            if tt >= 2:
                po = ypost(tt - 2)
                for o in po[3 * ks: 3 * ks + 3]: A(o)
                if ks == 3: A(po[12])
    for tt in (6, 7):
        for o in ypost(tt): A(o)
    stamp(8)
    A("s_cmp_lg_u32 s76, 1\ns_cbranch_scc1 L_fin2")
    A("""L_f2:
ds_read_b128 v[24:27], v20 offset:16
ds_read_b128 v[16:19], v28
s_waitcnt lgkmcnt(0)""")
    tagcheck([24, 25, 26, 27], 21)
    poll_dry("L_f2")
    stamp(9)
    def opost(tt):
        D = DY + 4 * tt
        for r in range(4): A(f"v_bfi_b32 v{D+r}, v22, v{D+r}, {TAGB[r]}")
        A(f"buffer_store_dwordx4 v[{D}:{D+3}], v29, s[52:55], s75 offen sc1\ns_addk_i32 s75, 0xc00")
    for tt in range(8):
        mfma32(DY + 4 * tt, W2 + 4 * tt, 16, True)
        if tt >= 2: opost(tt - 2)
    opost(6); opost(7)
    stamp(10)
    A("L_fin2:")
    if dry: A("s_cmp_eq_u32 s98, 0\ns_cbranch_scc1 L_dryret2")
    finish()
    for st in stubs: A(st)
    if diag:
        A("L_dump:")
        A("s_memrealtime s[78:79]\ns_waitcnt lgkmcnt(0)\ns_mov_b32 s91, s78")
        A("v_mov_b32 v8, 0")
        for i in range(12): A(f"v_writelane_b32 v8, s{80+i}, {i}")
        if dbg:
            A("""s_cmp_ge_u32 s3, 4
s_cbranch_scc1 L_bail
s_load_dwordx2 s[40:41], s[0:1], 96
s_not_b32 s12, s80
s_not_b32 s13, s85
s_cmp_eq_u32 s76, 4
s_cselect_b32 s14, s88, 0
s_cselect_b32 s15, s90, 0
v_mov_b32 v8, 0
v_writelane_b32 v8, s12, 0
v_writelane_b32 v8, s80, 1
v_writelane_b32 v8, s81, 2
v_writelane_b32 v8, s82, 3
v_writelane_b32 v8, s83, 4
v_writelane_b32 v8, s13, 5
v_writelane_b32 v8, s85, 6
v_writelane_b32 v8, s14, 7
v_writelane_b32 v8, s15, 8
v_writelane_b32 v8, s91, 9
s_waitcnt lgkmcnt(0)""")
            srd(56, 40, 40)
            A("v_lshlrev_b32 v9, 2, v1\nbuffer_atomic_umax v8, v9, s[56:59], 0 offen sc1")
        else:
            A(f"""s_lshl_b32 s12, s2, 3
s_add_u32 s12, s12, s3
s_lshl_b32 s12, s12, 8
s_add_u32 s12, s12, {WS_STAMP}
s_mov_b32 s54, 0x300000
v_lshlrev_b32 v9, 2, v1
buffer_store_dword v8, v9, s[52:55], s12 offen""")
    A("L_bail:\ns_endpgm")
    A.raw("L_codeend:")
    A.raw(f""".section .rodata,"a"
.p2align 6
.amdhsa_kernel {KNAME}
  .amdhsa_next_free_vgpr 256
  .amdhsa_next_free_sgpr 102
  .amdhsa_accum_offset 256
  .amdhsa_group_segment_fixed_size 0
  .amdhsa_kernarg_size 112
  .amdhsa_user_sgpr_count 2
  .amdhsa_user_sgpr_kernarg_segment_ptr 1
  .amdhsa_system_sgpr_workgroup_id_x 1
  .amdhsa_float_denorm_mode_32 3
.end_amdhsa_kernel""")
    return A.text()

if __name__ == "__main__":
    out = sys.argv[1]
    kw = json.loads(sys.argv[2]) if len(sys.argv) > 2 else {}
    open(out, "w").write(gen(**kw))
```

```python
import sys, json
sys.path.insert(0, "dev")
from asmlib import Asm

KNAME = "adaLN_cond__mha_block_cached__glu_gated_swiglu__decode_kernel"

WS_G, WS_X1, WS_ML, WS_QP, WS_QP8, WS_Y, WS_OP, WS_MP = 0x1000, 0x6000, 0x8000, 0x10000, 0x50000, 0x70000, 0xf0000, 0x150000
WS_X1 = 0x180000
WS_END = 0x188000
WS_STAMP = 0x200000
OSTR = 272
LOG2E = 0x3fb8aa3b
SCALE = 0x3db504f3
EPS = 0x3727c5ac
OOB = 0x7ff00000
TMO = 1 << 18

def gen(R=48, X=28, CAP0=6, CAP=6, diag=False, NB=(128, 128, 128, 128), NBF=None, SD=3, SMD=8, SQ=16, FP=60, shr=3,
        dsleep=30, wpol="", fpol="", gpol="sc1", tpol="nt", kvpol="nt", prio=3, SF=3, abl="", bsleep=0, csleep=0, cpol="sc1", dbg=0, WUP=1, CAP2=None, SW=64, fastc=1, f2sleep=0, dry=1, x1pre=0, pp=1, stag=6, ppx=0, ppd=0, xrep=1, xsleep=0, wmask=31, MLI=3):
    A = Asm()
    NBF = NBF or NB
    assert sum(NB) == 512 and sum(NBF) == 512
    VARS = sorted({(n - w + 3) // 4 for n in list(NB) + list(NBF) for w in range(4)})
    NS = (4 * max(VARS) + 15) // 16
    L_EXT = 32768
    SM = L_EXT + 4096 * X
    SM = max(SM, L_EXT + 65536)
    L_HL, L_SC, L_Q, L_HH, L_FL, L_O, L_DUM, L_H2 = SM, SM + 256, SM + 768, SM + 1024, SM + 1152, SM + 1184, SM + 2272, SM + 3296
    LDS_BYTES = L_H2 + 2048
    assert LDS_BYTES <= 163840

    def stamp(idx):
        if not diag: return
        A("s_memrealtime s[78:79]\ns_waitcnt lgkmcnt(0)")
        A(f"s_mov_b32 s{80+idx}, s78")
    def srd(d, base, nrec, off_lo=None):
        if off_lo is None:
            A(f"s_mov_b32 s{d}, s{base}\ns_mov_b32 s{d+1}, s{base+1}")
        else:
            A(f"s_add_u32 s{d}, s{base}, {off_lo}\ns_addc_u32 s{d+1}, s{base+1}, 0")
        A(f"s_mov_b32 s{d+2}, {nrec if isinstance(nrec, str) else hex(nrec)}\ns_mov_b32 s{d+3}, 0x20000")
    def finish():
        A("s_branch L_dump" if diag else "s_endpgm")
    def poll_tail(lbl, cnt="s70", sleep=0):
        A(f"s_sub_u32 {cnt}, {cnt}, 1\ns_cbranch_scc1 L_bail")
        if sleep:
            ok = A.newlabel("L_ok")
            A(f"s_cbranch_vccz {ok}\ns_sleep {sleep}\ns_branch {lbl}\n{ok}:")
        else:
            A(f"s_cbranch_vccnz {lbl}")
    stubs = []
    def poll_dry(lbl):
        out = A.newlabel("L_out"); to = A.newlabel("L_to")
        A(f"s_sub_u32 s70, s70, 1\ns_cbranch_scc1 {to}\ns_cbranch_vccnz {lbl}\n{out}:")
        stubs.append(f"{to}:\ns_cmp_eq_u32 s98, 0\ns_cbranch_scc1 {out}\ns_endpgm")
    def unpack(lo, hi, src):
        A(f"v_lshlrev_b32 v{lo}, 16, v{src}\nv_and_b32 v{hi}, 0xffff0000, v{src}")
    def allreduce(op, regs):
        for c in ("row_ror:8", "row_ror:4", "row_ror:2", "row_ror:1"):
            for r in regs:
                A(f"{op}_dpp v{r}, v{r}, v{r} {c} row_mask:0xf bank_mask:0xf")
        for r in regs:
            A(f"{op}_dpp v{r}, v{r}, v{r} row_bcast:15 row_mask:0xa bank_mask:0xf")
        for r in regs:
            A(f"{op}_dpp v{r}, v{r}, v{r} row_bcast:31 row_mask:0xc bank_mask:0xf")
    def mfma32(D, a, b, first):
        A(f"v_mfma_f32_16x16x32_bf16 v[{D}:{D+3}], v[{a}:{a+3}], v[{b}:{b+3}], " + ("0" if first else f"v[{D}:{D+3}]"))
    def tagcheck(regs, tagv):
        for i, rr in enumerate(regs):
            if i == 0: A(f"v_cmp_ne_u32 vcc, v{tagv}, v{rr}")
            else: A(f"v_cmp_ne_u32 s[66:67], v{tagv}, v{rr}\ns_or_b64 vcc, vcc, s[66:67]")
    def scalar_wait(lbl, soff, offs):
        A(f"s_add_u32 s96, s42, {soff}\ns_addc_u32 s97, s43, 0\ns_mov_b32 s71, 64")
        A(f"{lbl}:")
        for i, o in enumerate(offs): A(f"s_load_dword s{16+i}, s[96:97], {o} glc")
        A("s_waitcnt lgkmcnt(0)")
        for i in range(len(offs)): A(f"s_xor_b32 s{16+i}, s{16+i}, s10")
        for i in range(1, len(offs)): A(f"s_or_b32 s16, s16, s{16+i}")
        A(f"s_sub_u32 s71, s71, 1\ns_cbranch_scc1 {lbl}x\ns_cmp_lg_u32 s16, 0\ns_cbranch_scc1 {lbl}\n{lbl}x:")
    def roles():
        l = A.newlabel("L_role")
        A(f"""s_lshr_b32 s12, s2, 4
s_lshl_b32 s77, s4, 3
s_and_b32 s13, s12, 7
s_add_u32 s77, s77, s13
s_mov_b32 s72, s77
s_lshr_b32 s76, s12, 3
s_lshl_b32 s76, s76, 2
s_cmp_ge_u32 s9, 2
s_cbranch_scc1 {l}
s_lshl_b32 s72, s4, 4
s_add_u32 s72, s72, s12
s_add_u32 s72, s72, 64
s_lshr_b32 s77, s4, 1
s_mul_i32 s77, s77, 11
s_add_u32 s77, s77, s12
s_cmp_lt_u32 s77, 43
s_cselect_b32 s76, 1, 0
s_cmp_lt_u32 s12, 11
s_cselect_b32 s76, s76, 0
s_cmp_eq_u32 s9, 0
s_cselect_b32 s76, s76, 0
{l}:""")
    def layernorm8(X_, T, eps_s):
        X = X_
        A(f"""v_add_f32 v{T}, v{X}, v{X+1}
v_add_f32 v{T+1}, v{X+2}, v{X+3}
v_add_f32 v{T+2}, v{X+4}, v{X+5}
v_add_f32 v{T+3}, v{X+6}, v{X+7}
v_add_f32 v{T}, v{T}, v{T+1}
v_add_f32 v{T+2}, v{T+2}, v{T+3}
v_add_f32 v{T}, v{T}, v{T+2}""")
        allreduce("v_add_f32", [T])
        A(f"v_readlane_b32 s71, v{T}, 63")
        A(f"v_mov_b32 v{T+1}, 0x3b000000\nv_mul_f32 v{T}, s71, v{T+1}")
        A(f"v_cvt_pk_bf16_f32 v{T+2}, v{T}, v{T}")
        for k in range(8): A(f"v_sub_f32 v{T+4+k}, v{X+k}, v{T}")
        A(f"v_and_b32 v{T+2}, 0xffff0000, v{T+2}")
        A(f"v_mul_f32 v{T+3}, v{T+4}, v{T+4}\nv_mul_f32 v{T}, v{T+5}, v{T+5}")
        for k in range(2, 8, 2):
            A(f"v_fmac_f32 v{T+3}, v{T+4+k}, v{T+4+k}\nv_fmac_f32 v{T}, v{T+5+k}, v{T+5+k}")
        A(f"v_add_f32 v{T+3}, v{T+3}, v{T}")
        steps = ["row_ror:8 row_mask:0xf", "row_ror:4 row_mask:0xf", "row_ror:2 row_mask:0xf", "row_ror:1 row_mask:0xf", "row_bcast:15 row_mask:0xa", "row_bcast:31 row_mask:0xc"]
        fill = [f"v_sub_f32 v{X+k}, v{X+k}, v{T+2}" for k in range(8)] + [f"v_cvt_pk_bf16_f32 v{T+4+k}, v{X+2*k}, v{X+2*k+1}" for k in range(4)]
        for si, st in enumerate(steps):
            A(fill[2 * si]); A(fill[2 * si + 1])
            A(f"v_add_f32_dpp v{T+3}, v{T+3}, v{T+3} {st} bank_mask:0xf")
        unpack(X, X + 1, T + 4)
        A(f"v_readlane_b32 s71, v{T+3}, 63")
        unpack(X + 2, X + 3, T + 5)
        A(f"v_mul_f32 v{T}, s71, v{T+1}")
        unpack(X + 4, X + 5, T + 6)
        A(f"v_cvt_pk_bf16_f32 v{T}, v{T}, v{T}")
        unpack(X + 6, X + 7, T + 7)
        A(f"v_and_b32 v{T}, 0xffff0000, v{T}")
        A(f"v_add_f32 v{T}, {eps_s}, v{T}")
        A(f"v_cvt_pk_bf16_f32 v{T}, v{T}, v{T}\nv_and_b32 v{T}, 0xffff0000, v{T}")
        A(f"v_sqrt_f32 v{T}, v{T}")
        A(f"v_cvt_pk_bf16_f32 v{T}, v{T}, v{T}\nv_and_b32 v{T}, 0xffff0000, v{T}")
        A(f"v_rcp_f32 v{T}, v{T}")
        for k in range(8): A(f"v_mul_f32 v{X+k}, v{X+k}, v{T}")
        for k in range(4): A(f"v_cvt_pk_bf16_f32 v{T+4+k}, v{X+2*k}, v{X+2*k+1}")
        for k in range(4): unpack(X + 2 * k, X + 2 * k + 1, T + 4 + k)

    hdr = open("adaLN_cond__mha_block_cached__glu_gated_swiglu__decode.s.ref").read().split("\n")
    for l in hdr:
        if l.startswith("; @launch"): break
        A.raw(l)
    A.raw(f"; @launch grid=(256,1,1) block=(512,1,1) lds={LDS_BYTES}")
    A.raw('.amdgcn_target "amdgcn-amd-amdhsa--gfx950"\n.text')
    A.raw(f".globl {KNAME}\n.p2align 8\n.type {KNAME},@function\n{KNAME}:")
    A("s_cmp_ge_u32 s2, 256\ns_cbranch_scc1 L_bail")
    A("s_load_dwordx16 s[16:31], s[0:1], 0\ns_load_dwordx8 s[32:39], s[0:1], 64\ns_load_dwordx4 s[40:43], s[0:1], 96")
    if diag:
        for i in range(12): A(f"s_mov_b32 s{80+i}, 0")
        A("s_memrealtime s[78:79]")
    A(f"""v_and_b32 v1, 63, v0
v_lshrrev_b32 v2, 6, v0
v_readfirstlane_b32 s3, v2
s_mov_b32 s98, {TMO*4}
s_mov_b32 s99, 0
s_and_b32 s4, s2, 7
s_lshr_b32 s5, s2, 3
s_lshr_b32 s8, s2, 7
s_lshr_b32 s6, s2, 4
s_and_b32 s6, s6, 7
s_lshl_b32 s6, s6, 2
s_bfe_u32 s7, s2, 0x20001
s_add_u32 s6, s6, s7
s_and_b32 s9, s5, 1
s_lshl_b32 s9, s9, 1
s_and_b32 s7, s2, 1
s_add_u32 s9, s9, s7
s_lshl_b32 s7, s8, 2
s_add_u32 s7, s7, s9
v_and_b32 v2, 15, v1
v_lshrrev_b32 v3, 4, v1
v_bfe_u32 v4, v1, 2, 2
v_and_b32 v5, 3, v1
s_cmp_ge_u32 s3, 4
s_cbranch_scc1 L_service""")
    RING = 256 - 4 * R
    QOP, MSK, DB, OA, SR = 8, 24, 28, 36, 40
    assert RING >= SR + NS
    VK, VV = 6, 7
    base = [0, NB[0], NB[0] + NB[1], NB[0] + NB[1] + NB[2]]
    basef = [0, NBF[0], NBF[0] + NBF[1], NBF[0] + NBF[1] + NBF[2]]
    A(f"""s_lshl_b32 s12, s3, 12
v_lshlrev_b32 v{VK}, 8, v4
v_lshl_add_u32 v{VK}, v3, 6, v{VK}
v_lshl_add_u32 v{VK}, v5, 4, v{VK}
v_add_u32 v{VK}, s12, v{VK}
v_lshlrev_b32 v{VV}, 4, v1
v_add_u32 v{VV}, s12, v{VV}
s_lshl_b32 s13, s2, 19
s_and_b32 s13, s13, 0xff800000
s_lshl_b32 s14, s6, 21
s_and_b32 s14, s14, 0x600000
s_add_u32 s13, s13, s14
s_lshr_b32 s12, s4, 1
s_mul_i32 s12, s12, 11
s_lshr_b32 s15, s2, 4
s_add_u32 s12, s12, s15
s_max_u32 s15, s15, 10
s_add_u32 s12, s12, s15
s_mov_b32 s14, {base[0] | base[1] << 16:#x}
s_mov_b32 s15, {base[2] | base[3] << 16:#x}
s_mov_b32 s75, {NB[0] | NB[1] << 8 | NB[2] << 16 | NB[3] << 24:#x}
s_lshr_b32 s64, s2, 4
s_cmp_lt_u32 s64, 11
s_cselect_b32 s12, s12, 99
s_cmp_lt_u32 s12, 53
s_cselect_b32 s14, {basef[0] | basef[1] << 16:#x}, s14
s_cselect_b32 s15, {basef[2] | basef[3] << 16:#x}, s15
s_cselect_b32 s75, {NBF[0] | NBF[1] << 8 | NBF[2] << 16 | NBF[3] << 24:#x}, s75
s_lshl_b32 s12, s9, 4
s_lshr_b64 s[14:15], s[14:15], s12
s_and_b32 s14, s14, 0xffff
s_lshl_b32 s14, s14, 12
s_add_u32 s13, s13, s14
s_lshl_b32 s12, s9, 3
s_lshr_b32 s75, s75, s12
s_and_b32 s75, s75, 0xff
s_lshl_b32 s74, s75, 12
s_mov_b32 s64, 0
s_mov_b32 s65, 0
s_waitcnt lgkmcnt(0)""")
    if diag: A("s_mov_b32 s80, s78")
    srd(44, 18, "s74", "s13")
    srd(48, 20, "s74", "s13")
    import copy
    class St: pass
    S = St()
    S.issued = []; S.known = 0; S.slot_of = {}; S.free = [RING + 4 * k for k in range(R)][::-1]
    VS = [208 + 4 * k for k in range(8)]
    S.n = R + X; S.l = R; S.done = None; S.NP = 4 * min(VARS)
    def kv_load(i, lds=False):
        NP = S.NP
        if i >= NP:
            S.slot_of[i] = VS[(i - NP) & 7]; S.free.remove(S.slot_of[i])
        elif not lds:
            S.slot_of[i] = [x for x in S.free if x not in VS or i < 4 * min(VARS) - 20][-1]; S.free.remove(S.slot_of[i])
        slot = S.slot_of.get(i)
        j = i % NP
        va, sr, so = (VK, 44, "s64") if i < NP else (VV, 48, "s65")
        if lds:
            if j & 3 == 0: A(f"s_add_u32 m0, s73, {(i - R) * 1024}")
            A(f"buffer_load_dwordx4 v{va}, s[{sr}:{sr+3}], {so} offen offset:{(j&3)*1024} {kvpol} lds")
        else:
            A(f"buffer_load_dwordx4 v[{slot}:{slot+3}], v{va}, s[{sr}:{sr+3}], {so} offen offset:{(j&3)*1024} {kvpol}")
        if j & 3 == 3: A(f"s_addk_i32 {so}, 0x4000")
        S.issued.append(i)
    def wait_out(n):
        if len(S.issued) - S.known > n:
            A(f"s_waitcnt vmcnt({n})")
            S.known = len(S.issued) - n
    def wait_piece(p):
        wait_out(len(S.issued) - 1 - S.issued.index(p))
    assert R % 4 == 0 and X % 4 == 0
    for i in range(CAP0): kv_load(i)
    A("s_load_dword s11, s[42:43], 0")
    A(f"""v_and_b32 v28, 1, v1
v_cmp_eq_u32 vcc, 1, v28
v_mov_b32 v29, 0xffff
v_mov_b32 v30, 0xffff0000
v_cndmask_b32 v29, v29, v30, vcc
v_lshrrev_b32 v28, 1, v2""")
    for r in range(4):
        A(f"v_cmp_eq_u32 vcc, {r}, v28\nv_cndmask_b32 v{MSK+r}, 0, v29, vcc")
    srd(52, 42, WS_END)
    roles()
    A(f"""v_lshrrev_b32 v37, 2, v2
v_lshlrev_b32 v36, 6, v3
v_lshl_add_u32 v36, v37, 4, v36
v_add_u32 v36, {L_Q}, v36
s_mul_i32 s73, s3, {X*1024}
s_add_u32 s73, s73, {L_EXT}
v_lshlrev_b32 v38, 4, v1
v_add_u32 v38, s73, v38
s_sub_u32 s75, s75, s3
s_add_u32 s75, s75, 3
s_lshr_b32 s75, s75, 2
v_mov_b32 v{SR+NS-1}, 0xff800000
v_mov_b32 v{SR+NS-2}, 0xff800000""")
    assert 4 * min(VARS) > 16 * (NS - 2)
    for i in range(CAP0, R + X):
        wait_out(CAP0 - 1)
        kv_load(i, lds=(i >= R))
    A("s_waitcnt lgkmcnt(0)")
    A("s_add_u32 s10, s11, 0x9e3779b9")
    stamp(1)
    A("s_barrier")
    stamp(2)
    A(f"ds_read_b128 v[{DB}:{DB+3}], v36")
    A("s_waitcnt lgkmcnt(0)")
    for t in range(4):
        A(f"v_cmp_eq_u32 vcc, {t}, v5")
        for r in range(4): A(f"v_cndmask_b32 v{QOP+4*t+r}, 0, v{DB+r}, vcc")
    def post_ops(G):
        u = G & 3; Sg = SR + (G >> 2); D = DB + 4 * (G & 1)
        ops = [f"v_mov_b32_dpp v{Sg}, v{D+u} quad_perm:[0,1,2,3] row_mask:0xf bank_mask:{1<<u:#x}"]
        for b in range(4):
            if b == u: continue
            ops.append(f"v_add_f32_dpp v{Sg}, v{D+b}, v{Sg} row_ror:{4 * ((u - b) % 4)} row_mask:0xf bank_mask:{1<<u:#x}")
        return ops
    def cap(c):
        return CAP2 if (CAP2 and c >= S.NP + SW) else CAP
    def prefill(c):
        while S.n < 2 * S.NP and S.n - c <= cap(c) and S.free:
            wait_out(cap(c) - 1)
            kv_load(S.n)
            S.n += 1
            S.done = c
    def refill(c):
        S.free.append(S.slot_of[c])
        if S.done == c: return
        if S.n < 2 * S.NP and (S.n - c <= CAP or c % shr == shr - 1):
            wait_out(CAP - 1)
            kv_load(S.n)
            S.n += 1
        elif S.l < R + X and len(S.free) >= 2:
            p = S.l; slot = S.slot_of[p] = S.free.pop(0)
            assert True
            wait_piece(p)
            A(f"ds_read_b128 v[{slot}:{slot+3}], v38 offset:{(p-R)*1024}")
            S.l = p + 1
    def k_step(i):
        slot = S.slot_of[i]
        G = i >> 2; t = i & 3; D = DB + 4 * (G & 1)
        if i == R: A("s_waitcnt lgkmcnt(0)\ns_barrier"); assert S.l == R + X
        wait_piece(i)
        prefill(i)
        mfma32(D, slot, QOP + 4 * t, t == 0)
        po = post_ops(G - 1) if (G > 0 and t >= 2) else None
        if po: A(po[2 * (t - 2)])
        refill(i)
        if po: A(po[2 * (t - 2) + 1])
    ic = 0
    while S.n < S.NP - 1:
        k_step(ic); ic += 1
    assert ic > R
    for v in VARS[1:]:
        A(f"s_cmp_eq_u32 s75, {v}\ns_cbranch_scc1 L_var{v}")
    snap = copy.deepcopy(S.__dict__); hist = list(A.hist)
    T0 = 8; AB = 8
    def sel(i):
        P = SR + (i >> 4); c = i & 15; a = AB + 4 * (i & 1)
        for r in range(4):
            A(f"v_and_b32_dpp v{a+r}, v{P}, v{MSK+r} row_newbcast:{c} row_mask:0xf bank_mask:0xf")
    def ml_loads(hf):
        A(f"""s_load_dwordx16 s[16:31], s[96:97], {hf*128} glc
s_load_dwordx8 s[32:39], s[96:97], {hf*128+64} glc
s_load_dwordx8 s[56:63], s[96:97], {hf*128+96} glc""")
    for v in VARS:
        S.__dict__.update(copy.deepcopy(snap)); A.hist = list(hist)
        NP = S.NP = 4 * v
        ns = (NP + 15) // 16
        A(f"L_var{v}:")
        for i in range(ic, NP): k_step(i)
        for o in post_ops(NP // 4 - 1): A(o)
        assert S.n == NP + CAP, (S.n, NP)
        if v != VARS[-1]: A("s_branch L_soft")
    A("L_soft:\ns_nop 1")
    ns = NS
    stamp(3)
    A(f"s_mov_b32 s12, {SCALE:#x}\ns_mov_b32 s13, {LOG2E:#x}")
    def round_pairs():
        for k in range(0, ns, 2):
            A(f"v_cvt_pk_bf16_f32 v{T0+k//2}, v{SR+k}, v{SR+min(k+1, ns-1)}")
        for k in range(0, ns, 2):
            if k + 1 < ns: unpack(SR + k, SR + k + 1, T0 + k // 2)
            else: A(f"v_lshlrev_b32 v{SR+k}, 16, v{T0+k//2}")
    round_pairs()
    for k in range(ns): A(f"v_mul_f32 v{SR+k}, s12, v{SR+k}")
    round_pairs()
    A(f"v_max3_f32 v{T0}, v{SR}, v{SR+1}, v{SR+2}\nv_max3_f32 v{T0+1}, v{SR+3}, v{SR+4}, v{SR+5}\nv_max3_f32 v{T0}, v{T0}, v{SR+6}, v{SR+7}")
    if ns > 8: A(f"v_max_f32 v{T0+1}, v{T0+1}, v{SR+8}")
    A(f"v_max_f32 v{T0}, v{T0}, v{T0+1}")
    allreduce("v_max_f32", [T0])
    A(f"v_readlane_b32 s73, v{T0}, 63")
    for k in range(ns): A(f"v_subrev_f32 v{SR+k}, s73, v{SR+k}")
    for k in range(ns): A(f"v_mul_f32 v{SR+k}, s13, v{SR+k}")
    for k in range(ns): A(f"v_exp_f32 v{SR+k}, v{SR+k}")
    A(f"""v_add_f32 v{T0}, v{SR}, v{SR+1}
v_add_f32 v{T0+1}, v{SR+2}, v{SR+3}
v_add_f32 v{T0+2}, v{SR+4}, v{SR+5}
v_add_f32 v{T0+3}, v{SR+6}, v{SR+7}
v_add_f32 v{T0}, v{T0}, v{T0+1}
v_add_f32 v{T0+2}, v{T0+2}, v{T0+3}""")
    if ns > 8: A(f"v_add_f32 v{T0}, v{T0}, v{SR+8}")
    A(f"v_add_f32 v18, v{T0}, v{T0+2}")
    for k in range(ns): A(f"v_cvt_pk_bf16_f32 v{SR+k}, v{SR+k}, v{SR+k}")
    allreduce("v_add_f32", [18])
    A(f"""v_mov_b32 v16, s73
v_mov_b32 v17, s10
v_mov_b32 v19, s10
s_lshl_b32 s12, s8, 5
s_add_u32 s12, s12, s6
s_lshl_b32 s12, s12, 8
s_add_u32 s12, s12, {WS_ML}
s_add_u32 s96, s42, s12
s_addc_u32 s97, s43, 0
s_lshl_b32 s13, s9, 6
s_add_u32 s12, s12, s13
s_lshl_b32 s13, s3, 4
s_add_u32 s12, s12, s13
v_mov_b32 v20, {OOB:#x}
v_mov_b32 v21, 0
v_cmp_eq_u32 vcc, 63, v1
v_cndmask_b32 v20, v20, v21, vcc
v_lshlrev_b32 v22, 3, v1
v_add_u32 v22, {L_DUM}, v22
buffer_store_dwordx4 v[16:19], v20, s[52:55], s12 offen sc1
s_mul_i32 s12, s3, {OSTR}
s_add_u32 s12, s12, {L_O}
v_lshlrev_b32 v28, 4, v2
v_lshl_add_u32 v28, v3, 3, v28
v_add_u32 v28, s12, v28
v_cmp_gt_u32 vcc, 32, v1
v_cndmask_b32 v28, v22, v28, vcc
v_mov_b32 v{OA}, 0
v_mov_b32 v{OA+1}, 0
v_mov_b32 v{OA+2}, 0
v_mov_b32 v{OA+3}, 0
s_mov_b64 s[44:45], s[16:17]
s_mov_b64 s[46:47], s[38:39]
s_sub_u32 s75, s75, 1
s_mov_b32 s72, 0
s_mov_b32 s70, {TMO}
s_mov_b32 s13, {LOG2E:#x}
v_mov_b32 v30, s73
v_mov_b32 v31, 0""")
    stamp(4)
    sel(0)
    A(".p2align 6\nL_vloop:") if False else A("L_vloop:")
    for p_ in range(16):
        a = AB + 4 * (p_ & 1); n_ = p_ + CAP
        A(f"s_waitcnt vmcnt({CAP-1})")
        A(f"buffer_load_dwordx4 v[{VS[n_&7]}:{VS[n_&7]+3}], v{VV}, s[48:51], s65 offen offset:{(n_&3)*1024} {kvpol}")
        if n_ & 3 == 3: A("s_addk_i32 s65, 0x4000")
        mfma32(OA, a, VS[p_ & 7], False)
        if p_ & 3 == 3: A("s_sub_u32 s75, s75, 1\ns_cbranch_scc1 L_vend")
        sel(p_ + 1)
    for k in range(ns - 1): A(f"v_mov_b32 v{SR+k}, v{SR+k+1}")
    A(f"""s_add_u32 s72, s72, 1
s_sub_u32 s12, s72, {MLI}
s_cmp_gt_u32 s12, 2
s_cbranch_scc1 L_vloop
s_cmp_eq_u32 s12, 0
s_cbranch_scc1 L_ml0""")
    regs = [16, 20, 24, 28, 32, 36, 56, 60]
    A(f"""s_sub_u32 s14, s12, 1
s_lshl_b32 s14, s14, 7
s_add_u32 s94, s96, s14
s_addc_u32 s95, s97, 0
s_branch L_fchk
L_fpoll:
s_load_dwordx16 s[16:31], s[94:95], 0 glc
s_load_dwordx8 s[32:39], s[94:95], 64 glc
s_load_dwordx8 s[56:63], s[94:95], 96 glc
L_fchk:
s_waitcnt lgkmcnt(0)
s_mov_b32 s15, 0""")
    for g in regs:
        A(f"s_xor_b32 s14, s{g+1}, s10\ns_or_b32 s15, s15, s14\ns_xor_b32 s14, s{g+3}, s10\ns_or_b32 s15, s15, s14")
    A("s_sub_u32 s70, s70, 1\ns_cbranch_scc1 L_bail\ns_cmp_lg_u32 s15, 0\ns_cbranch_scc1 L_fpoll")
    A("v_mov_b32 v29, v30")
    for g in regs: A(f"v_max_f32 v30, s{g}, v30")
    A("v_sub_f32 v29, v29, v30")
    for k, g in enumerate(regs): A(f"v_sub_f32 v{16+k}, s{g}, v30")
    A("v_mul_f32 v29, s13, v29")
    for k in range(8): A(f"v_mul_f32 v{16+k}, s13, v{16+k}")
    A("v_exp_f32 v29, v29")
    for k in range(8): A(f"v_exp_f32 v{16+k}, v{16+k}")
    A("v_mul_f32 v31, v31, v29")
    for k, g in enumerate(regs): A(f"v_fmac_f32 v31, s{g+2}, v{16+k}")
    A("s_cmp_eq_u32 s12, 2\ns_cbranch_scc1 L_ml2")
    ml_loads(1)
    A("s_branch L_vloop\nL_ml0:")
    ml_loads(0)
    A("""s_branch L_vloop
L_ml2:
v_sub_f32 v30, s73, v30
v_rcp_f32 v31, v31
v_mul_f32 v30, s13, v30
v_exp_f32 v30, v30
s_nop 0
v_mul_f32 v30, v30, v31
s_branch L_vloop
L_vend:
s_nop 5""")
    for r in range(4): A(f"v_mul_f32 v{OA+r}, v30, v{OA+r}")
    A(f"v_cvt_pk_bf16_f32 v32, v{OA}, v{OA+1}\nv_cvt_pk_bf16_f32 v33, v{OA+2}, v{OA+3}")
    A("ds_write_b64 v28, v[32:33]")
    A("L_vdone:\ns_waitcnt lgkmcnt(0)")
    stamp(5)
    A("s_barrier")
    stamp(6)
    if "t" in abl: A("s_branch L_fin")
    A("""L_tail:
s_cmp_eq_u32 s76, 4
s_cbranch_scc1 L_stepB
s_cmp_lg_u32 s76, 1
s_cbranch_scc1 L_fin""")
    WA = [64 + 4 * k for k in range(16)]; HB = [128 + 4 * k for k in range(16)]
    SB, C1, XX = 16, 24, 32
    A(f"""v_lshlrev_b32 v9, 9, v3
v_lshl_add_u32 v9, v4, 6, v9
v_and_b32 v11, 1, v1
v_lshl_add_u32 v9, v11, 3, v9
v_lshrrev_b32 v10, 1, v5
v_lshl_add_u32 v9, v10, 15, v9
s_lshl_b32 s12, s3, 4
s_add_u32 s14, s12, {L_EXT}
v_add_u32 v9, s14, v9""")
    for ks in range(16):
        for jh in range(2):
            A(f"ds_read_b64_tr_b16 v[{WA[ks]+2*jh}:{WA[ks]+2*jh+1}], v9 offset:{ks*2048+jh*256}")
    A(f"""v_mov_b32 v57, s10
v_lshlrev_b32 v12, 10, v11
v_lshl_add_u32 v12, v3, 4, v12
v_add_u32 v12, {L_H2}, v12
v_lshlrev_b32 v13, 6, v11
v_and_b32 v14, 1, v3
v_lshl_add_u32 v13, v14, 3, v13
v_lshrrev_b32 v14, 1, v3
v_lshl_add_u32 v13, v14, 2, v13
s_add_u32 s12, s12, {L_HH}
v_add_u32 v13, s12, v13
v_lshlrev_b32 v14, 2, v1
v_add_u32 v14, {L_DUM}, v14
s_min_u32 s14, s98, 2
v_cmp_gt_u32 vcc, s14, v2
v_cndmask_b32 v13, v14, v13, vcc
s_mov_b32 s68, {EPS:#x}
s_mov_b32 s69, {LOG2E:#x}
s_mov_b32 s70, s98
v_mov_b32 v15, {L_FL}
s_lshl_b32 s12, s3, 2
s_add_u32 s12, s12, {L_FL}
s_cmp_eq_u32 s98, 0
s_cselect_b32 s12, {L_DUM}, s12
v_mov_b32 v56, s12
s_sub_u32 s13, s3, 1
s_cmp_ge_u32 s13, 2
s_cbranch_scc1 L_c_h2s
s_lshl_b32 s14, s13, 11
s_add_u32 s14, s14, {WS_G + 4096}
s_add_u32 s15, s14, 4096
v_lshlrev_b32 v8, 5, v1
L_c_sbcb:""")
    for k, (so, of) in enumerate((("s14", 0), ("s14", 16), ("s15", 0), ("s15", 16))):
        A(f"buffer_load_dwordx4 v[{40+4*k}:{43+4*k}], v8, s[52:55], {so} offen offset:{of} sc1")
    A("s_waitcnt vmcnt(0)")
    tagcheck([42, 43, 46, 47, 50, 51, 54, 55], 57)
    poll_dry("L_c_sbcb")
    for k, rr in enumerate((40, 41, 44, 45)): unpack(SB + 2 * k, SB + 2 * k + 1, rr)
    for k, rr in enumerate((48, 49, 52, 53)): unpack(C1 + 2 * k, C1 + 2 * k + 1, rr)
    for k in range(8): A(f"v_add_f32 v{C1+k}, 1.0, v{C1+k}")
    for k in range(4): A(f"v_cvt_pk_bf16_f32 v{40+k}, v{C1+2*k}, v{C1+2*k+1}")
    for k in range(4): unpack(C1 + 2 * k, C1 + 2 * k + 1, 40 + k)
    A(f"""s_lshl_b32 s14, s13, 10
s_add_u32 s15, s14, {L_H2}
s_cmp_eq_u32 s98, 0
s_cselect_b32 s15, {L_DUM}, s15
s_lshl_b32 s14, s13, 12
s_add_u32 s14, s14, {WS_X1}
s_lshr_b32 s12, s4, 1
s_lshl_b32 s12, s12, {13 if xrep else 31}
s_andn2_b32 s12, s12, 0x80000000
s_add_u32 s14, s14, s12
v_lshlrev_b32 v8, 4, v1
v_add_u32 v10, s15, v8
v_lshrrev_b32 v8, 1, v1
v_lshlrev_b32 v8, 7, v8
v_lshl_add_u32 v8, v11, 5, v8
s_mov_b32 s12, 0x05040100
s_waitcnt lgkmcnt(0)""")
    stamp(7)
    def x1_loads(b):
        A(f"buffer_load_dwordx4 v[{b}:{b+3}], v8, s[52:55], s14 offen sc1\nbuffer_load_dwordx4 v[{b+4}:{b+7}], v8, s[52:55], s14 offen offset:16 sc1")
    def x1_check(b, extra):
        A(f"s_waitcnt vmcnt({extra})")
        for k in range(4): A(f"v_perm_b32 v{40+k}, v{b+2*k+1}, v{b+2*k}, s12")
        for k in range(4):
            A(f"v_sad_u8 v44, v{40+k}, v57, {'0' if k == 0 else 'v44'}")
            A(f"v_and_b32 v{XX+2*k}, 0xffff0000, v{b+2*k}\nv_and_b32 v{XX+2*k+1}, 0xffff0000, v{b+2*k+1}")
        A("v_cmp_ne_u32 vcc, 0, v44")
    A("s_mov_b32 s70, s98")
    if not ppx:
        if xsleep: A(f"s_branch L_c_x1\nL_c_x1s:\ns_sleep {xsleep}")
        A("L_c_x1:"); x1_loads(192); x1_check(192, 0); poll_dry("L_c_x1s" if xsleep else "L_c_x1")
    else:
        x1_loads(192)
        A(f"s_sleep {stag}\nL_c_x1:"); x1_loads(200); x1_check(192, 2)
        A("s_cbranch_vccz L_c_got")
        x1_loads(192); x1_check(200, 2)
        poll_dry("L_c_x1")
        A("L_c_got:")
    stamp(8)
    if not fastc:
        layernorm8(XX, 44, "s68")
        for k in range(8): A(f"v_mul_f32 v{XX+k}, v{XX+k}, v{C1+k}")
        for k in range(4): A(f"v_cvt_pk_bf16_f32 v{44+k}, v{XX+2*k}, v{XX+2*k+1}")
        for k in range(4): unpack(XX + 2 * k, XX + 2 * k + 1, 44 + k)
        for k in range(8): A(f"v_add_f32 v{XX+k}, v{XX+k}, v{SB+k}")
        for k in range(4): A(f"v_cvt_pk_bf16_f32 v{44+k}, v{XX+2*k}, v{XX+2*k+1}")
    else:
        A(f"v_readfirstlane_b32 s71, v{XX}")
        Dd = 44
        for k in range(8): A(f"v_subrev_f32 v{Dd+k}, s71, v{XX+k}")
        A(f"""v_add_f32 v40, v{Dd}, v{Dd+1}
v_mul_f32 v41, v{Dd}, v{Dd}
v_add_f32 v42, v{Dd+2}, v{Dd+3}
v_mul_f32 v43, v{Dd+1}, v{Dd+1}
v_add_f32 v52, v{Dd+4}, v{Dd+5}
v_fmac_f32 v41, v{Dd+2}, v{Dd+2}
v_add_f32 v53, v{Dd+6}, v{Dd+7}
v_fmac_f32 v43, v{Dd+3}, v{Dd+3}
v_add_f32 v40, v40, v42
v_fmac_f32 v41, v{Dd+4}, v{Dd+4}
v_add_f32 v52, v52, v53
v_fmac_f32 v43, v{Dd+5}, v{Dd+5}
v_fmac_f32 v41, v{Dd+6}, v{Dd+6}
v_fmac_f32 v43, v{Dd+7}, v{Dd+7}
v_add_f32 v40, v40, v52
v_add_f32 v41, v41, v43""")
        allreduce("v_add_f32", [40, 41])
        A(f"""v_readlane_b32 s72, v40, 63
v_readlane_b32 s73, v41, 63
v_mov_b32 v42, 0x3b000000
v_mul_f32 v40, s72, v42
v_mul_f32 v41, s73, v42
v_add_f32 v43, s71, v40
v_fma_f32 v41, -v40, v40, v41
v_cvt_pk_bf16_f32 v43, v43, v43
v_max_f32 v41, 0, v41
v_and_b32 v43, 0xffff0000, v43
v_cvt_pk_bf16_f32 v41, v41, v41
v_sub_f32 v{XX}, v{XX}, v43
v_and_b32 v41, 0xffff0000, v41
v_sub_f32 v{XX+1}, v{XX+1}, v43
v_add_f32 v41, s68, v41
v_sub_f32 v{XX+2}, v{XX+2}, v43
v_cvt_pk_bf16_f32 v41, v41, v41
v_sub_f32 v{XX+3}, v{XX+3}, v43
v_and_b32 v41, 0xffff0000, v41
v_sub_f32 v{XX+4}, v{XX+4}, v43
v_sqrt_f32 v41, v41
v_sub_f32 v{XX+5}, v{XX+5}, v43
v_sub_f32 v{XX+6}, v{XX+6}, v43
v_cvt_pk_bf16_f32 v41, v41, v41
v_sub_f32 v{XX+7}, v{XX+7}, v43
v_and_b32 v41, 0xffff0000, v41""")
        for k in range(4): A(f"v_mul_f32 v{XX+k}, v{XX+k}, v{C1+k}")
        A("v_rcp_f32 v41, v41")
        for k in range(4, 8): A(f"v_mul_f32 v{XX+k}, v{XX+k}, v{C1+k}")
        for k in range(8): A(f"v_fma_f32 v{XX+k}, v{XX+k}, v41, v{SB+k}")
        for k in range(4): A(f"v_cvt_pk_bf16_f32 v{44+k}, v{XX+2*k}, v{XX+2*k+1}")
    A("ds_write_b128 v10, v[44:47]\nds_write_b32 v56, v57\ns_mov_b32 s70, s98\ns_branch L_c_h2")
    A("L_c_h2s:\ns_sleep 1")
    A("L_c_h2:\nds_read2_b32 v[44:45], v15 offset0:1 offset1:2\ns_waitcnt lgkmcnt(0)")
    tagcheck([44, 45], 57)
    poll_dry("L_c_h2s")
    for ks in range(16): A(f"ds_read_b128 v[{HB[ks]}:{HB[ks]+3}], v12 offset:{ks*64}")
    for ks in range(16):
        A(f"s_waitcnt lgkmcnt({15-ks})")
        mfma32(40, WA[ks], HB[ks], ks == 0)
    A("v_permlane32_swap_b32 v40, v42\nv_permlane32_swap_b32 v41, v43")
    A("v_cvt_pk_bf16_f32 v44, v40, v41\nv_cvt_pk_bf16_f32 v45, v42, v43")
    unpack(40, 41, 44); unpack(42, 43, 45)
    A("""v_mul_f32 v44, s69, v40
v_mul_f32 v45, s69, v41
v_exp_f32 v44, -v44
v_exp_f32 v45, -v45
v_add_f32 v44, 1.0, v44
v_add_f32 v45, 1.0, v45
v_rcp_f32 v44, v44
v_rcp_f32 v45, v45
v_mul_f32 v40, v40, v44
v_mul_f32 v41, v41, v45
v_cvt_pk_bf16_f32 v44, v40, v41""")
    unpack(40, 41, 44)
    A("""v_mul_f32 v40, v40, v42
v_mul_f32 v41, v41, v43
v_cvt_pk_bf16_f32 v44, v40, v41
ds_write_b32 v13, v44
ds_write_b32 v56, v57 offset:16""")
    stamp(9)
    A("L_fin:\ns_cmp_eq_u32 s98, 0\ns_cbranch_scc1 L_dryret")
    finish()
    A("L_stepB:")
    A("s_cmp_lg_u32 s3, 0\ns_cbranch_scc1 L_fin")
    srd(56, 44, 2048)
    srd(60, 46, 2048)
    A(f"""s_lshl_b32 s14, s77, 6
s_add_u32 s14, s14, {WS_G}
s_add_u32 s13, s14, {3*4096}
s_lshl_b32 s15, s77, 5
s_lshl_b32 s72, s77, 13
s_add_u32 s72, s72, {WS_Y}
s_add_u32 s75, s72, 4096
s_lshl_b32 s73, s77, 7
s_add_u32 s73, s73, {WS_X1}
s_mul_i32 s74, s77, 3072
s_add_u32 s74, s74, {WS_OP}
v_lshlrev_b32 v8, 4, v5
v_lshlrev_b32 v9, 4, v1
v_lshlrev_b32 v12, 3, v5
v_lshl_add_u32 v13, v3, 1, v12
v_mov_b32 v10, {OOB:#x}
v_cmp_gt_u32 vcc, 44, v1
v_cndmask_b32 v14, v10, v9, vcc
v_cmp_gt_u32 vcc, 4, v1
v_cndmask_b32 v12, v10, v12, vcc
v_cmp_eq_u32 vcc, 0, v1
v_cndmask_b32 v10, v10, v1, vcc
v_mov_b32 v11, s10
v_and_b32 v15, 1, v3
v_lshlrev_b32 v15, 4, v15
v_sub_u32 v15, 16, v15
s_mov_b32 s12, 0x03020706
s_mov_b32 s68, 0x0c0c0400
v_and_b32 v38, 0xffff, v11
v_lshrrev_b32 v39, 16, v11
v_cmp_gt_u32 vcc, 44, v1
v_cndmask_b32 v40, 0, v38, vcc
v_cndmask_b32 v41, 0, v39, vcc
v_mov_b32 v42, 0xffff0000
v_cmp_eq_u32 vcc, 16, v15
v_cndmask_b32 v43, v39, v38, vcc
v_or_b32 v12, s99, v12
v_or_b32 v10, s99, v10
v_lshlrev_b32 v44, 13, v4
v_lshl_add_u32 v44, v5, 4, v44
v_mov_b32 v45, {OOB:#x}
v_cmp_gt_u32 vcc, {16 if xrep else 4}, v1
v_cndmask_b32 v44, v45, v44, vcc
v_or_b32 v44, s99, v44
s_mov_b32 s70, s98
buffer_load_ushort v16, v13, s[56:59], s15 offen""")
    A("L_b_ga:")
    A("buffer_load_dwordx4 v[20:23], v8, s[52:55], s14 offen sc1\nbuffer_load_dwordx4 v[24:27], v8, s[52:55], s13 offen sc1\ns_waitcnt vmcnt(0)")
    tagcheck([22, 23, 26, 27], 11)
    poll_dry("L_b_ga")
    A("""v_cmp_gt_u32 vcc, 32, v1
v_cndmask_b32 v17, v21, v20, vcc
v_cndmask_b32 v18, v25, v24, vcc
v_lshlrev_b32 v17, v15, v17
v_lshlrev_b32 v18, v15, v18
v_and_b32 v17, 0xffff0000, v17
v_and_b32 v18, 0xffff0000, v18
v_lshlrev_b32 v16, 16, v16""")
    A("s_mov_b32 s70, s98")
    def gatherN(lbl, n, so0, so1, lastv):
        def loads(base):
            for i in range(n):
                A(f"buffer_load_dwordx4 v[{base+4*i}:{base+3+4*i}], v{lastv if i == n - 1 else 9}, s[52:55], {so0 if i < 4 else so1} offen offset:{(i&3)*1024} sc1")
        def check(base, extra):
            for i in range(n):
                r = base + 4 * i
                lo, hi = (40, 41) if (i == n - 1 and lastv != 9) else (38, 39)
                A(f"s_waitcnt vmcnt({n-1-i+extra})")
                A(f"v_perm_b32 v36, v{r+1}, v{r}, s68\nv_perm_b32 v37, v{r+3}, v{r+2}, s68")
                if i: A(f"v_add_f32 v32, v{base if i == 1 else 32}, v{r}\nv_add_f32 v33, v{base+1 if i == 1 else 33}, v{r+1}")
                A(f"v_sad_u8 v28, v36, v{lo}, {'0' if i == 0 else 'v28'}")
                if i: A(f"v_add_f32 v34, v{base+2 if i == 1 else 34}, v{r+2}\nv_add_f32 v35, v{base+3 if i == 1 else 35}, v{r+3}")
                A(f"v_sad_u8 v28, v37, v{hi}, v28")
            A("v_cmp_ne_u32 vcc, 0, v28")
        if not (pp if n == 8 else ppd):
            A(f"{lbl}:"); loads(64); check(64, 0); poll_dry(lbl)
        else:
            done = A.newlabel("L_got")
            A(f"{lbl}:"); loads(64)
            A(f"s_sleep {stag}")
            A(f"{lbl}_l:"); loads(128); check(64, n)
            A(f"s_cbranch_vccz {done}")
            loads(64); check(128, n)
            poll_dry(f"{lbl}_l")
            A(f"{done}:")
    def red16(G, Xr):
        A("""v_permlane32_swap_b32 v32, v34
v_permlane32_swap_b32 v33, v35
v_add_f32 v32, v32, v34
v_add_f32 v33, v33, v35
v_permlane16_swap_b32 v32, v33
v_add_f32 v32, v32, v33
v_add_f32_dpp v32, v32, v32 row_ror:4 row_mask:0xf bank_mask:0xf
v_add_f32_dpp v32, v32, v32 row_ror:8 row_mask:0xf bank_mask:0xf
v_cvt_pk_bf16_f32 v32, v32, v32
v_and_b32 v32, 0xffff0000, v32""")
        A(f"""v_mul_f32 v32, v32, v{G}
v_cvt_pk_bf16_f32 v32, v32, v32
v_and_b32 v32, 0xffff0000, v32
v_add_f32 v32, v32, v{Xr}
v_cvt_pk_bf16_f32 v30, v32, v32""")
    stamp(7)
    gatherN("L_b_y", 8, "s72", "s75", 9)
    stamp(8)
    red16(17, 16)
    A("""v_bfi_b32 v32, v42, v30, v43
v_bfi_b32 v33, v42, v30, v43
v_permlane16_swap_b32 v32, v33
v_mov_b32 v34, v32
v_mov_b32 v35, v33
v_permlane32_swap_b32 v32, v34
v_permlane32_swap_b32 v33, v35
buffer_store_dwordx4 v[32:35], v44, s[52:55], s73 offen sc1""")
    stamp(9)
    A("v_and_b32 v16, 0xffff0000, v30")
    A("s_mov_b32 s70, s98")
    if dsleep: A(f"s_cmp_eq_u32 s98, 0\ns_cbranch_scc1 L_d_op\ns_sleep {dsleep}")
    gatherN("L_d_op", 3, "s74", "s74", 14)
    stamp(10)
    red16(18, 16)
    A("""v_mov_b32 v32, v30
v_mov_b32 v33, v30
v_permlane16_swap_b32 v32, v33
v_perm_b32 v32, v32, v33, s12
v_mov_b32 v33, v32
v_permlane32_swap_b32 v32, v33""")
    A("buffer_store_dwordx2 v[32:33], v12, s[60:63], s15 offen")
    A("s_cmp_lg_u32 s77, 0\ns_cbranch_scc1 L_fin3")
    A("buffer_store_dword v11, v10, s[52:55], 0 offen sc1")
    A("L_fin3:\ns_branch L_fin")
    A("L_service:")
    if prio: A(f"s_setprio {prio}")
    W, TT, BB = 64, 192, 32
    roles()
    A(f"""s_sub_u32 s12, s3, 4
s_lshl_b32 s13, s12, 13
v_lshlrev_b32 v13, 4, v1
v_add_u32 v7, s13, v13
v_lshlrev_b32 v8, 11, v3
v_lshl_add_u32 v8, v4, 8, v8
v_lshl_add_u32 v8, v5, 3, v8
v_add_u32 v8, s13, v8
v_mov_b32 v31, {OOB:#x}
s_mov_b32 s68, {EPS:#x}
s_mov_b32 s69, {LOG2E:#x}
s_waitcnt lgkmcnt(0)""")
    if diag: A("s_mov_b32 s80, s78")
    A("s_load_dword s11, s[42:43], 0")
    srd(52, 42, WS_END)
    if "q" in abl: A("s_cmp_eq_u32 s3, 4\ns_cbranch_scc1 L_s_bar1")
    if "u" in abl: A("s_cmp_eq_u32 s3, 7\ns_cbranch_scc1 L_s_bar1")
    A("""s_cmp_eq_u32 s3, 4
s_cbranch_scc1 L_s_q
s_cmp_eq_u32 s3, 5
s_cbranch_scc1 L_s_warm
s_cmp_eq_u32 s3, 6
s_cbranch_scc1 L_s_bar1
s_cmp_eq_u32 s76, 4
s_cbranch_scc1 L_s_bar1""")
    srd(48, 36, 512 * 6144)
    srd(60, 34, 2048)
    A(f"""s_lshr_b32 s13, s72, 2
s_and_b32 s14, s72, 3
s_lshl_b32 s65, s13, 7
s_mul_i32 s64, s14, {128*6144}
s_add_u32 s65, s65, s64
s_lshl_b32 s64, s14, 8
v_lshrrev_b32 v9, 3, v1
v_mul_u32_u24 v9, 6144, v9
v_and_b32 v11, 7, v1
v_lshl_add_u32 v9, v11, 4, v9
v_lshrrev_b32 v11, 5, v1
v_and_b32 v12, 31, v1
v_lshlrev_b32 v12, 3, v12
v_lshl_add_u32 v14, v11, 10, v12
buffer_load_dwordx2 v[16:17], v14, s[60:63], s64 offen""")
    for i in range(16):
        if i >= SMD: A(f"s_waitcnt vmcnt({SMD-1})")
        A(f"buffer_load_dwordx4 v[{TT+4*i}:{TT+4*i+3}], v9, s[48:51], s65 offen {tpol}")
        if i < 15: A(f"s_add_u32 s65, s65, {8*6144:#x}")
        if i == min(SMD, 16) - 1:
            A(f"""v_lshl_add_u32 v15, v11, 8, v12
v_add_u32 v15, {L_SC}, v15
v_lshlrev_b32 v11, 10, v3
v_lshl_add_u32 v11, v4, 7, v11
v_lshl_add_u32 v11, v5, 3, v11
v_add_u32 v11, {3*8192}, v11
v_and_b32 v28, 1, v4
v_lshlrev_b32 v12, 8, v28
v_lshl_add_u32 v12, v3, 4, v12
v_add_u32 v12, {L_SC}, v12
s_waitcnt vmcnt({i+1})""")
            unpack(20, 21, 16); unpack(22, 23, 17)
            for k in range(4): A(f"v_mul_f32 v{24+k}, s69, v{20+k}")
            for k in range(4): A(f"v_exp_f32 v{24+k}, -v{24+k}")
            for k in range(4): A(f"v_add_f32 v{24+k}, 1.0, v{24+k}")
            for k in range(4): A(f"v_rcp_f32 v{24+k}, v{24+k}")
            for k in range(4): A(f"v_mul_f32 v{20+k}, v{20+k}, v{24+k}")
            A("v_cvt_pk_bf16_f32 v16, v20, v21\nv_cvt_pk_bf16_f32 v17, v22, v23\nds_write_b64 v15, v[16:17]")
            for ks in range(4): A(f"ds_read_b128 v[{BB+4*ks}:{BB+4*ks+3}], v12 offset:{ks*64}")
    for ks in range(4):
        for i in range(4 * ks, 4 * ks + 4):
            A(f"s_waitcnt vmcnt({15 - i})")
            A(f"ds_write_b128 v7, v[{TT+4*i}:{TT+4*i+3}] offset:{(i&7)*1024}")
        for tt in range(4):
            for jh in range(2):
                d = TT + (ks * 4 + tt) * 4 + jh * 2
                A(f"ds_read_b64_tr_b16 v[{d}:{d+1}], v11 offset:{(ks&1)*4096+jh*512+tt*32}")
    for ks in range(4):
        A(f"s_waitcnt lgkmcnt({0 if ks == 3 else 12})")
        for tt in range(4): mfma32(48 + 4 * tt, TT + (ks * 4 + tt) * 4, BB + 4 * ks, ks == 0)
    A("s_add_u32 s10, s11, 0x9e3779b9")
    for tt in range(1, 4):
        A(f"v_cmp_eq_u32 vcc, {tt}, v5")
        for r in range(4): A(f"v_cndmask_b32 v{48+r}, v{48+r}, v{48+4*tt+r}, vcc")
    A(f"""v_cmp_gt_u32 vcc, 8, v2
v_mov_b32 v52, s10
v_cndmask_b32 v48, v51, v48, vcc
v_cndmask_b32 v49, v52, v49, vcc
v_cndmask_b32 v50, v52, v50, vcc
v_mov_b32 v51, s10
s_lshl_b32 s13, s72, 10
s_add_u32 s13, s13, {WS_MP}
buffer_store_dwordx4 v[48:51], v13, s[52:55], s13 offen sc1""")
    stamp(1)
    A("s_branch L_s_bar1")
    A(f"""L_s_warm:
s_getpc_b64 s[66:67]
L_pc:
s_sub_u32 s66, s66, L_pc-{KNAME}
s_subb_u32 s67, s67, 0
s_and_b32 s13, s5, {wmask}
s_mul_i32 s13, s13, {WUP*1024}
v_add_u32 v14, s13, v13""")
    for k in range(WUP):
        if k >= 4: A("s_waitcnt vmcnt(3)")
        A(f"v_min_u32 v15, L_codeend-{KNAME}-16, v14\nglobal_load_dwordx4 v[20:23], v15, s[66:67]\nv_add_u32 v14, 1024, v14")
    A("s_branch L_s_bar1")
    A("L_s_q:")
    srd(44, 22, 512 * 8192)
    srd(56, 16, 2048)
    A(f"""v_lshlrev_b32 v6, 13, v3
v_lshl_add_u32 v6, v2, 4, v6
s_lshl_b32 s64, s6, 8
s_lshl_b32 s13, s7, 19
s_add_u32 s64, s64, s13
buffer_load_dwordx4 v[24:27], v13, s[56:59], 0 offen
buffer_load_dwordx4 v[28:31], v13, s[56:59], 0 offen offset:1024""")
    for i in range(16):
        if i >= SQ: A(f"s_waitcnt vmcnt({SQ-1})")
        A(f"buffer_load_dwordx4 v[{W+4*i}:{W+4*i+3}], v6, s[44:47], s64 offen {tpol}")
        if i < 15: A("s_add_u32 s64, s64, 0x8000")
    A(f"""v_and_b32 v63, 7, v1
v_lshrrev_b32 v16, 5, v1
v_and_b32 v19, 1, v3
v_lshlrev_b32 v14, 15, v16
v_lshl_add_u32 v14, v5, 8, v14
v_lshl_add_u32 v14, v19, 6, v14
v_lshl_add_u32 v14, v4, 4, v14
v_bfe_u32 v17, v1, 3, 2
v_lshlrev_b32 v6, 10, v16
v_lshl_add_u32 v6, v17, 8, v6
v_lshl_add_u32 v6, v63, 4, v6
v_lshlrev_b32 v23, 5, v63
v_lshl_add_u32 v23, v17, 3, v23
v_lshl_add_u32 v23, v16, 2, v23
v_add_u32 v23, {L_Q}, v23
v_lshlrev_b32 v18, 3, v2
v_lshl_add_u32 v18, v16, 2, v18
v_lshl_add_u32 v11, v19, 7, v18
v_add_u32 v11, {L_HL}, v11
v_lshl_add_u32 v15, v19, 10, v18
s_lshl_b32 s13, s7, 7
s_add_u32 s13, s13, {L_H2}
v_add_u32 v15, s13, v15
v_bfe_u32 v12, v1, 3, 1
v_lshlrev_b32 v12, 7, v12
v_lshl_add_u32 v12, v3, 4, v12
v_add_u32 v12, {L_HL}, v12
s_waitcnt vmcnt(16)""")
    for b in range(2):
        for k in range(4): unpack(BB + 2 * k, BB + 2 * k + 1, 24 + 4 * b + k)
        layernorm8(BB, BB + 8, "s68")
        A(f"v_add_u32 v16, {L_H2 + 1024*b}, v13\nds_write_b128 v16, v[{BB+12}:{BB+15}]")
    A(f"ds_read_b32 v22, v15\nv_mov_b32 v31, {OOB:#x}")
    for ks in range(2):
        for i in range(8 * ks, 8 * ks + 8):
            A(f"s_waitcnt vmcnt({15 - i})")
            A(f"ds_write_b128 v7, v[{W+4*i}:{W+4*i+3}] offset:{(i&7)*1024}")
        for tt in range(8):
            for jh in range(2):
                d = W + (ks * 8 + tt) * 4 + jh * 2
                A(f"ds_read_b64_tr_b16 v[{d}:{d+1}], v8 offset:{jh*1024+tt*32}")
    A(f"""s_waitcnt lgkmcnt(0)
s_add_u32 s10, s11, 0x9e3779b9
s_lshl_b32 s13, s7, 12
s_add_u32 s13, s13, {WS_MP}
v_mov_b32 v24, s10
v_lshrrev_b32 v60, 1, v13
v_lshrrev_b32 v61, 1, v6
s_lshl_b32 s95, s6, 13
s_lshl_b32 s64, s7, 10
s_add_u32 s64, s64, s95
s_lshr_b32 s92, s64, 1
s_add_u32 s92, s92, {WS_QP8}
s_add_u32 s64, s64, {WS_QP}
s_lshl_b32 s65, s8, 7
s_add_u32 s95, s95, s65
s_lshr_b32 s93, s95, 1
s_add_u32 s93, s93, {WS_QP8}
s_add_u32 s95, s95, {WS_QP}
s_add_u32 s65, s95, 4096
s_mov_b32 s70, {TMO}""")
    unpack(26, 27, 22)
    stamp(1)
    scalar_wait("L_sp1", "s13", [c * 32768 + rq * 1024 + 780 for c in range(2) for rq in range(4)])
    A("L_q_mp:")
    for rq in range(4): A(f"buffer_load_dwordx4 v[{BB+4*rq}:{BB+4*rq+3}], v14, s[52:55], s13 offen offset:{rq*1024} {gpol}")
    for rq in range(4): A(f"buffer_load_dwordx2 v[{48+2*rq}:{49+2*rq}], v14, s[52:55], s13 offen offset:{rq*1024+128} {gpol}")
    A("s_waitcnt vmcnt(0)")
    tagcheck([BB + 3, BB + 7, BB + 11, BB + 15, 49, 51, 53, 55], 24)
    poll_tail("L_q_mp")
    stamp(2)
    def sum4():
        for r in range(3): A(f"v_add_f32 v{BB+r}, v{BB+r}, v{BB+4+r}")
        A(f"v_add_f32 v{BB+3}, v48, v50")
        for r in range(3): A(f"v_add_f32 v{BB+8+r}, v{BB+8+r}, v{BB+12+r}")
        A(f"v_add_f32 v{BB+11}, v52, v54")
        for r in range(4): A(f"v_add_f32 v{BB+r}, v{BB+r}, v{BB+8+r}")
        A(f"v_permlane32_swap_b32 v{BB}, v{BB+2}\nv_permlane32_swap_b32 v{BB+1}, v{BB+3}")
    sum4()
    A(f"v_cvt_pk_bf16_f32 v20, v{BB}, v{BB+1}\nv_cvt_pk_bf16_f32 v21, v{BB+2}, v{BB+3}")
    unpack(18, 19, 21)
    unpack(16, 17, 20)
    A("v_add_f32 v18, 1.0, v18\nv_add_f32 v19, 1.0, v19\nv_cvt_pk_bf16_f32 v21, v18, v19")
    unpack(18, 19, 21)
    A("v_mul_f32 v18, v18, v26\nv_mul_f32 v19, v19, v27\nv_cvt_pk_bf16_f32 v21, v18, v19")
    unpack(18, 19, 21)
    A("v_add_f32 v18, v18, v16\nv_add_f32 v19, v19, v17\nv_cvt_pk_bf16_f32 v21, v18, v19")
    A("ds_write_b32 v11, v21")
    A(f"ds_read_b128 v[{BB}:{BB+3}], v12\nds_read_b128 v[{BB+4}:{BB+7}], v12 offset:64")
    for ks in range(2):
        A(f"s_waitcnt lgkmcnt({1-ks})")
        for tt in range(8): mfma32(TT + 4 * tt, W + (ks * 8 + tt) * 4, BB + 4 * ks, ks == 0)
    A("v_cmp_eq_u32 s[66:67], 1, v63")
    for tt in range(1, 8):
        cur = "s[66:67]" if tt & 1 else "vcc"
        nx = "vcc" if tt & 1 else "s[66:67]"
        if tt < 7: A(f"v_cmp_eq_u32 {nx}, {tt+1}, v63")
        for r in range(4): A(f"v_cndmask_b32 v{TT+r}, v{TT+r}, v{TT+4*tt+r}, {cur}")
    A(f"""v_mov_b32 v{TT+4}, v{TT+3}
v_mov_b32 v{TT+3}, s10
v_mov_b32 v{TT+5}, s10
buffer_store_dwordx4 v[{TT}:{TT+3}], v13, s[52:55], s64 offen sc1
buffer_store_dwordx2 v[{TT+4}:{TT+5}], v60, s[52:55], s92 offen sc1
s_mov_b32 s70, {TMO}""")
    stamp(3)
    scalar_wait("L_sp2", "s95", [r * 1024 + 780 for r in range(8)])
    A("L_q_qp:")
    for m in range(4): A(f"buffer_load_dwordx4 v[{BB+4*m}:{BB+4*m+3}], v6, s[52:55], {'s95' if m < 2 else 's65'} offen offset:{(m&1)*2048} {gpol}")
    for m in range(4): A(f"buffer_load_dwordx2 v[{48+2*m}:{49+2*m}], v61, s[52:55], s93 offen offset:{m*1024} {gpol}")
    A("s_waitcnt vmcnt(0)")
    tagcheck([BB + 3, BB + 7, BB + 11, BB + 15, 49, 51, 53, 55], 24)
    poll_tail("L_q_qp")
    stamp(4)
    sum4()
    A(f"v_add_f32 v{BB}, v{BB}, v{BB+2}\nv_add_f32 v{BB+1}, v{BB+1}, v{BB+3}\nv_cvt_pk_bf16_f32 v20, v{BB}, v{BB+1}")
    A("ds_write_b32 v23, v20")
    A("L_s_bar1:")
    A("s_waitcnt lgkmcnt(0)\ns_add_u32 s10, s11, 0x9e3779b9")
    A("s_barrier\ns_barrier")
    A(f"v_lshlrev_b32 v14, 2, v1\nv_and_b32 v14, 28, v14\nv_add_u32 v14, {L_FL}, v14\nv_mov_b32 v15, s11\nds_write_b32 v14, v15")
    if "c" in abl: A("s_branch L_s_wo")
    if dry:
        A(f"""s_cmp_lg_u32 s3, 7
s_cbranch_scc1 L_nodry
s_mov_b32 s98, 0
s_mov_b32 s99, {OOB:#x}
s_mov_b64 s[44:45], s[16:17]
s_mov_b64 s[46:47], s[38:39]
s_cmp_eq_u32 s76, 4
s_cselect_b32 s3, 0, 1
s_branch L_tail
L_dryret:
s_mov_b32 s3, 7
s_mov_b32 s12, 3
s_mov_b32 s98, {TMO*4}
s_mov_b32 s99, 0
v_mov_b32 v31, {OOB:#x}
v_lshlrev_b32 v13, 4, v1
v_lshlrev_b32 v8, 11, v3
v_lshl_add_u32 v8, v4, 8, v8
v_lshl_add_u32 v8, v5, 3, v8
v_add_u32 v8, {3*8192}, v8
s_waitcnt vmcnt(0) lgkmcnt(0)
L_nodry:""")
    else:
        A("L_dryret:")
    A(f"""s_cmp_lg_u32 s76, 4
s_cbranch_scc1 L_s_wo
s_cmp_lg_u32 s3, 6
s_cbranch_scc1 L_s_wo
v_lshlrev_b32 v14, 15, v3
v_lshl_add_u32 v14, v4, 10, v14
v_lshl_add_u32 v14, v5, 8, v14
s_and_b32 s13, s77, 28
s_lshl_b32 s13, s13, 10
s_lshr_b32 s14, s77, 5
s_lshl_b32 s14, s14, 6
s_add_u32 s13, s13, s14
s_and_b32 s14, s77, 3
s_lshl_b32 s14, s14, 4
s_add_u32 s13, s13, s14
s_add_u32 s13, s13, {WS_MP + 65536}
v_lshlrev_b32 v15, 12, v3
v_lshl_add_u32 v15, v5, 4, v15
v_cmp_eq_u32 vcc, 0, v4
v_cndmask_b32 v15, v31, v15, vcc
s_lshl_b32 s14, s77, 6
s_add_u32 s14, s14, {WS_G}
v_mov_b32 v24, s10
s_mov_b32 s70, {TMO}
L_s_g4p:
buffer_load_dwordx4 v[16:19], v14, s[52:55], s13 offen {gpol}
buffer_load_dwordx2 v[20:21], v14, s[52:55], s13 offen offset:128 {gpol}
s_waitcnt vmcnt(0)""")
    tagcheck([19, 21], 24)
    poll_tail("L_s_g4p", sleep=8)
    for c in ("row_ror:4", "row_ror:8"):
        for r in (16, 17, 18, 20): A(f"v_add_f32_dpp v{r}, v{r}, v{r} {c} row_mask:0xf bank_mask:0xf")
    A("""v_cvt_pk_bf16_f32 v16, v16, v17
v_cvt_pk_bf16_f32 v17, v18, v20
v_mov_b32 v18, s10
v_mov_b32 v19, s10
buffer_store_dwordx4 v[16:19], v15, s[52:55], s14 offen sc1""")
    if x1pre:
        A(f"""v_cmp_gt_u32 vcc, 8, v1
v_cndmask_b32 v15, v31, v13, vcc
v_mov_b32 v20, s11
v_mov_b32 v21, s11
v_mov_b32 v22, s11
v_mov_b32 v23, s11
s_lshl_b32 s13, s77, 7
s_add_u32 s13, s13, {WS_X1}
buffer_store_dwordx4 v[20:23], v15, s[52:55], s13 offen sc1""")
    A("L_s_wo:")
    A("s_load_dwordx2 s[24:25], s[0:1], 32")
    A(f"""v_lshlrev_b32 v14, 10, v3
v_lshl_add_u32 v14, v2, 4, v14
s_lshl_b32 s64, s6, 17
s_lshl_b32 s13, s12, 8
s_add_u32 s64, s64, s13
v_lshlrev_b32 v30, 4, v3
v_cmp_eq_u32 vcc, 0, v2
v_cndmask_b32 v30, v31, v30, vcc
s_lshl_b32 s74, s8, 18
s_lshl_b32 s13, s12, 16
s_add_u32 s74, s74, s13
s_lshl_b32 s13, s6, 2
s_add_u32 s13, s13, s9
s_lshl_b32 s13, s13, 6
s_add_u32 s74, s74, s13
s_add_u32 s74, s74, {WS_Y}
s_waitcnt vmcnt(0) lgkmcnt(0)""")
    if "w" in abl: A("s_branch L_s_now")
    srd(44, 24, 4096 * 1024)
    def wo_stage(i):
        A(f"ds_write_b128 v7, v[{W+4*i}:{W+4*i+3}] offset:{(i&7)*1024}")
        if i & 7 == 7:
            ks = i >> 3
            for tt in range(8):
                for jh in range(2):
                    d = W + (ks * 8 + tt) * 4 + jh * 2
                    A(f"ds_read_b64_tr_b16 v[{d}:{d+1}], v8 offset:{jh*1024+tt*32}")
    for i in range(32):
        if i >= SD:
            A(f"s_waitcnt vmcnt({SD-1})")
        A(f"buffer_load_dwordx4 v[{W+4*i}:{W+4*i+3}], v14, s[44:47], s64 offen {wpol}")
        if i < 31: A("s_addk_i32 s64, 0x1000")
        if i >= SD: wo_stage(i - SD)
    for i in range(max(0, 32 - SD), 32):
        A(f"s_waitcnt vmcnt({31 - i})")
        wo_stage(i)
    A("L_s_now:")
    stamp(5)
    if "f" in abl: A("s_branch L_s_noffn")
    W2 = 208
    A("s_cmp_lg_u32 s76, 1\ns_cbranch_scc1 L_s_noffn")
    A("s_load_dwordx4 s[28:31], s[0:1], 48")
    srd(44, 32, 1376 * 1024)
    A("s_lshl_b32 s64, s77, 15\ns_lshl_b32 s13, s12, 8\ns_add_u32 s64, s64, s13")
    for i in range(8):
        if i >= SF: A(f"s_waitcnt vmcnt({SF-1})")
        A(f"buffer_load_dwordx4 v[{W2+4*i}:{W2+4*i+3}], v14, s[44:47], s64 offen {tpol}\ns_addk_i32 s64, 0x1000")
    A(f"""v_lshrrev_b32 v9, 2, v1
v_mul_u32_u24 v9, 2752, v9
v_lshl_add_u32 v9, v5, 4, v9
s_and_b32 s13, s12, 1
s_mul_i32 s64, s13, {256*2752}
s_lshl_b32 s14, s77, 6
s_add_u32 s64, s64, s14
s_lshl_b32 s65, s12, 14
s_add_u32 s65, s65, {L_EXT}
s_waitcnt lgkmcnt(0)
s_cmp_lt_u32 s12, 2
s_cselect_b32 s44, s28, s30
s_cselect_b32 s45, s29, s31
s_mov_b32 s46, {512*2752:#x}""")
    for i in range(8):
        A(f"s_waitcnt vmcnt({7 - i})\nds_write_b128 v7, v[{W2+4*i}:{W2+4*i+3}] offset:{i*1024}")
    for tt in range(8):
        for jh in range(2):
            A(f"ds_read_b64_tr_b16 v[{W2+4*tt+2*jh}:{W2+4*tt+2*jh+1}], v8 offset:{jh*1024+tt*32}")
    for i in range(16):
        if i >= SF: A(f"s_waitcnt vmcnt({SF-1})")
        A(f"s_mov_b32 m0, s65\nbuffer_load_dwordx4 v9, s[44:47], s64 offen {fpol} lds\ns_add_u32 s64, s64, {16*2752:#x}\ns_addk_i32 s65, 0x400")
    A("L_s_noffn:")
    A(f"""v_mul_u32_u24 v15, {OSTR}, v5
v_lshl_add_u32 v15, v3, 4, v15
v_add_u32 v15, {L_O}, v15
v_and_b32 v10, 1, v1
v_lshlrev_b32 v29, 4, v3
s_mov_b32 s13, {32*3072}
v_mul_lo_u32 v11, v10, s13
v_add_u32 v29, v29, v11
v_cmp_gt_u32 vcc, 2, v2
v_cndmask_b32 v29, v31, v29, vcc
s_mul_i32 s75, s12, {8*3072}
s_lshl_b32 s13, s77, 6
s_add_u32 s75, s75, s13
s_add_u32 s75, s75, {WS_OP}
v_lshlrev_b32 v28, 6, v10
v_lshl_add_u32 v28, v3, 4, v28
v_add_u32 v28, {L_HH}, v28
v_mov_b32 v20, {L_FL}
v_mov_b32 v21, s10
v_mov_b32 v22, 0xffffff00
s_lshr_b32 s92, s10, 8
s_lshr_b32 s93, s10, 16
s_lshr_b32 s94, s10, 24
s_waitcnt vmcnt(0) lgkmcnt(0)""")
    if dry:
        A(f"""s_mov_b32 s98, 0
s_mov_b32 s70, 0
s_mov_b32 s64, s74
s_mov_b32 s65, s75
v_mov_b32 v10, v29
v_mov_b32 v11, v30
v_mov_b32 v29, v31
v_mov_b32 v30, v31
s_branch L_stepA
L_dryret2:
s_mov_b32 s74, s64
s_mov_b32 s75, s65
v_mov_b32 v29, v10
v_mov_b32 v30, v11
s_waitcnt vmcnt(0) lgkmcnt(0)""")
    A(f"s_mov_b32 s98, {TMO*4}\ns_mov_b32 s70, {TMO*4}")
    stamp(6)
    A("s_barrier\nL_stepA:")
    stamp(7)
    if "t" in abl: A("s_branch L_fin2")
    OB, DY = 192, 32
    TAGB = ["s10", "s92", "s93", "s94"]
    for ks in range(4): A(f"ds_read_b128 v[{OB+4*ks}:{OB+4*ks+3}], v15 offset:{ks*64}")
    def ypost(tt):
        D = DY + 4 * tt
        ops = [f"v_add_f32_dpp v{D+r}, v{D+r}, v{D+r} quad_perm:[1,0,3,2] row_mask:0xf bank_mask:0xf" for r in range(4)]
        ops += [f"v_add_f32_dpp v{D+r}, v{D+r}, v{D+r} quad_perm:[2,3,0,1] row_mask:0xf bank_mask:0xf" for r in range(4)]
        ops += [f"v_bfi_b32 v{D+r}, v22, v{D+r}, {TAGB[r]}" for r in range(4)]
        ops += [f"buffer_store_dwordx4 v[{D}:{D+3}], v30, s[52:55], s74 offen sc1" + ("\ns_addk_i32 s74, 0x2000" if tt < 7 else "")]
        return ops
    for tt in range(8):
        D = DY + 4 * tt
        for ks in range(4):
            if tt == 0: A(f"s_waitcnt lgkmcnt({3-ks})")
            mfma32(D, W + (ks * 8 + tt) * 4, OB + 4 * ks, ks == 0)
            if tt >= 2:
                po = ypost(tt - 2)
                for o in po[3 * ks: 3 * ks + 3]: A(o)
                if ks == 3: A(po[12])
    for tt in (6, 7):
        for o in ypost(tt): A(o)
    stamp(8)
    A("s_cmp_lg_u32 s76, 1\ns_cbranch_scc1 L_fin2")
    A("""L_f2:
ds_read_b128 v[24:27], v20 offset:16
ds_read_b128 v[16:19], v28
s_waitcnt lgkmcnt(0)""")
    tagcheck([24, 25, 26, 27], 21)
    poll_dry("L_f2")
    stamp(9)
    def opost(tt):
        D = DY + 4 * tt
        for r in range(4): A(f"v_bfi_b32 v{D+r}, v22, v{D+r}, {TAGB[r]}")
        A(f"buffer_store_dwordx4 v[{D}:{D+3}], v29, s[52:55], s75 offen sc1\ns_addk_i32 s75, 0xc00")
    for tt in range(8):
        mfma32(DY + 4 * tt, W2 + 4 * tt, 16, True)
        if tt >= 2: opost(tt - 2)
    opost(6); opost(7)
    stamp(10)
    A("L_fin2:")
    if dry: A("s_cmp_eq_u32 s98, 0\ns_cbranch_scc1 L_dryret2")
    finish()
    for st in stubs: A(st)
    if diag:
        A("L_dump:")
        A("s_memrealtime s[78:79]\ns_waitcnt lgkmcnt(0)\ns_mov_b32 s91, s78")
        A("v_mov_b32 v8, 0")
        for i in range(12): A(f"v_writelane_b32 v8, s{80+i}, {i}")
        if dbg:
            A("""s_cmp_ge_u32 s3, 4
s_cbranch_scc1 L_bail
s_load_dwordx2 s[40:41], s[0:1], 96
s_not_b32 s12, s80
s_not_b32 s13, s85
s_cmp_eq_u32 s76, 4
s_cselect_b32 s14, s88, 0
s_cselect_b32 s15, s90, 0
v_mov_b32 v8, 0
v_writelane_b32 v8, s12, 0
v_writelane_b32 v8, s80, 1
v_writelane_b32 v8, s81, 2
v_writelane_b32 v8, s82, 3
v_writelane_b32 v8, s83, 4
v_writelane_b32 v8, s13, 5
v_writelane_b32 v8, s85, 6
v_writelane_b32 v8, s14, 7
v_writelane_b32 v8, s15, 8
v_writelane_b32 v8, s91, 9
s_waitcnt lgkmcnt(0)""")
            srd(56, 40, 40)
            A("v_lshlrev_b32 v9, 2, v1\nbuffer_atomic_umax v8, v9, s[56:59], 0 offen sc1")
        else:
            A(f"""s_lshl_b32 s12, s2, 3
s_add_u32 s12, s12, s3
s_lshl_b32 s12, s12, 8
s_add_u32 s12, s12, {WS_STAMP}
s_mov_b32 s54, 0x300000
v_lshlrev_b32 v9, 2, v1
buffer_store_dword v8, v9, s[52:55], s12 offen""")
    A("L_bail:\ns_endpgm")
    A.raw("L_codeend:")
    A.raw(f""".section .rodata,"a"
.p2align 6
.amdhsa_kernel {KNAME}
  .amdhsa_next_free_vgpr 256
  .amdhsa_next_free_sgpr 102
  .amdhsa_accum_offset 256
  .amdhsa_group_segment_fixed_size 0
  .amdhsa_kernarg_size 112
  .amdhsa_user_sgpr_count 2
  .amdhsa_user_sgpr_kernarg_segment_ptr 1
  .amdhsa_system_sgpr_workgroup_id_x 1
  .amdhsa_float_denorm_mode_32 3
.end_amdhsa_kernel""")
    return A.text()

if __name__ == "__main__":
    out = sys.argv[1]
    kw = json.loads(sys.argv[2]) if len(sys.argv) > 2 else {}
    open(out, "w").write(gen(**kw))
```

```python
import sys, json
sys.path.insert(0, "dev")
from asmlib import Asm

KNAME = "adaLN_cond__mha_block_cached__glu_gated_swiglu__decode_kernel"

WS_G, WS_X1, WS_ML, WS_QP, WS_QP8, WS_Y, WS_OP, WS_MP = 0x1000, 0x6000, 0x8000, 0x10000, 0x50000, 0x70000, 0xf0000, 0x150000
WS_X1 = 0x180000
WS_END = 0x188000
WS_STAMP = 0x200000
OSTR = 272
LOG2E = 0x3fb8aa3b
SCALE = 0x3db504f3
EPS = 0x3727c5ac
OOB = 0x7ff00000
TMO = 1 << 18

def gen(R=48, X=28, CAP0=6, CAP=6, diag=False, NB=(128, 128, 128, 128), NBF=None, SD=3, SMD=8, SQ=16, FP=60, shr=3,
        dsleep=30, wpol="", fpol="", gpol="sc1", tpol="nt", kvpol="nt", prio=3, SF=3, abl="", bsleep=0, csleep=0, cpol="sc1", dbg=0, WUP=1, CAP2=None, SW=64, fastc=1, f2sleep=0, dry=1, x1pre=0, pp=1, stag=6, ppx=0, ppd=0, xrep=1, xsleep=0, wmask=31, MLI=3):
    A = Asm()
    NBF = NBF or NB
    assert sum(NB) == 512 and sum(NBF) == 512
    VARS = sorted({(n - w + 3) // 4 for n in list(NB) + list(NBF) for w in range(4)})
    NS = (4 * max(VARS) + 15) // 16
    L_EXT = 32768
    SM = L_EXT + 4096 * X
    SM = max(SM, L_EXT + 65536)
    L_HL, L_SC, L_Q, L_HH, L_FL, L_O, L_DUM, L_H2 = SM, SM + 256, SM + 768, SM + 1024, SM + 1152, SM + 1184, SM + 2272, SM + 3296
    LDS_BYTES = L_H2 + 2048
    assert LDS_BYTES <= 163840

    def stamp(idx):
        if not diag: return
        A("s_memrealtime s[78:79]\ns_waitcnt lgkmcnt(0)")
        A(f"s_mov_b32 s{80+idx}, s78")
    def srd(d, base, nrec, off_lo=None):
        if off_lo is None:
            A(f"s_mov_b32 s{d}, s{base}\ns_mov_b32 s{d+1}, s{base+1}")
        else:
            A(f"s_add_u32 s{d}, s{base}, {off_lo}\ns_addc_u32 s{d+1}, s{base+1}, 0")
        A(f"s_mov_b32 s{d+2}, {nrec if isinstance(nrec, str) else hex(nrec)}\ns_mov_b32 s{d+3}, 0x20000")
    def finish():
        A("s_branch L_dump" if diag else "s_endpgm")
    def poll_tail(lbl, cnt="s70", sleep=0):
        A(f"s_sub_u32 {cnt}, {cnt}, 1\ns_cbranch_scc1 L_bail")
        if sleep:
            ok = A.newlabel("L_ok")
            A(f"s_cbranch_vccz {ok}\ns_sleep {sleep}\ns_branch {lbl}\n{ok}:")
        else:
            A(f"s_cbranch_vccnz {lbl}")
    stubs = []
    def poll_dry(lbl):
        out = A.newlabel("L_out"); to = A.newlabel("L_to")
        A(f"s_sub_u32 s70, s70, 1\ns_cbranch_scc1 {to}\ns_cbranch_vccnz {lbl}\n{out}:")
        stubs.append(f"{to}:\ns_cmp_eq_u32 s98, 0\ns_cbranch_scc1 {out}\ns_endpgm")
    def unpack(lo, hi, src):
        A(f"v_lshlrev_b32 v{lo}, 16, v{src}\nv_and_b32 v{hi}, 0xffff0000, v{src}")
    def allreduce(op, regs):
        for c in ("row_ror:8", "row_ror:4", "row_ror:2", "row_ror:1"):
            for r in regs:
                A(f"{op}_dpp v{r}, v{r}, v{r} {c} row_mask:0xf bank_mask:0xf")
        for r in regs:
            A(f"{op}_dpp v{r}, v{r}, v{r} row_bcast:15 row_mask:0xa bank_mask:0xf")
        for r in regs:
            A(f"{op}_dpp v{r}, v{r}, v{r} row_bcast:31 row_mask:0xc bank_mask:0xf")
    def mfma32(D, a, b, first):
        A(f"v_mfma_f32_16x16x32_bf16 v[{D}:{D+3}], v[{a}:{a+3}], v[{b}:{b+3}], " + ("0" if first else f"v[{D}:{D+3}]"))
    def tagcheck(regs, tagv):
        for i, rr in enumerate(regs):
            if i == 0: A(f"v_cmp_ne_u32 vcc, v{tagv}, v{rr}")
            else: A(f"v_cmp_ne_u32 s[66:67], v{tagv}, v{rr}\ns_or_b64 vcc, vcc, s[66:67]")
    def scalar_wait(lbl, soff, offs):
        A(f"s_add_u32 s96, s42, {soff}\ns_addc_u32 s97, s43, 0\ns_mov_b32 s71, 64")
        A(f"{lbl}:")
        for i, o in enumerate(offs): A(f"s_load_dword s{16+i}, s[96:97], {o} glc")
        A("s_waitcnt lgkmcnt(0)")
        for i in range(len(offs)): A(f"s_xor_b32 s{16+i}, s{16+i}, s10")
        for i in range(1, len(offs)): A(f"s_or_b32 s16, s16, s{16+i}")
        A(f"s_sub_u32 s71, s71, 1\ns_cbranch_scc1 {lbl}x\ns_cmp_lg_u32 s16, 0\ns_cbranch_scc1 {lbl}\n{lbl}x:")
    def roles():
        l = A.newlabel("L_role")
        A(f"""s_lshr_b32 s12, s2, 4
s_lshl_b32 s77, s4, 3
s_and_b32 s13, s12, 7
s_add_u32 s77, s77, s13
s_mov_b32 s72, s77
s_lshr_b32 s76, s12, 3
s_lshl_b32 s76, s76, 2
s_cmp_ge_u32 s9, 2
s_cbranch_scc1 {l}
s_lshl_b32 s72, s4, 4
s_add_u32 s72, s72, s12
s_add_u32 s72, s72, 64
s_lshr_b32 s77, s4, 1
s_mul_i32 s77, s77, 11
s_add_u32 s77, s77, s12
s_cmp_lt_u32 s77, 43
s_cselect_b32 s76, 1, 0
s_cmp_lt_u32 s12, 11
s_cselect_b32 s76, s76, 0
s_cmp_eq_u32 s9, 0
s_cselect_b32 s76, s76, 0
{l}:""")
    def layernorm8(X_, T, eps_s):
        X = X_
        A(f"""v_add_f32 v{T}, v{X}, v{X+1}
v_add_f32 v{T+1}, v{X+2}, v{X+3}
v_add_f32 v{T+2}, v{X+4}, v{X+5}
v_add_f32 v{T+3}, v{X+6}, v{X+7}
v_add_f32 v{T}, v{T}, v{T+1}
v_add_f32 v{T+2}, v{T+2}, v{T+3}
v_add_f32 v{T}, v{T}, v{T+2}""")
        allreduce("v_add_f32", [T])
        A(f"v_readlane_b32 s71, v{T}, 63")
        A(f"v_mov_b32 v{T+1}, 0x3b000000\nv_mul_f32 v{T}, s71, v{T+1}")
        A(f"v_cvt_pk_bf16_f32 v{T+2}, v{T}, v{T}")
        for k in range(8): A(f"v_sub_f32 v{T+4+k}, v{X+k}, v{T}")
        A(f"v_and_b32 v{T+2}, 0xffff0000, v{T+2}")
        A(f"v_mul_f32 v{T+3}, v{T+4}, v{T+4}\nv_mul_f32 v{T}, v{T+5}, v{T+5}")
        for k in range(2, 8, 2):
            A(f"v_fmac_f32 v{T+3}, v{T+4+k}, v{T+4+k}\nv_fmac_f32 v{T}, v{T+5+k}, v{T+5+k}")
        A(f"v_add_f32 v{T+3}, v{T+3}, v{T}")
        steps = ["row_ror:8 row_mask:0xf", "row_ror:4 row_mask:0xf", "row_ror:2 row_mask:0xf", "row_ror:1 row_mask:0xf", "row_bcast:15 row_mask:0xa", "row_bcast:31 row_mask:0xc"]
        fill = [f"v_sub_f32 v{X+k}, v{X+k}, v{T+2}" for k in range(8)] + [f"v_cvt_pk_bf16_f32 v{T+4+k}, v{X+2*k}, v{X+2*k+1}" for k in range(4)]
        for si, st in enumerate(steps):
            A(fill[2 * si]); A(fill[2 * si + 1])
            A(f"v_add_f32_dpp v{T+3}, v{T+3}, v{T+3} {st} bank_mask:0xf")
        unpack(X, X + 1, T + 4)
        A(f"v_readlane_b32 s71, v{T+3}, 63")
        unpack(X + 2, X + 3, T + 5)
        A(f"v_mul_f32 v{T}, s71, v{T+1}")
        unpack(X + 4, X + 5, T + 6)
        A(f"v_cvt_pk_bf16_f32 v{T}, v{T}, v{T}")
        unpack(X + 6, X + 7, T + 7)
        A(f"v_and_b32 v{T}, 0xffff0000, v{T}")
        A(f"v_add_f32 v{T}, {eps_s}, v{T}")
        A(f"v_cvt_pk_bf16_f32 v{T}, v{T}, v{T}\nv_and_b32 v{T}, 0xffff0000, v{T}")
        A(f"v_sqrt_f32 v{T}, v{T}")
        A(f"v_cvt_pk_bf16_f32 v{T}, v{T}, v{T}\nv_and_b32 v{T}, 0xffff0000, v{T}")
        A(f"v_rcp_f32 v{T}, v{T}")
        for k in range(8): A(f"v_mul_f32 v{X+k}, v{X+k}, v{T}")
        for k in range(4): A(f"v_cvt_pk_bf16_f32 v{T+4+k}, v{X+2*k}, v{X+2*k+1}")
        for k in range(4): unpack(X + 2 * k, X + 2 * k + 1, T + 4 + k)

    hdr = open("adaLN_cond__mha_block_cached__glu_gated_swiglu__decode.s.ref").read().split("\n")
    for l in hdr:
        if l.startswith("; @launch"): break
        A.raw(l)
    A.raw(f"; @launch grid=(256,1,1) block=(512,1,1) lds={LDS_BYTES}")
    A.raw('.amdgcn_target "amdgcn-amd-amdhsa--gfx950"\n.text')
    A.raw(f".globl {KNAME}\n.p2align 8\n.type {KNAME},@function\n{KNAME}:")
    A("s_cmp_ge_u32 s2, 256\ns_cbranch_scc1 L_bail")
    A("s_load_dwordx16 s[16:31], s[0:1], 0\ns_load_dwordx8 s[32:39], s[0:1], 64\ns_load_dwordx4 s[40:43], s[0:1], 96")
    if diag:
        for i in range(12): A(f"s_mov_b32 s{80+i}, 0")
        A("s_memrealtime s[78:79]")
    A(f"""v_and_b32 v1, 63, v0
v_lshrrev_b32 v2, 6, v0
v_readfirstlane_b32 s3, v2
s_mov_b32 s98, {TMO*4}
s_mov_b32 s99, 0
s_and_b32 s4, s2, 7
s_lshr_b32 s5, s2, 3
s_lshr_b32 s8, s2, 7
s_lshr_b32 s6, s2, 4
s_and_b32 s6, s6, 7
s_lshl_b32 s6, s6, 2
s_bfe_u32 s7, s2, 0x20001
s_add_u32 s6, s6, s7
s_and_b32 s9, s5, 1
s_lshl_b32 s9, s9, 1
s_and_b32 s7, s2, 1
s_add_u32 s9, s9, s7
s_lshl_b32 s7, s8, 2
s_add_u32 s7, s7, s9
v_and_b32 v2, 15, v1
v_lshrrev_b32 v3, 4, v1
v_bfe_u32 v4, v1, 2, 2
v_and_b32 v5, 3, v1
s_cmp_ge_u32 s3, 4
s_cbranch_scc1 L_service""")
    RING = 256 - 4 * R
    QOP, MSK, DB, OA, SR = 8, 24, 28, 36, 40
    assert RING >= SR + NS
    VK, VV = 6, 7
    base = [0, NB[0], NB[0] + NB[1], NB[0] + NB[1] + NB[2]]
    basef = [0, NBF[0], NBF[0] + NBF[1], NBF[0] + NBF[1] + NBF[2]]
    A(f"""s_lshl_b32 s12, s3, 12
v_lshlrev_b32 v{VK}, 8, v4
v_lshl_add_u32 v{VK}, v3, 6, v{VK}
v_lshl_add_u32 v{VK}, v5, 4, v{VK}
v_add_u32 v{VK}, s12, v{VK}
v_lshlrev_b32 v{VV}, 4, v1
v_add_u32 v{VV}, s12, v{VV}
s_lshl_b32 s13, s2, 19
s_and_b32 s13, s13, 0xff800000
s_lshl_b32 s14, s6, 21
s_and_b32 s14, s14, 0x600000
s_add_u32 s13, s13, s14
s_lshr_b32 s12, s4, 1
s_mul_i32 s12, s12, 11
s_lshr_b32 s15, s2, 4
s_add_u32 s12, s12, s15
s_max_u32 s15, s15, 10
s_add_u32 s12, s12, s15
s_mov_b32 s14, {base[0] | base[1] << 16:#x}
s_mov_b32 s15, {base[2] | base[3] << 16:#x}
s_mov_b32 s75, {NB[0] | NB[1] << 8 | NB[2] << 16 | NB[3] << 24:#x}
s_lshr_b32 s64, s2, 4
s_cmp_lt_u32 s64, 11
s_cselect_b32 s12, s12, 99
s_cmp_lt_u32 s12, 53
s_cselect_b32 s14, {basef[0] | basef[1] << 16:#x}, s14
s_cselect_b32 s15, {basef[2] | basef[3] << 16:#x}, s15
s_cselect_b32 s75, {NBF[0] | NBF[1] << 8 | NBF[2] << 16 | NBF[3] << 24:#x}, s75
s_lshl_b32 s12, s9, 4
s_lshr_b64 s[14:15], s[14:15], s12
s_and_b32 s14, s14, 0xffff
s_lshl_b32 s14, s14, 12
s_add_u32 s13, s13, s14
s_lshl_b32 s12, s9, 3
s_lshr_b32 s75, s75, s12
s_and_b32 s75, s75, 0xff
s_lshl_b32 s74, s75, 12
s_mov_b32 s64, 0
s_mov_b32 s65, 0
s_waitcnt lgkmcnt(0)""")
    if diag: A("s_mov_b32 s80, s78")
    srd(44, 18, "s74", "s13")
    srd(48, 20, "s74", "s13")
    import copy
    class St: pass
    S = St()
    S.issued = []; S.known = 0; S.slot_of = {}; S.free = [RING + 4 * k for k in range(R)][::-1]
    VS = [208 + 4 * k for k in range(8)]
    S.n = R + X; S.l = R; S.done = None; S.NP = 4 * min(VARS)
    def kv_load(i, lds=False):
        NP = S.NP
        if i >= NP:
            S.slot_of[i] = VS[(i - NP) & 7]; S.free.remove(S.slot_of[i])
        elif not lds:
            S.slot_of[i] = [x for x in S.free if x not in VS or i < 4 * min(VARS) - 20][-1]; S.free.remove(S.slot_of[i])
        slot = S.slot_of.get(i)
        j = i % NP
        va, sr, so = (VK, 44, "s64") if i < NP else (VV, 48, "s65")
        if lds:
            if j & 3 == 0: A(f"s_add_u32 m0, s73, {(i - R) * 1024}")
            A(f"buffer_load_dwordx4 v{va}, s[{sr}:{sr+3}], {so} offen offset:{(j&3)*1024} {kvpol} lds")
        else:
            A(f"buffer_load_dwordx4 v[{slot}:{slot+3}], v{va}, s[{sr}:{sr+3}], {so} offen offset:{(j&3)*1024} {kvpol}")
        if j & 3 == 3: A(f"s_addk_i32 {so}, 0x4000")
        S.issued.append(i)
    def wait_out(n):
        if len(S.issued) - S.known > n:
            A(f"s_waitcnt vmcnt({n})")
            S.known = len(S.issued) - n
    def wait_piece(p):
        wait_out(len(S.issued) - 1 - S.issued.index(p))
    assert R % 4 == 0 and X % 4 == 0
    for i in range(CAP0): kv_load(i)
    A("s_load_dword s11, s[42:43], 0")
    A(f"""v_and_b32 v28, 1, v1
v_cmp_eq_u32 vcc, 1, v28
v_mov_b32 v29, 0xffff
v_mov_b32 v30, 0xffff0000
v_cndmask_b32 v29, v29, v30, vcc
v_lshrrev_b32 v28, 1, v2""")
    for r in range(4):
        A(f"v_cmp_eq_u32 vcc, {r}, v28\nv_cndmask_b32 v{MSK+r}, 0, v29, vcc")
    srd(52, 42, WS_END)
    roles()
    A(f"""v_lshrrev_b32 v37, 2, v2
v_lshlrev_b32 v36, 6, v3
v_lshl_add_u32 v36, v37, 4, v36
v_add_u32 v36, {L_Q}, v36
s_mul_i32 s73, s3, {X*1024}
s_add_u32 s73, s73, {L_EXT}
v_lshlrev_b32 v38, 4, v1
v_add_u32 v38, s73, v38
s_sub_u32 s75, s75, s3
s_add_u32 s75, s75, 3
s_lshr_b32 s75, s75, 2
v_mov_b32 v{SR+NS-1}, 0xff800000
v_mov_b32 v{SR+NS-2}, 0xff800000""")
    assert 4 * min(VARS) > 16 * (NS - 2)
    for i in range(CAP0, R):
        wait_out(CAP0 - 1)
        kv_load(i)
    if X:
        A(f"s_mov_b32 m0, s73\ns_mov_b32 s12, {X//4 - 1}\nL_dma:")
        for j in range(4):
            A(f"s_waitcnt vmcnt({CAP0-1})\nbuffer_load_dwordx4 v{VK}, s[44:47], s64 offen offset:{j*1024} {kvpol} lds")
        A("s_addk_i32 s64, 0x4000\ns_add_u32 m0, m0, 0x1000\ns_sub_u32 s12, s12, 1\ns_cbranch_scc0 L_dma")
        S.issued.extend(range(R, R + X)); S.known = len(S.issued) - CAP0
    A("s_waitcnt lgkmcnt(0)")
    A("s_add_u32 s10, s11, 0x9e3779b9")
    stamp(1)
    A("s_barrier")
    stamp(2)
    A(f"ds_read_b128 v[{DB}:{DB+3}], v36")
    A("s_waitcnt lgkmcnt(0)")
    for t in range(4):
        A(f"v_cmp_eq_u32 vcc, {t}, v5")
        for r in range(4): A(f"v_cndmask_b32 v{QOP+4*t+r}, 0, v{DB+r}, vcc")
    def post_ops(G):
        u = G & 3; Sg = SR + (G >> 2); D = DB + 4 * (G & 1)
        ops = [f"v_mov_b32_dpp v{Sg}, v{D+u} quad_perm:[0,1,2,3] row_mask:0xf bank_mask:{1<<u:#x}"]
        for b in range(4):
            if b == u: continue
            ops.append(f"v_add_f32_dpp v{Sg}, v{D+b}, v{Sg} row_ror:{4 * ((u - b) % 4)} row_mask:0xf bank_mask:{1<<u:#x}")
        return ops
    def cap(c):
        return CAP2 if (CAP2 and c >= S.NP + SW) else CAP
    def prefill(c):
        while S.n < 2 * S.NP and S.n - c <= cap(c) and S.free:
            wait_out(cap(c) - 1)
            kv_load(S.n)
            S.n += 1
            S.done = c
    def refill(c):
        S.free.append(S.slot_of[c])
        if S.done == c: return
        issued_now = False
        if S.n < 2 * S.NP and (S.n - c <= CAP or c % shr == shr - 1):
            wait_out(CAP - 1)
            kv_load(S.n)
            S.n += 1
            issued_now = True
        if S.l < R + X and len(S.free) >= 2 and (S.issued[-1] != S.n - 1 or True) and not issued_now:
            p = S.l; slot = S.slot_of[p] = S.free.pop(0)
            assert True
            wait_piece(p)
            A(f"ds_read_b128 v[{slot}:{slot+3}], v38 offset:{(p-R)*1024}")
            S.l = p + 1
    def k_step(i):
        slot = S.slot_of[i]
        G = i >> 2; t = i & 3; D = DB + 4 * (G & 1)
        if i == R: A("s_waitcnt lgkmcnt(0)\ns_barrier"); assert S.l == R + X
        wait_piece(i)
        prefill(i)
        mfma32(D, slot, QOP + 4 * t, t == 0)
        po = post_ops(G - 1) if (G > 0 and t >= 2) else None
        if po: A(po[2 * (t - 2)])
        refill(i)
        if po: A(po[2 * (t - 2) + 1])
    ic = 0
    while S.n < S.NP - 1:
        k_step(ic); ic += 1
    assert ic > R
    for v in VARS[1:]:
        A(f"s_cmp_eq_u32 s75, {v}\ns_cbranch_scc1 L_var{v}")
    snap = copy.deepcopy(S.__dict__); hist = list(A.hist)
    T0 = 8; AB = 8
    def sel(i):
        P = SR + (i >> 4); c = i & 15; a = AB + 4 * (i & 1)
        for r in range(4):
            A(f"v_and_b32_dpp v{a+r}, v{P}, v{MSK+r} row_newbcast:{c} row_mask:0xf bank_mask:0xf")
    def ml_loads(hf):
        A(f"""s_load_dwordx16 s[16:31], s[96:97], {hf*128} glc
s_load_dwordx8 s[32:39], s[96:97], {hf*128+64} glc
s_load_dwordx8 s[56:63], s[96:97], {hf*128+96} glc""")
    for v in VARS:
        S.__dict__.update(copy.deepcopy(snap)); A.hist = list(hist)
        NP = S.NP = 4 * v
        ns = (NP + 15) // 16
        A(f"L_var{v}:")
        for i in range(ic, NP): k_step(i)
        for o in post_ops(NP // 4 - 1): A(o)
        assert S.n == NP + CAP, (S.n, NP)
        if v != VARS[-1]: A("s_branch L_soft")
    A("L_soft:\ns_nop 1")
    ns = NS
    stamp(3)
    A(f"s_mov_b32 s12, {SCALE:#x}\ns_mov_b32 s13, {LOG2E:#x}")
    def round_pairs():
        for k in range(0, ns, 2):
            A(f"v_cvt_pk_bf16_f32 v{T0+k//2}, v{SR+k}, v{SR+min(k+1, ns-1)}")
        for k in range(0, ns, 2):
            if k + 1 < ns: unpack(SR + k, SR + k + 1, T0 + k // 2)
            else: A(f"v_lshlrev_b32 v{SR+k}, 16, v{T0+k//2}")
    round_pairs()
    for k in range(ns): A(f"v_mul_f32 v{SR+k}, s12, v{SR+k}")
    round_pairs()
    A(f"v_max3_f32 v{T0}, v{SR}, v{SR+1}, v{SR+2}\nv_max3_f32 v{T0+1}, v{SR+3}, v{SR+4}, v{SR+5}\nv_max3_f32 v{T0}, v{T0}, v{SR+6}, v{SR+7}")
    if ns > 8: A(f"v_max_f32 v{T0+1}, v{T0+1}, v{SR+8}")
    A(f"v_max_f32 v{T0}, v{T0}, v{T0+1}")
    allreduce("v_max_f32", [T0])
    A(f"v_readlane_b32 s73, v{T0}, 63")
    for k in range(ns): A(f"v_subrev_f32 v{SR+k}, s73, v{SR+k}")
    for k in range(ns): A(f"v_mul_f32 v{SR+k}, s13, v{SR+k}")
    for k in range(ns): A(f"v_exp_f32 v{SR+k}, v{SR+k}")
    A(f"""v_add_f32 v{T0}, v{SR}, v{SR+1}
v_add_f32 v{T0+1}, v{SR+2}, v{SR+3}
v_add_f32 v{T0+2}, v{SR+4}, v{SR+5}
v_add_f32 v{T0+3}, v{SR+6}, v{SR+7}
v_add_f32 v{T0}, v{T0}, v{T0+1}
v_add_f32 v{T0+2}, v{T0+2}, v{T0+3}""")
    if ns > 8: A(f"v_add_f32 v{T0}, v{T0}, v{SR+8}")
    A(f"v_add_f32 v18, v{T0}, v{T0+2}")
    for k in range(ns): A(f"v_cvt_pk_bf16_f32 v{SR+k}, v{SR+k}, v{SR+k}")
    allreduce("v_add_f32", [18])
    A(f"""v_mov_b32 v16, s73
v_mov_b32 v17, s10
v_mov_b32 v19, s10
s_lshl_b32 s12, s8, 5
s_add_u32 s12, s12, s6
s_lshl_b32 s12, s12, 8
s_add_u32 s12, s12, {WS_ML}
s_add_u32 s96, s42, s12
s_addc_u32 s97, s43, 0
s_lshl_b32 s13, s9, 6
s_add_u32 s12, s12, s13
s_lshl_b32 s13, s3, 4
s_add_u32 s12, s12, s13
v_mov_b32 v20, {OOB:#x}
v_mov_b32 v21, 0
v_cmp_eq_u32 vcc, 63, v1
v_cndmask_b32 v20, v20, v21, vcc
v_lshlrev_b32 v22, 3, v1
v_add_u32 v22, {L_DUM}, v22
buffer_store_dwordx4 v[16:19], v20, s[52:55], s12 offen sc1
s_mul_i32 s12, s3, {OSTR}
s_add_u32 s12, s12, {L_O}
v_lshlrev_b32 v28, 4, v2
v_lshl_add_u32 v28, v3, 3, v28
v_add_u32 v28, s12, v28
v_cmp_gt_u32 vcc, 32, v1
v_cndmask_b32 v28, v22, v28, vcc
v_mov_b32 v{OA}, 0
v_mov_b32 v{OA+1}, 0
v_mov_b32 v{OA+2}, 0
v_mov_b32 v{OA+3}, 0
s_mov_b64 s[44:45], s[16:17]
s_mov_b64 s[46:47], s[38:39]
s_sub_u32 s75, s75, 1
s_mov_b32 s72, 0
s_mov_b32 s70, {TMO}
s_mov_b32 s13, {LOG2E:#x}
v_mov_b32 v30, s73
v_mov_b32 v31, 0""")
    stamp(4)
    sel(0)
    A(".p2align 6\nL_vloop:") if False else A("L_vloop:")
    for p_ in range(16):
        a = AB + 4 * (p_ & 1); n_ = p_ + CAP
        A(f"s_waitcnt vmcnt({CAP-1})")
        A(f"buffer_load_dwordx4 v[{VS[n_&7]}:{VS[n_&7]+3}], v{VV}, s[48:51], s65 offen offset:{(n_&3)*1024} {kvpol}")
        if n_ & 3 == 3: A("s_addk_i32 s65, 0x4000")
        mfma32(OA, a, VS[p_ & 7], False)
        if p_ & 3 == 3: A("s_sub_u32 s75, s75, 1\ns_cbranch_scc1 L_vend")
        sel(p_ + 1)
    for k in range(ns - 1): A(f"v_mov_b32 v{SR+k}, v{SR+k+1}")
    A(f"""s_add_u32 s72, s72, 1
s_sub_u32 s12, s72, {MLI}
s_cmp_le_u32 s12, 2
s_cbranch_scc1 L_mlx
s_branch L_vloop""")
    A("""L_vend:
s_nop 5""")
    for r in range(4): A(f"v_mul_f32 v{OA+r}, v30, v{OA+r}")
    A(f"v_cvt_pk_bf16_f32 v32, v{OA}, v{OA+1}\nv_cvt_pk_bf16_f32 v33, v{OA+2}, v{OA+3}")
    A("ds_write_b64 v28, v[32:33]")
    A("s_cmp_eq_u32 s98, 0\ns_waitcnt lgkmcnt(0)\ns_cbranch_scc1 L_tail")
    stamp(5)
    A("s_barrier")
    stamp(6)
    if "t" in abl: A("s_branch L_fin")
    A("""L_tail:
s_cmp_eq_u32 s76, 4
s_cbranch_scc1 L_stepB
s_cmp_lg_u32 s76, 1
s_cbranch_scc1 L_fin""")
    WA = [64 + 4 * k for k in range(16)]; HB = [128 + 4 * k for k in range(16)]
    SB, C1, XX = 16, 24, 32
    A(f"""v_lshlrev_b32 v9, 9, v3
v_lshl_add_u32 v9, v4, 6, v9
v_and_b32 v11, 1, v1
v_lshl_add_u32 v9, v11, 3, v9
v_lshrrev_b32 v10, 1, v5
v_lshl_add_u32 v9, v10, 15, v9
s_lshl_b32 s12, s3, 4
s_add_u32 s14, s12, {L_EXT}
v_add_u32 v9, s14, v9""")
    for ks in range(16):
        for jh in range(2):
            A(f"ds_read_b64_tr_b16 v[{WA[ks]+2*jh}:{WA[ks]+2*jh+1}], v9 offset:{ks*2048+jh*256}")
    A(f"""v_mov_b32 v57, s10
v_lshlrev_b32 v12, 10, v11
v_lshl_add_u32 v12, v3, 4, v12
v_add_u32 v12, {L_H2}, v12
v_lshlrev_b32 v13, 6, v11
v_and_b32 v14, 1, v3
v_lshl_add_u32 v13, v14, 3, v13
v_lshrrev_b32 v14, 1, v3
v_lshl_add_u32 v13, v14, 2, v13
s_add_u32 s12, s12, {L_HH}
v_add_u32 v13, s12, v13
v_lshlrev_b32 v14, 2, v1
v_add_u32 v14, {L_DUM}, v14
s_min_u32 s14, s98, 2
v_cmp_gt_u32 vcc, s14, v2
v_cndmask_b32 v13, v14, v13, vcc
s_mov_b32 s68, {EPS:#x}
s_mov_b32 s69, {LOG2E:#x}
s_mov_b32 s70, s98
v_mov_b32 v15, {L_FL}
s_lshl_b32 s12, s3, 2
s_add_u32 s12, s12, {L_FL}
s_cmp_eq_u32 s98, 0
s_cselect_b32 s12, {L_DUM}, s12
v_mov_b32 v56, s12
s_sub_u32 s13, s3, 1
s_cmp_ge_u32 s13, 2
s_cbranch_scc1 L_c_h2s
s_lshl_b32 s14, s13, 11
s_add_u32 s14, s14, {WS_G + 4096}
s_add_u32 s15, s14, 4096
v_lshlrev_b32 v8, 5, v1
L_c_sbcb:""")
    for k, (so, of) in enumerate((("s14", 0), ("s14", 16), ("s15", 0), ("s15", 16))):
        A(f"buffer_load_dwordx4 v[{40+4*k}:{43+4*k}], v8, s[52:55], {so} offen offset:{of} sc1")
    A("s_waitcnt vmcnt(0)")
    tagcheck([42, 43, 46, 47, 50, 51, 54, 55], 57)
    poll_dry("L_c_sbcb")
    for k, rr in enumerate((40, 41, 44, 45)): unpack(SB + 2 * k, SB + 2 * k + 1, rr)
    for k, rr in enumerate((48, 49, 52, 53)): unpack(C1 + 2 * k, C1 + 2 * k + 1, rr)
    for k in range(8): A(f"v_add_f32 v{C1+k}, 1.0, v{C1+k}")
    for k in range(4): A(f"v_cvt_pk_bf16_f32 v{40+k}, v{C1+2*k}, v{C1+2*k+1}")
    for k in range(4): unpack(C1 + 2 * k, C1 + 2 * k + 1, 40 + k)
    A(f"""s_lshl_b32 s14, s13, 10
s_add_u32 s15, s14, {L_H2}
s_cmp_eq_u32 s98, 0
s_cselect_b32 s15, {L_DUM}, s15
s_lshl_b32 s14, s13, 12
s_add_u32 s14, s14, {WS_X1}
s_lshr_b32 s12, s4, 1
s_lshl_b32 s12, s12, {13 if xrep else 31}
s_andn2_b32 s12, s12, 0x80000000
s_add_u32 s14, s14, s12
v_lshlrev_b32 v8, 4, v1
v_add_u32 v10, s15, v8
v_lshrrev_b32 v8, 1, v1
v_lshlrev_b32 v8, 7, v8
v_lshl_add_u32 v8, v11, 5, v8
s_mov_b32 s12, 0x05040100
s_waitcnt lgkmcnt(0)""")
    stamp(7)
    def x1_loads(b):
        A(f"buffer_load_dwordx4 v[{b}:{b+3}], v8, s[52:55], s14 offen sc1\nbuffer_load_dwordx4 v[{b+4}:{b+7}], v8, s[52:55], s14 offen offset:16 sc1")
    def x1_check(b, extra):
        A(f"s_waitcnt vmcnt({extra})")
        for k in range(4): A(f"v_perm_b32 v{40+k}, v{b+2*k+1}, v{b+2*k}, s12")
        for k in range(4):
            A(f"v_sad_u8 v44, v{40+k}, v57, {'0' if k == 0 else 'v44'}")
            A(f"v_and_b32 v{XX+2*k}, 0xffff0000, v{b+2*k}\nv_and_b32 v{XX+2*k+1}, 0xffff0000, v{b+2*k+1}")
        A("v_cmp_ne_u32 vcc, 0, v44")
    A("s_mov_b32 s70, s98")
    if not ppx:
        if xsleep: A(f"s_branch L_c_x1\nL_c_x1s:\ns_sleep {xsleep}")
        A("L_c_x1:"); x1_loads(192); x1_check(192, 0); poll_dry("L_c_x1s" if xsleep else "L_c_x1")
    else:
        x1_loads(192)
        A(f"s_sleep {stag}\nL_c_x1:"); x1_loads(200); x1_check(192, 2)
        A("s_cbranch_vccz L_c_got")
        x1_loads(192); x1_check(200, 2)
        poll_dry("L_c_x1")
        A("L_c_got:")
    stamp(8)
    if not fastc:
        layernorm8(XX, 44, "s68")
        for k in range(8): A(f"v_mul_f32 v{XX+k}, v{XX+k}, v{C1+k}")
        for k in range(4): A(f"v_cvt_pk_bf16_f32 v{44+k}, v{XX+2*k}, v{XX+2*k+1}")
        for k in range(4): unpack(XX + 2 * k, XX + 2 * k + 1, 44 + k)
        for k in range(8): A(f"v_add_f32 v{XX+k}, v{XX+k}, v{SB+k}")
        for k in range(4): A(f"v_cvt_pk_bf16_f32 v{44+k}, v{XX+2*k}, v{XX+2*k+1}")
    else:
        A(f"v_readfirstlane_b32 s71, v{XX}")
        Dd = 44
        for k in range(8): A(f"v_subrev_f32 v{Dd+k}, s71, v{XX+k}")
        A(f"""v_add_f32 v40, v{Dd}, v{Dd+1}
v_mul_f32 v41, v{Dd}, v{Dd}
v_add_f32 v42, v{Dd+2}, v{Dd+3}
v_mul_f32 v43, v{Dd+1}, v{Dd+1}
v_add_f32 v52, v{Dd+4}, v{Dd+5}
v_fmac_f32 v41, v{Dd+2}, v{Dd+2}
v_add_f32 v53, v{Dd+6}, v{Dd+7}
v_fmac_f32 v43, v{Dd+3}, v{Dd+3}
v_add_f32 v40, v40, v42
v_fmac_f32 v41, v{Dd+4}, v{Dd+4}
v_add_f32 v52, v52, v53
v_fmac_f32 v43, v{Dd+5}, v{Dd+5}
v_fmac_f32 v41, v{Dd+6}, v{Dd+6}
v_fmac_f32 v43, v{Dd+7}, v{Dd+7}
v_add_f32 v40, v40, v52
v_add_f32 v41, v41, v43""")
        allreduce("v_add_f32", [40, 41])
        A(f"""v_readlane_b32 s72, v40, 63
v_readlane_b32 s73, v41, 63
v_mov_b32 v42, 0x3b000000
v_mul_f32 v40, s72, v42
v_mul_f32 v41, s73, v42
v_add_f32 v43, s71, v40
v_fma_f32 v41, -v40, v40, v41
v_cvt_pk_bf16_f32 v43, v43, v43
v_max_f32 v41, 0, v41
v_and_b32 v43, 0xffff0000, v43
v_cvt_pk_bf16_f32 v41, v41, v41
v_sub_f32 v{XX}, v{XX}, v43
v_and_b32 v41, 0xffff0000, v41
v_sub_f32 v{XX+1}, v{XX+1}, v43
v_add_f32 v41, s68, v41
v_sub_f32 v{XX+2}, v{XX+2}, v43
v_cvt_pk_bf16_f32 v41, v41, v41
v_sub_f32 v{XX+3}, v{XX+3}, v43
v_and_b32 v41, 0xffff0000, v41
v_sub_f32 v{XX+4}, v{XX+4}, v43
v_sqrt_f32 v41, v41
v_sub_f32 v{XX+5}, v{XX+5}, v43
v_sub_f32 v{XX+6}, v{XX+6}, v43
v_cvt_pk_bf16_f32 v41, v41, v41
v_sub_f32 v{XX+7}, v{XX+7}, v43
v_and_b32 v41, 0xffff0000, v41""")
        for k in range(4): A(f"v_mul_f32 v{XX+k}, v{XX+k}, v{C1+k}")
        A("v_rcp_f32 v41, v41")
        for k in range(4, 8): A(f"v_mul_f32 v{XX+k}, v{XX+k}, v{C1+k}")
        for k in range(8): A(f"v_fma_f32 v{XX+k}, v{XX+k}, v41, v{SB+k}")
        for k in range(4): A(f"v_cvt_pk_bf16_f32 v{44+k}, v{XX+2*k}, v{XX+2*k+1}")
    A("ds_write_b128 v10, v[44:47]\nds_write_b32 v56, v57\ns_mov_b32 s70, s98\ns_branch L_c_h2")
    A("L_c_h2s:\ns_sleep 1")
    A("L_c_h2:\nds_read2_b32 v[44:45], v15 offset0:1 offset1:2\ns_waitcnt lgkmcnt(0)")
    tagcheck([44, 45], 57)
    poll_dry("L_c_h2s")
    for ks in range(16): A(f"ds_read_b128 v[{HB[ks]}:{HB[ks]+3}], v12 offset:{ks*64}")
    for ks in range(16):
        A(f"s_waitcnt lgkmcnt({15-ks})")
        mfma32(40, WA[ks], HB[ks], ks == 0)
    A("v_permlane32_swap_b32 v40, v42\nv_permlane32_swap_b32 v41, v43")
    A("v_cvt_pk_bf16_f32 v44, v40, v41\nv_cvt_pk_bf16_f32 v45, v42, v43")
    unpack(40, 41, 44); unpack(42, 43, 45)
    A("""v_mul_f32 v44, s69, v40
v_mul_f32 v45, s69, v41
v_exp_f32 v44, -v44
v_exp_f32 v45, -v45
v_add_f32 v44, 1.0, v44
v_add_f32 v45, 1.0, v45
v_rcp_f32 v44, v44
v_rcp_f32 v45, v45
v_mul_f32 v40, v40, v44
v_mul_f32 v41, v41, v45
v_cvt_pk_bf16_f32 v44, v40, v41""")
    unpack(40, 41, 44)
    A("""v_mul_f32 v40, v40, v42
v_mul_f32 v41, v41, v43
v_cvt_pk_bf16_f32 v44, v40, v41
ds_write_b32 v13, v44
ds_write_b32 v56, v57 offset:16""")
    stamp(9)
    A("L_fin:\ns_cmp_eq_u32 s98, 0\ns_cbranch_scc1 L_dryret")
    finish()
    A("L_stepB:")
    A("s_cmp_lg_u32 s3, 0\ns_cbranch_scc1 L_fin")
    srd(56, 44, 2048)
    srd(60, 46, 2048)
    A(f"""s_lshl_b32 s14, s77, 6
s_add_u32 s14, s14, {WS_G}
s_add_u32 s13, s14, {3*4096}
s_lshl_b32 s15, s77, 5
s_lshl_b32 s72, s77, 13
s_add_u32 s72, s72, {WS_Y}
s_add_u32 s75, s72, 4096
s_lshl_b32 s73, s77, 7
s_add_u32 s73, s73, {WS_X1}
s_mul_i32 s74, s77, 3072
s_add_u32 s74, s74, {WS_OP}
v_lshlrev_b32 v8, 4, v5
v_lshlrev_b32 v9, 4, v1
v_lshlrev_b32 v12, 3, v5
v_lshl_add_u32 v13, v3, 1, v12
v_mov_b32 v10, {OOB:#x}
v_cmp_gt_u32 vcc, 44, v1
v_cndmask_b32 v14, v10, v9, vcc
v_cmp_gt_u32 vcc, 4, v1
v_cndmask_b32 v12, v10, v12, vcc
v_cmp_eq_u32 vcc, 0, v1
v_cndmask_b32 v10, v10, v1, vcc
v_mov_b32 v11, s10
v_and_b32 v15, 1, v3
v_lshlrev_b32 v15, 4, v15
v_sub_u32 v15, 16, v15
s_mov_b32 s12, 0x03020706
s_mov_b32 s68, 0x0c0c0400
v_and_b32 v38, 0xffff, v11
v_lshrrev_b32 v39, 16, v11
v_cmp_gt_u32 vcc, 44, v1
v_cndmask_b32 v40, 0, v38, vcc
v_cndmask_b32 v41, 0, v39, vcc
v_mov_b32 v42, 0xffff0000
v_cmp_eq_u32 vcc, 16, v15
v_cndmask_b32 v43, v39, v38, vcc
v_or_b32 v12, s99, v12
v_or_b32 v10, s99, v10
v_lshlrev_b32 v44, 13, v4
v_lshl_add_u32 v44, v5, 4, v44
v_mov_b32 v45, {OOB:#x}
v_cmp_gt_u32 vcc, {16 if xrep else 4}, v1
v_cndmask_b32 v44, v45, v44, vcc
v_or_b32 v44, s99, v44
s_mov_b32 s70, s98
buffer_load_ushort v16, v13, s[56:59], s15 offen""")
    A("L_b_ga:")
    A("buffer_load_dwordx4 v[20:23], v8, s[52:55], s14 offen sc1\nbuffer_load_dwordx4 v[24:27], v8, s[52:55], s13 offen sc1\ns_waitcnt vmcnt(0)")
    tagcheck([22, 23, 26, 27], 11)
    poll_dry("L_b_ga")
    A("""v_cmp_gt_u32 vcc, 32, v1
v_cndmask_b32 v17, v21, v20, vcc
v_cndmask_b32 v18, v25, v24, vcc
v_lshlrev_b32 v17, v15, v17
v_lshlrev_b32 v18, v15, v18
v_and_b32 v17, 0xffff0000, v17
v_and_b32 v18, 0xffff0000, v18
v_lshlrev_b32 v16, 16, v16""")
    A("s_mov_b32 s70, s98")
    def gatherN(lbl, n, so0, so1, lastv):
        def loads(base):
            for i in range(n):
                A(f"buffer_load_dwordx4 v[{base+4*i}:{base+3+4*i}], v{lastv if i == n - 1 else 9}, s[52:55], {so0 if i < 4 else so1} offen offset:{(i&3)*1024} sc1")
        def check(base, extra):
            for i in range(n):
                r = base + 4 * i
                lo, hi = (40, 41) if (i == n - 1 and lastv != 9) else (38, 39)
                A(f"s_waitcnt vmcnt({n-1-i+extra})")
                A(f"v_perm_b32 v36, v{r+1}, v{r}, s68\nv_perm_b32 v37, v{r+3}, v{r+2}, s68")
                if i: A(f"v_add_f32 v32, v{base if i == 1 else 32}, v{r}\nv_add_f32 v33, v{base+1 if i == 1 else 33}, v{r+1}")
                A(f"v_sad_u8 v28, v36, v{lo}, {'0' if i == 0 else 'v28'}")
                if i: A(f"v_add_f32 v34, v{base+2 if i == 1 else 34}, v{r+2}\nv_add_f32 v35, v{base+3 if i == 1 else 35}, v{r+3}")
                A(f"v_sad_u8 v28, v37, v{hi}, v28")
            A("v_cmp_ne_u32 vcc, 0, v28")
        if not (pp if n == 8 else ppd):
            A(f"{lbl}:"); loads(64); check(64, 0); poll_dry(lbl)
        else:
            done = A.newlabel("L_got")
            A(f"{lbl}:"); loads(64)
            A(f"s_sleep {stag}")
            A(f"{lbl}_l:"); loads(128); check(64, n)
            A(f"s_cbranch_vccz {done}")
            loads(64); check(128, n)
            poll_dry(f"{lbl}_l")
            A(f"{done}:")
    def red16(G, Xr):
        A("""v_permlane32_swap_b32 v32, v34
v_permlane32_swap_b32 v33, v35
v_add_f32 v32, v32, v34
v_add_f32 v33, v33, v35
v_permlane16_swap_b32 v32, v33
v_add_f32 v32, v32, v33
v_add_f32_dpp v32, v32, v32 row_ror:4 row_mask:0xf bank_mask:0xf
v_add_f32_dpp v32, v32, v32 row_ror:8 row_mask:0xf bank_mask:0xf
v_cvt_pk_bf16_f32 v32, v32, v32
v_and_b32 v32, 0xffff0000, v32""")
        A(f"""v_mul_f32 v32, v32, v{G}
v_cvt_pk_bf16_f32 v32, v32, v32
v_and_b32 v32, 0xffff0000, v32
v_add_f32 v32, v32, v{Xr}
v_cvt_pk_bf16_f32 v30, v32, v32""")
    stamp(7)
    gatherN("L_b_y", 8, "s72", "s75", 9)
    stamp(8)
    red16(17, 16)
    A("""v_bfi_b32 v32, v42, v30, v43
v_bfi_b32 v33, v42, v30, v43
v_permlane16_swap_b32 v32, v33
v_mov_b32 v34, v32
v_mov_b32 v35, v33
v_permlane32_swap_b32 v32, v34
v_permlane32_swap_b32 v33, v35
buffer_store_dwordx4 v[32:35], v44, s[52:55], s73 offen sc1""")
    stamp(9)
    A("v_and_b32 v16, 0xffff0000, v30")
    A("s_mov_b32 s70, s98")
    if dsleep: A(f"s_cmp_eq_u32 s98, 0\ns_cbranch_scc1 L_d_op\ns_sleep {dsleep}")
    gatherN("L_d_op", 3, "s74", "s74", 14)
    stamp(10)
    red16(18, 16)
    A("""v_mov_b32 v32, v30
v_mov_b32 v33, v30
v_permlane16_swap_b32 v32, v33
v_perm_b32 v32, v32, v33, s12
v_mov_b32 v33, v32
v_permlane32_swap_b32 v32, v33""")
    A("buffer_store_dwordx2 v[32:33], v12, s[60:63], s15 offen")
    A("s_cmp_lg_u32 s77, 0\ns_cbranch_scc1 L_fin3")
    A("buffer_store_dword v11, v10, s[52:55], 0 offen sc1")
    A("L_fin3:\ns_branch L_fin")
    A("L_service:")
    if prio: A(f"s_setprio {prio}")
    W, TT, BB = 64, 192, 32
    roles()
    A(f"""s_sub_u32 s12, s3, 4
s_lshl_b32 s13, s12, 13
v_lshlrev_b32 v13, 4, v1
v_add_u32 v7, s13, v13
v_lshlrev_b32 v8, 11, v3
v_lshl_add_u32 v8, v4, 8, v8
v_lshl_add_u32 v8, v5, 3, v8
v_add_u32 v8, s13, v8
v_mov_b32 v31, {OOB:#x}
s_mov_b32 s68, {EPS:#x}
s_mov_b32 s69, {LOG2E:#x}
s_waitcnt lgkmcnt(0)""")
    if diag: A("s_mov_b32 s80, s78")
    A("s_load_dword s11, s[42:43], 0")
    srd(52, 42, WS_END)
    if "q" in abl: A("s_cmp_eq_u32 s3, 4\ns_cbranch_scc1 L_s_bar1")
    if "u" in abl: A("s_cmp_eq_u32 s3, 7\ns_cbranch_scc1 L_s_bar1")
    A("""s_cmp_eq_u32 s3, 4
s_cbranch_scc1 L_s_q
s_cmp_eq_u32 s3, 5
s_cbranch_scc1 L_s_warm
s_cmp_eq_u32 s3, 6
s_cbranch_scc1 L_s_bar1
s_cmp_eq_u32 s76, 4
s_cbranch_scc1 L_s_bar1""")
    srd(48, 36, 512 * 6144)
    srd(60, 34, 2048)
    A(f"""s_lshr_b32 s13, s72, 2
s_and_b32 s14, s72, 3
s_lshl_b32 s65, s13, 7
s_mul_i32 s64, s14, {128*6144}
s_add_u32 s65, s65, s64
s_lshl_b32 s64, s14, 8
v_lshrrev_b32 v9, 3, v1
v_mul_u32_u24 v9, 6144, v9
v_and_b32 v11, 7, v1
v_lshl_add_u32 v9, v11, 4, v9
v_lshrrev_b32 v11, 5, v1
v_and_b32 v12, 31, v1
v_lshlrev_b32 v12, 3, v12
v_lshl_add_u32 v14, v11, 10, v12
buffer_load_dwordx2 v[16:17], v14, s[60:63], s64 offen""")
    for i in range(16):
        if i >= SMD: A(f"s_waitcnt vmcnt({SMD-1})")
        A(f"buffer_load_dwordx4 v[{TT+4*i}:{TT+4*i+3}], v9, s[48:51], s65 offen {tpol}")
        if i < 15: A(f"s_add_u32 s65, s65, {8*6144:#x}")
        if i == min(SMD, 16) - 1:
            A(f"""v_lshl_add_u32 v15, v11, 8, v12
v_add_u32 v15, {L_SC}, v15
v_lshlrev_b32 v11, 10, v3
v_lshl_add_u32 v11, v4, 7, v11
v_lshl_add_u32 v11, v5, 3, v11
v_add_u32 v11, {3*8192}, v11
v_and_b32 v28, 1, v4
v_lshlrev_b32 v12, 8, v28
v_lshl_add_u32 v12, v3, 4, v12
v_add_u32 v12, {L_SC}, v12
s_waitcnt vmcnt({i+1})""")
            unpack(20, 21, 16); unpack(22, 23, 17)
            for k in range(4): A(f"v_mul_f32 v{24+k}, s69, v{20+k}")
            for k in range(4): A(f"v_exp_f32 v{24+k}, -v{24+k}")
            for k in range(4): A(f"v_add_f32 v{24+k}, 1.0, v{24+k}")
            for k in range(4): A(f"v_rcp_f32 v{24+k}, v{24+k}")
            for k in range(4): A(f"v_mul_f32 v{20+k}, v{20+k}, v{24+k}")
            A("v_cvt_pk_bf16_f32 v16, v20, v21\nv_cvt_pk_bf16_f32 v17, v22, v23\nds_write_b64 v15, v[16:17]")
            for ks in range(4): A(f"ds_read_b128 v[{BB+4*ks}:{BB+4*ks+3}], v12 offset:{ks*64}")
    for ks in range(4):
        for i in range(4 * ks, 4 * ks + 4):
            A(f"s_waitcnt vmcnt({15 - i})")
            A(f"ds_write_b128 v7, v[{TT+4*i}:{TT+4*i+3}] offset:{(i&7)*1024}")
        for tt in range(4):
            for jh in range(2):
                d = TT + (ks * 4 + tt) * 4 + jh * 2
                A(f"ds_read_b64_tr_b16 v[{d}:{d+1}], v11 offset:{(ks&1)*4096+jh*512+tt*32}")
    for ks in range(4):
        A(f"s_waitcnt lgkmcnt({0 if ks == 3 else 12})")
        for tt in range(4): mfma32(48 + 4 * tt, TT + (ks * 4 + tt) * 4, BB + 4 * ks, ks == 0)
    A("s_add_u32 s10, s11, 0x9e3779b9")
    for tt in range(1, 4):
        A(f"v_cmp_eq_u32 vcc, {tt}, v5")
        for r in range(4): A(f"v_cndmask_b32 v{48+r}, v{48+r}, v{48+4*tt+r}, vcc")
    A(f"""v_cmp_gt_u32 vcc, 8, v2
v_mov_b32 v52, s10
v_cndmask_b32 v48, v51, v48, vcc
v_cndmask_b32 v49, v52, v49, vcc
v_cndmask_b32 v50, v52, v50, vcc
v_mov_b32 v51, s10
s_lshl_b32 s13, s72, 10
s_add_u32 s13, s13, {WS_MP}
buffer_store_dwordx4 v[48:51], v13, s[52:55], s13 offen sc1""")
    stamp(1)
    A("s_branch L_s_bar1")
    A(f"""L_s_warm:
s_getpc_b64 s[66:67]
L_pc:
s_sub_u32 s66, s66, L_pc-{KNAME}
s_subb_u32 s67, s67, 0
s_and_b32 s13, s5, {wmask}
s_mul_i32 s13, s13, {WUP*1024}
v_add_u32 v14, s13, v13""")
    for k in range(WUP):
        if k >= 4: A("s_waitcnt vmcnt(3)")
        A(f"v_min_u32 v15, L_codeend-{KNAME}-16, v14\nglobal_load_dwordx4 v[20:23], v15, s[66:67]\nv_add_u32 v14, 1024, v14")
    A("s_branch L_s_bar1")
    A("L_s_q:")
    srd(44, 22, 512 * 8192)
    srd(56, 16, 2048)
    A(f"""v_lshlrev_b32 v6, 13, v3
v_lshl_add_u32 v6, v2, 4, v6
s_lshl_b32 s64, s6, 8
s_lshl_b32 s13, s7, 19
s_add_u32 s64, s64, s13
buffer_load_dwordx4 v[24:27], v13, s[56:59], 0 offen
buffer_load_dwordx4 v[28:31], v13, s[56:59], 0 offen offset:1024""")
    for i in range(16):
        if i >= SQ: A(f"s_waitcnt vmcnt({SQ-1})")
        A(f"buffer_load_dwordx4 v[{W+4*i}:{W+4*i+3}], v6, s[44:47], s64 offen {tpol}")
        if i < 15: A("s_add_u32 s64, s64, 0x8000")
    A(f"""v_and_b32 v63, 7, v1
v_lshrrev_b32 v16, 5, v1
v_and_b32 v19, 1, v3
v_lshlrev_b32 v14, 15, v16
v_lshl_add_u32 v14, v5, 8, v14
v_lshl_add_u32 v14, v19, 6, v14
v_lshl_add_u32 v14, v4, 4, v14
v_bfe_u32 v17, v1, 3, 2
v_lshlrev_b32 v6, 10, v16
v_lshl_add_u32 v6, v17, 8, v6
v_lshl_add_u32 v6, v63, 4, v6
v_lshlrev_b32 v23, 5, v63
v_lshl_add_u32 v23, v17, 3, v23
v_lshl_add_u32 v23, v16, 2, v23
v_add_u32 v23, {L_Q}, v23
v_lshlrev_b32 v18, 3, v2
v_lshl_add_u32 v18, v16, 2, v18
v_lshl_add_u32 v11, v19, 7, v18
v_add_u32 v11, {L_HL}, v11
v_lshl_add_u32 v15, v19, 10, v18
s_lshl_b32 s13, s7, 7
s_add_u32 s13, s13, {L_H2}
v_add_u32 v15, s13, v15
v_bfe_u32 v12, v1, 3, 1
v_lshlrev_b32 v12, 7, v12
v_lshl_add_u32 v12, v3, 4, v12
v_add_u32 v12, {L_HL}, v12
s_waitcnt vmcnt(16)""")
    for b in range(2):
        for k in range(4): unpack(BB + 2 * k, BB + 2 * k + 1, 24 + 4 * b + k)
        layernorm8(BB, BB + 8, "s68")
        A(f"v_add_u32 v16, {L_H2 + 1024*b}, v13\nds_write_b128 v16, v[{BB+12}:{BB+15}]")
    A(f"ds_read_b32 v22, v15\nv_mov_b32 v31, {OOB:#x}")
    for ks in range(2):
        for i in range(8 * ks, 8 * ks + 8):
            A(f"s_waitcnt vmcnt({15 - i})")
            A(f"ds_write_b128 v7, v[{W+4*i}:{W+4*i+3}] offset:{(i&7)*1024}")
        for tt in range(8):
            for jh in range(2):
                d = W + (ks * 8 + tt) * 4 + jh * 2
                A(f"ds_read_b64_tr_b16 v[{d}:{d+1}], v8 offset:{jh*1024+tt*32}")
    A(f"""s_waitcnt lgkmcnt(0)
s_add_u32 s10, s11, 0x9e3779b9
s_lshl_b32 s13, s7, 12
s_add_u32 s13, s13, {WS_MP}
v_mov_b32 v24, s10
v_lshrrev_b32 v60, 1, v13
v_lshrrev_b32 v61, 1, v6
s_lshl_b32 s95, s6, 13
s_lshl_b32 s64, s7, 10
s_add_u32 s64, s64, s95
s_lshr_b32 s92, s64, 1
s_add_u32 s92, s92, {WS_QP8}
s_add_u32 s64, s64, {WS_QP}
s_lshl_b32 s65, s8, 7
s_add_u32 s95, s95, s65
s_lshr_b32 s93, s95, 1
s_add_u32 s93, s93, {WS_QP8}
s_add_u32 s95, s95, {WS_QP}
s_add_u32 s65, s95, 4096
s_mov_b32 s70, {TMO}""")
    unpack(26, 27, 22)
    stamp(1)
    scalar_wait("L_sp1", "s13", [c * 32768 + rq * 1024 + 780 for c in range(2) for rq in range(4)])
    A("L_q_mp:")
    for rq in range(4): A(f"buffer_load_dwordx4 v[{BB+4*rq}:{BB+4*rq+3}], v14, s[52:55], s13 offen offset:{rq*1024} {gpol}")
    for rq in range(4): A(f"buffer_load_dwordx2 v[{48+2*rq}:{49+2*rq}], v14, s[52:55], s13 offen offset:{rq*1024+128} {gpol}")
    A("s_waitcnt vmcnt(0)")
    tagcheck([BB + 3, BB + 7, BB + 11, BB + 15, 49, 51, 53, 55], 24)
    poll_tail("L_q_mp")
    stamp(2)
    def sum4():
        for r in range(3): A(f"v_add_f32 v{BB+r}, v{BB+r}, v{BB+4+r}")
        A(f"v_add_f32 v{BB+3}, v48, v50")
        for r in range(3): A(f"v_add_f32 v{BB+8+r}, v{BB+8+r}, v{BB+12+r}")
        A(f"v_add_f32 v{BB+11}, v52, v54")
        for r in range(4): A(f"v_add_f32 v{BB+r}, v{BB+r}, v{BB+8+r}")
        A(f"v_permlane32_swap_b32 v{BB}, v{BB+2}\nv_permlane32_swap_b32 v{BB+1}, v{BB+3}")
    sum4()
    A(f"v_cvt_pk_bf16_f32 v20, v{BB}, v{BB+1}\nv_cvt_pk_bf16_f32 v21, v{BB+2}, v{BB+3}")
    unpack(18, 19, 21)
    unpack(16, 17, 20)
    A("v_add_f32 v18, 1.0, v18\nv_add_f32 v19, 1.0, v19\nv_cvt_pk_bf16_f32 v21, v18, v19")
    unpack(18, 19, 21)
    A("v_mul_f32 v18, v18, v26\nv_mul_f32 v19, v19, v27\nv_cvt_pk_bf16_f32 v21, v18, v19")
    unpack(18, 19, 21)
    A("v_add_f32 v18, v18, v16\nv_add_f32 v19, v19, v17\nv_cvt_pk_bf16_f32 v21, v18, v19")
    A("ds_write_b32 v11, v21")
    A(f"ds_read_b128 v[{BB}:{BB+3}], v12\nds_read_b128 v[{BB+4}:{BB+7}], v12 offset:64")
    for ks in range(2):
        A(f"s_waitcnt lgkmcnt({1-ks})")
        for tt in range(8): mfma32(TT + 4 * tt, W + (ks * 8 + tt) * 4, BB + 4 * ks, ks == 0)
    A("v_cmp_eq_u32 s[66:67], 1, v63")
    for tt in range(1, 8):
        cur = "s[66:67]" if tt & 1 else "vcc"
        nx = "vcc" if tt & 1 else "s[66:67]"
        if tt < 7: A(f"v_cmp_eq_u32 {nx}, {tt+1}, v63")
        for r in range(4): A(f"v_cndmask_b32 v{TT+r}, v{TT+r}, v{TT+4*tt+r}, {cur}")
    A(f"""v_mov_b32 v{TT+4}, v{TT+3}
v_mov_b32 v{TT+3}, s10
v_mov_b32 v{TT+5}, s10
buffer_store_dwordx4 v[{TT}:{TT+3}], v13, s[52:55], s64 offen sc1
buffer_store_dwordx2 v[{TT+4}:{TT+5}], v60, s[52:55], s92 offen sc1
s_mov_b32 s70, {TMO}""")
    stamp(3)
    scalar_wait("L_sp2", "s95", [r * 1024 + 780 for r in range(8)])
    A("L_q_qp:")
    for m in range(4): A(f"buffer_load_dwordx4 v[{BB+4*m}:{BB+4*m+3}], v6, s[52:55], {'s95' if m < 2 else 's65'} offen offset:{(m&1)*2048} {gpol}")
    for m in range(4): A(f"buffer_load_dwordx2 v[{48+2*m}:{49+2*m}], v61, s[52:55], s93 offen offset:{m*1024} {gpol}")
    A("s_waitcnt vmcnt(0)")
    tagcheck([BB + 3, BB + 7, BB + 11, BB + 15, 49, 51, 53, 55], 24)
    poll_tail("L_q_qp")
    stamp(4)
    sum4()
    A(f"v_add_f32 v{BB}, v{BB}, v{BB+2}\nv_add_f32 v{BB+1}, v{BB+1}, v{BB+3}\nv_cvt_pk_bf16_f32 v20, v{BB}, v{BB+1}")
    A("ds_write_b32 v23, v20")
    A("L_s_bar1:")
    A("s_waitcnt lgkmcnt(0)\ns_add_u32 s10, s11, 0x9e3779b9")
    A("s_barrier\ns_barrier")
    A(f"v_lshlrev_b32 v14, 2, v1\nv_and_b32 v14, 28, v14\nv_add_u32 v14, {L_FL}, v14\nv_mov_b32 v15, s11\nds_write_b32 v14, v15")
    if "c" in abl: A("s_branch L_s_wo")
    if dry:
        A(f"""s_cmp_lg_u32 s3, 7
s_cbranch_scc1 L_nodry
s_mov_b32 s98, 0
s_mov_b32 s99, {OOB:#x}
s_mov_b64 s[44:45], s[16:17]
s_mov_b64 s[46:47], s[38:39]
s_cmp_eq_u32 s76, 4
s_cselect_b32 s3, 0, 1
v_lshlrev_b32 v28, 3, v1
v_add_u32 v28, {L_DUM}, v28
s_branch L_vend
L_dryret:
s_mov_b32 s3, 7
s_mov_b32 s12, 3
s_mov_b32 s98, {TMO*4}
s_mov_b32 s99, 0
v_mov_b32 v31, {OOB:#x}
v_lshlrev_b32 v13, 4, v1
v_lshlrev_b32 v8, 11, v3
v_lshl_add_u32 v8, v4, 8, v8
v_lshl_add_u32 v8, v5, 3, v8
v_add_u32 v8, {3*8192}, v8
s_waitcnt vmcnt(0) lgkmcnt(0)
L_nodry:""")
    else:
        A("L_dryret:")
    A(f"""s_cmp_lg_u32 s76, 4
s_cbranch_scc1 L_s_wo
s_cmp_lg_u32 s3, 6
s_cbranch_scc1 L_s_wo
v_lshlrev_b32 v14, 15, v3
v_lshl_add_u32 v14, v4, 10, v14
v_lshl_add_u32 v14, v5, 8, v14
s_and_b32 s13, s77, 28
s_lshl_b32 s13, s13, 10
s_lshr_b32 s14, s77, 5
s_lshl_b32 s14, s14, 6
s_add_u32 s13, s13, s14
s_and_b32 s14, s77, 3
s_lshl_b32 s14, s14, 4
s_add_u32 s13, s13, s14
s_add_u32 s13, s13, {WS_MP + 65536}
v_lshlrev_b32 v15, 12, v3
v_lshl_add_u32 v15, v5, 4, v15
v_cmp_eq_u32 vcc, 0, v4
v_cndmask_b32 v15, v31, v15, vcc
s_lshl_b32 s14, s77, 6
s_add_u32 s14, s14, {WS_G}
v_mov_b32 v24, s10
s_mov_b32 s70, {TMO}
L_s_g4p:
buffer_load_dwordx4 v[16:19], v14, s[52:55], s13 offen {gpol}
buffer_load_dwordx2 v[20:21], v14, s[52:55], s13 offen offset:128 {gpol}
s_waitcnt vmcnt(0)""")
    tagcheck([19, 21], 24)
    poll_tail("L_s_g4p", sleep=8)
    for c in ("row_ror:4", "row_ror:8"):
        for r in (16, 17, 18, 20): A(f"v_add_f32_dpp v{r}, v{r}, v{r} {c} row_mask:0xf bank_mask:0xf")
    A("""v_cvt_pk_bf16_f32 v16, v16, v17
v_cvt_pk_bf16_f32 v17, v18, v20
v_mov_b32 v18, s10
v_mov_b32 v19, s10
buffer_store_dwordx4 v[16:19], v15, s[52:55], s14 offen sc1""")
    if x1pre:
        A(f"""v_cmp_gt_u32 vcc, 8, v1
v_cndmask_b32 v15, v31, v13, vcc
v_mov_b32 v20, s11
v_mov_b32 v21, s11
v_mov_b32 v22, s11
v_mov_b32 v23, s11
s_lshl_b32 s13, s77, 7
s_add_u32 s13, s13, {WS_X1}
buffer_store_dwordx4 v[20:23], v15, s[52:55], s13 offen sc1""")
    A("L_s_wo:")
    A("s_load_dwordx2 s[24:25], s[0:1], 32")
    A(f"""v_lshlrev_b32 v14, 10, v3
v_lshl_add_u32 v14, v2, 4, v14
s_lshl_b32 s64, s6, 17
s_lshl_b32 s13, s12, 8
s_add_u32 s64, s64, s13
v_lshlrev_b32 v30, 4, v3
v_cmp_eq_u32 vcc, 0, v2
v_cndmask_b32 v30, v31, v30, vcc
s_lshl_b32 s74, s8, 18
s_lshl_b32 s13, s12, 16
s_add_u32 s74, s74, s13
s_lshl_b32 s13, s6, 2
s_add_u32 s13, s13, s9
s_lshl_b32 s13, s13, 6
s_add_u32 s74, s74, s13
s_add_u32 s74, s74, {WS_Y}
s_waitcnt vmcnt(0) lgkmcnt(0)""")
    if "w" in abl: A("s_branch L_s_now")
    srd(44, 24, 4096 * 1024)
    def wo_stage(i):
        A(f"ds_write_b128 v7, v[{W+4*i}:{W+4*i+3}] offset:{(i&7)*1024}")
        if i & 7 == 7:
            ks = i >> 3
            for tt in range(8):
                for jh in range(2):
                    d = W + (ks * 8 + tt) * 4 + jh * 2
                    A(f"ds_read_b64_tr_b16 v[{d}:{d+1}], v8 offset:{jh*1024+tt*32}")
    for i in range(32):
        if i >= SD:
            A(f"s_waitcnt vmcnt({SD-1})")
        A(f"buffer_load_dwordx4 v[{W+4*i}:{W+4*i+3}], v14, s[44:47], s64 offen {wpol}")
        if i < 31: A("s_addk_i32 s64, 0x1000")
        if i >= SD: wo_stage(i - SD)
    for i in range(max(0, 32 - SD), 32):
        A(f"s_waitcnt vmcnt({31 - i})")
        wo_stage(i)
    A("L_s_now:")
    stamp(5)
    if "f" in abl: A("s_branch L_s_noffn")
    W2 = 208
    A("s_cmp_lg_u32 s76, 1\ns_cbranch_scc1 L_s_noffn")
    A("s_load_dwordx4 s[28:31], s[0:1], 48")
    srd(44, 32, 1376 * 1024)
    A("s_lshl_b32 s64, s77, 15\ns_lshl_b32 s13, s12, 8\ns_add_u32 s64, s64, s13")
    for i in range(8):
        if i >= SF: A(f"s_waitcnt vmcnt({SF-1})")
        A(f"buffer_load_dwordx4 v[{W2+4*i}:{W2+4*i+3}], v14, s[44:47], s64 offen {tpol}\ns_addk_i32 s64, 0x1000")
    A(f"""v_lshrrev_b32 v9, 2, v1
v_mul_u32_u24 v9, 2752, v9
v_lshl_add_u32 v9, v5, 4, v9
s_and_b32 s13, s12, 1
s_mul_i32 s64, s13, {256*2752}
s_lshl_b32 s14, s77, 6
s_add_u32 s64, s64, s14
s_lshl_b32 s65, s12, 14
s_add_u32 s65, s65, {L_EXT}
s_waitcnt lgkmcnt(0)
s_cmp_lt_u32 s12, 2
s_cselect_b32 s44, s28, s30
s_cselect_b32 s45, s29, s31
s_mov_b32 s46, {512*2752:#x}""")
    for i in range(8):
        A(f"s_waitcnt vmcnt({7 - i})\nds_write_b128 v7, v[{W2+4*i}:{W2+4*i+3}] offset:{i*1024}")
    for tt in range(8):
        for jh in range(2):
            A(f"ds_read_b64_tr_b16 v[{W2+4*tt+2*jh}:{W2+4*tt+2*jh+1}], v8 offset:{jh*1024+tt*32}")
    for i in range(16):
        if i >= SF: A(f"s_waitcnt vmcnt({SF-1})")
        A(f"s_mov_b32 m0, s65\nbuffer_load_dwordx4 v9, s[44:47], s64 offen {fpol} lds\ns_add_u32 s64, s64, {16*2752:#x}\ns_addk_i32 s65, 0x400")
    A("L_s_noffn:")
    A(f"""v_mul_u32_u24 v15, {OSTR}, v5
v_lshl_add_u32 v15, v3, 4, v15
v_add_u32 v15, {L_O}, v15
v_and_b32 v10, 1, v1
v_lshlrev_b32 v29, 4, v3
s_mov_b32 s13, {32*3072}
v_mul_lo_u32 v11, v10, s13
v_add_u32 v29, v29, v11
v_cmp_gt_u32 vcc, 2, v2
v_cndmask_b32 v29, v31, v29, vcc
s_mul_i32 s75, s12, {8*3072}
s_lshl_b32 s13, s77, 6
s_add_u32 s75, s75, s13
s_add_u32 s75, s75, {WS_OP}
v_lshlrev_b32 v28, 6, v10
v_lshl_add_u32 v28, v3, 4, v28
v_add_u32 v28, {L_HH}, v28
v_mov_b32 v20, {L_FL}
v_mov_b32 v21, s10
v_mov_b32 v22, 0xffffff00
s_lshr_b32 s92, s10, 8
s_lshr_b32 s93, s10, 16
s_lshr_b32 s94, s10, 24
s_waitcnt vmcnt(0) lgkmcnt(0)""")
    if dry:
        A(f"""s_mov_b32 s98, 0
s_mov_b32 s70, 0
s_mov_b32 s64, s74
s_mov_b32 s65, s75
v_mov_b32 v10, v29
v_mov_b32 v11, v30
v_mov_b32 v29, v31
v_mov_b32 v30, v31
s_branch L_stepA
L_dryret2:
s_mov_b32 s74, s64
s_mov_b32 s75, s65
v_mov_b32 v29, v10
v_mov_b32 v30, v11
s_waitcnt vmcnt(0) lgkmcnt(0)""")
    A(f"s_mov_b32 s98, {TMO*4}\ns_mov_b32 s70, {TMO*4}")
    stamp(6)
    A("s_barrier\nL_stepA:")
    stamp(7)
    if "t" in abl: A("s_branch L_fin2")
    OB, DY = 192, 32
    TAGB = ["s10", "s92", "s93", "s94"]
    for ks in range(4): A(f"ds_read_b128 v[{OB+4*ks}:{OB+4*ks+3}], v15 offset:{ks*64}")
    def ypost(tt):
        D = DY + 4 * tt
        ops = [f"v_add_f32_dpp v{D+r}, v{D+r}, v{D+r} quad_perm:[1,0,3,2] row_mask:0xf bank_mask:0xf" for r in range(4)]
        ops += [f"v_add_f32_dpp v{D+r}, v{D+r}, v{D+r} quad_perm:[2,3,0,1] row_mask:0xf bank_mask:0xf" for r in range(4)]
        ops += [f"v_bfi_b32 v{D+r}, v22, v{D+r}, {TAGB[r]}" for r in range(4)]
        ops += [f"buffer_store_dwordx4 v[{D}:{D+3}], v30, s[52:55], s74 offen sc1" + ("\ns_addk_i32 s74, 0x2000" if tt < 7 else "")]
        return ops
    for tt in range(8):
        D = DY + 4 * tt
        for ks in range(4):
            if tt == 0: A(f"s_waitcnt lgkmcnt({3-ks})")
            mfma32(D, W + (ks * 8 + tt) * 4, OB + 4 * ks, ks == 0)
            if tt >= 2:
                po = ypost(tt - 2)
                for o in po[3 * ks: 3 * ks + 3]: A(o)
                if ks == 3: A(po[12])
    for tt in (6, 7):
        for o in ypost(tt): A(o)
    stamp(8)
    A("s_cmp_lg_u32 s76, 1\ns_cbranch_scc1 L_fin2")
    A("""L_f2:
ds_read_b128 v[24:27], v20 offset:16
ds_read_b128 v[16:19], v28
s_waitcnt lgkmcnt(0)""")
    tagcheck([24, 25, 26, 27], 21)
    poll_dry("L_f2")
    stamp(9)
    def opost(tt):
        D = DY + 4 * tt
        for r in range(4): A(f"v_bfi_b32 v{D+r}, v22, v{D+r}, {TAGB[r]}")
        A(f"buffer_store_dwordx4 v[{D}:{D+3}], v29, s[52:55], s75 offen sc1\ns_addk_i32 s75, 0xc00")
    for tt in range(8):
        mfma32(DY + 4 * tt, W2 + 4 * tt, 16, True)
        if tt >= 2: opost(tt - 2)
    opost(6); opost(7)
    stamp(10)
    A("L_fin2:")
    if dry: A("s_cmp_eq_u32 s98, 0\ns_cbranch_scc1 L_dryret2")
    finish()
    for st in stubs: A(st)
    regs = [16, 20, 24, 28, 32, 36, 56, 60]
    A(f"""L_mlx:
s_cmp_eq_u32 s12, 0
s_cbranch_scc1 L_ml0
s_sub_u32 s14, s12, 1
s_lshl_b32 s14, s14, 7
s_add_u32 s94, s96, s14
s_addc_u32 s95, s97, 0
s_branch L_fchk
L_fpoll:
s_load_dwordx16 s[16:31], s[94:95], 0 glc
s_load_dwordx8 s[32:39], s[94:95], 64 glc
s_load_dwordx8 s[56:63], s[94:95], 96 glc
L_fchk:
s_waitcnt lgkmcnt(0)
s_mov_b32 s15, 0""")
    for g in regs:
        A(f"s_xor_b32 s14, s{g+1}, s10\ns_or_b32 s15, s15, s14\ns_xor_b32 s14, s{g+3}, s10\ns_or_b32 s15, s15, s14")
    A("s_sub_u32 s70, s70, 1\ns_cbranch_scc1 L_bail\ns_cmp_lg_u32 s15, 0\ns_cbranch_scc1 L_fpoll")
    A("v_mov_b32 v29, v30")
    for g in regs: A(f"v_max_f32 v30, s{g}, v30")
    A("v_sub_f32 v29, v29, v30")
    for k, g in enumerate(regs): A(f"v_sub_f32 v{16+k}, s{g}, v30")
    A("v_mul_f32 v29, s13, v29")
    for k in range(8): A(f"v_mul_f32 v{16+k}, s13, v{16+k}")
    A("v_exp_f32 v29, v29")
    for k in range(8): A(f"v_exp_f32 v{16+k}, v{16+k}")
    A("v_mul_f32 v31, v31, v29")
    for k, g in enumerate(regs): A(f"v_fmac_f32 v31, s{g+2}, v{16+k}")
    A("s_cmp_eq_u32 s12, 2\ns_cbranch_scc1 L_ml2")
    ml_loads(1)
    A("s_branch L_vloop\nL_ml0:")
    ml_loads(0)
    A("""s_branch L_vloop
L_ml2:
v_sub_f32 v30, s73, v30
v_rcp_f32 v31, v31
v_mul_f32 v30, s13, v30
v_exp_f32 v30, v30
s_nop 0
v_mul_f32 v30, v30, v31
s_branch L_vloop""")

    if diag:
        A("L_dump:")
        A("s_memrealtime s[78:79]\ns_waitcnt lgkmcnt(0)\ns_mov_b32 s91, s78")
        A("v_mov_b32 v8, 0")
        for i in range(12): A(f"v_writelane_b32 v8, s{80+i}, {i}")
        if dbg:
            A("""s_cmp_ge_u32 s3, 4
s_cbranch_scc1 L_bail
s_load_dwordx2 s[40:41], s[0:1], 96
s_not_b32 s12, s80
s_not_b32 s13, s85
s_cmp_eq_u32 s76, 4
s_cselect_b32 s14, s88, 0
s_cselect_b32 s15, s90, 0
v_mov_b32 v8, 0
v_writelane_b32 v8, s12, 0
v_writelane_b32 v8, s80, 1
v_writelane_b32 v8, s81, 2
v_writelane_b32 v8, s82, 3
v_writelane_b32 v8, s83, 4
v_writelane_b32 v8, s13, 5
v_writelane_b32 v8, s85, 6
v_writelane_b32 v8, s14, 7
v_writelane_b32 v8, s15, 8
v_writelane_b32 v8, s91, 9
s_waitcnt lgkmcnt(0)""")
            srd(56, 40, 40)
            A("v_lshlrev_b32 v9, 2, v1\nbuffer_atomic_umax v8, v9, s[56:59], 0 offen sc1")
        else:
            A(f"""s_lshl_b32 s12, s2, 3
s_add_u32 s12, s12, s3
s_lshl_b32 s12, s12, 8
s_add_u32 s12, s12, {WS_STAMP}
s_mov_b32 s54, 0x300000
v_lshlrev_b32 v9, 2, v1
buffer_store_dword v8, v9, s[52:55], s12 offen""")
    A("L_bail:\ns_endpgm")
    A.raw("L_codeend:")
    A.raw(f""".section .rodata,"a"
.p2align 6
.amdhsa_kernel {KNAME}
  .amdhsa_next_free_vgpr 256
  .amdhsa_next_free_sgpr 102
  .amdhsa_accum_offset 256
  .amdhsa_group_segment_fixed_size 0
  .amdhsa_kernarg_size 112
  .amdhsa_user_sgpr_count 2
  .amdhsa_user_sgpr_kernarg_segment_ptr 1
  .amdhsa_system_sgpr_workgroup_id_x 1
  .amdhsa_float_denorm_mode_32 3
.end_amdhsa_kernel""")
    return A.text()

if __name__ == "__main__":
    out = sys.argv[1]
    kw = json.loads(sys.argv[2]) if len(sys.argv) > 2 else {}
    open(out, "w").write(gen(**kw))
```

```python
import sys, json
sys.path.insert(0, "dev")
from asmlib import Asm

KNAME = "adaLN_cond__mha_block_cached__glu_gated_swiglu__decode_kernel"

WS_G, WS_X1, WS_ML, WS_QP, WS_QP8, WS_Y, WS_OP, WS_MP = 0x1000, 0x6000, 0x8000, 0x10000, 0x50000, 0x70000, 0xf0000, 0x150000
WS_X1 = 0x180000
WS_END = 0x188000
WS_STAMP = 0x200000
OSTR = 272
LOG2E = 0x3fb8aa3b
SCALE = 0x3db504f3
EPS = 0x3727c5ac
OOB = 0x7ff00000
TMO = 1 << 18

def gen(R=48, X=28, CAP0=6, CAP=6, diag=False, NB=(128, 128, 128, 128), NBF=(120, 132, 128, 132), SD=3, SMD=8, SQ=16, FP=60, shr=3,
        dsleep=0, wpol="", fpol="", gpol="sc1", tpol="nt", kvpol="nt", prio=3, SF=3, abl="", bsleep=0, csleep=0, cpol="sc1", dbg=0, WUP=1, CAP2=None, SW=64, fastc=1, f2sleep=0, dry=1, x1pre=0, pp=1, stag=6, ppx=0, ppd=0, xrep=1, xsleep=0, wmask=31, MLI=3, vpol="nt"):
    A = Asm()
    NBF = NBF or NB
    assert sum(NB) == 512 and sum(NBF) == 512
    VARS = sorted({(n - w + 3) // 4 for n in list(NB) + list(NBF) for w in range(4)})
    NS = (4 * max(VARS) + 15) // 16
    L_EXT = 32768
    SM = L_EXT + 4096 * X
    SM = max(SM, L_EXT + 65536)
    L_HL, L_SC, L_Q, L_HH, L_FL, L_O, L_DUM, L_H2 = SM, SM + 256, SM + 768, SM + 1024, SM + 1152, SM + 1184, SM + 2272, SM + 3296
    LDS_BYTES = L_H2 + 2048
    assert LDS_BYTES <= 163840

    def stamp(idx):
        if not diag: return
        A("s_memrealtime s[78:79]\ns_waitcnt lgkmcnt(0)")
        A(f"s_mov_b32 s{80+idx}, s78")
    def srd(d, base, nrec, off_lo=None):
        if off_lo is None:
            A(f"s_mov_b32 s{d}, s{base}\ns_mov_b32 s{d+1}, s{base+1}")
        else:
            A(f"s_add_u32 s{d}, s{base}, {off_lo}\ns_addc_u32 s{d+1}, s{base+1}, 0")
        A(f"s_mov_b32 s{d+2}, {nrec if isinstance(nrec, str) else hex(nrec)}\ns_mov_b32 s{d+3}, 0x20000")
    def finish():
        A("s_branch L_dump" if diag else "s_endpgm")
    def poll_tail(lbl, cnt="s70", sleep=0):
        A(f"s_sub_u32 {cnt}, {cnt}, 1\ns_cbranch_scc1 L_bail")
        if sleep:
            ok = A.newlabel("L_ok")
            A(f"s_cbranch_vccz {ok}\ns_sleep {sleep}\ns_branch {lbl}\n{ok}:")
        else:
            A(f"s_cbranch_vccnz {lbl}")
    stubs = []
    def poll_dry(lbl):
        out = A.newlabel("L_out"); to = A.newlabel("L_to")
        A(f"s_sub_u32 s70, s70, 1\ns_cbranch_scc1 {to}\ns_cbranch_vccnz {lbl}\n{out}:")
        stubs.append(f"{to}:\ns_cmp_eq_u32 s98, 0\ns_cbranch_scc1 {out}\ns_endpgm")
    def unpack(lo, hi, src):
        A(f"v_lshlrev_b32 v{lo}, 16, v{src}\nv_and_b32 v{hi}, 0xffff0000, v{src}")
    def allreduce(op, regs):
        for c in ("row_ror:8", "row_ror:4", "row_ror:2", "row_ror:1"):
            for r in regs:
                A(f"{op}_dpp v{r}, v{r}, v{r} {c} row_mask:0xf bank_mask:0xf")
        for r in regs:
            A(f"{op}_dpp v{r}, v{r}, v{r} row_bcast:15 row_mask:0xa bank_mask:0xf")
        for r in regs:
            A(f"{op}_dpp v{r}, v{r}, v{r} row_bcast:31 row_mask:0xc bank_mask:0xf")
    def mfma32(D, a, b, first):
        A(f"v_mfma_f32_16x16x32_bf16 v[{D}:{D+3}], v[{a}:{a+3}], v[{b}:{b+3}], " + ("0" if first else f"v[{D}:{D+3}]"))
    def tagcheck(regs, tagv):
        for i, rr in enumerate(regs):
            if i == 0: A(f"v_cmp_ne_u32 vcc, v{tagv}, v{rr}")
            else: A(f"v_cmp_ne_u32 s[66:67], v{tagv}, v{rr}\ns_or_b64 vcc, vcc, s[66:67]")
    def scalar_wait(lbl, soff, offs):
        A(f"s_add_u32 s96, s42, {soff}\ns_addc_u32 s97, s43, 0\ns_mov_b32 s71, 64")
        A(f"{lbl}:")
        for i, o in enumerate(offs): A(f"s_load_dword s{16+i}, s[96:97], {o} glc")
        A("s_waitcnt lgkmcnt(0)")
        for i in range(len(offs)): A(f"s_xor_b32 s{16+i}, s{16+i}, s10")
        for i in range(1, len(offs)): A(f"s_or_b32 s16, s16, s{16+i}")
        A(f"s_sub_u32 s71, s71, 1\ns_cbranch_scc1 {lbl}x\ns_cmp_lg_u32 s16, 0\ns_cbranch_scc1 {lbl}\n{lbl}x:")
    def roles():
        l = A.newlabel("L_role")
        A(f"""s_lshr_b32 s12, s2, 4
s_lshl_b32 s77, s4, 3
s_and_b32 s13, s12, 7
s_add_u32 s77, s77, s13
s_mov_b32 s72, s77
s_lshr_b32 s76, s12, 3
s_lshl_b32 s76, s76, 2
s_cmp_ge_u32 s9, 2
s_cbranch_scc1 {l}
s_lshl_b32 s72, s4, 4
s_add_u32 s72, s72, s12
s_add_u32 s72, s72, 64
s_lshr_b32 s77, s4, 1
s_mul_i32 s77, s77, 11
s_add_u32 s77, s77, s12
s_cmp_lt_u32 s77, 43
s_cselect_b32 s76, 1, 0
s_cmp_lt_u32 s12, 11
s_cselect_b32 s76, s76, 0
s_cmp_eq_u32 s9, 0
s_cselect_b32 s76, s76, 0
{l}:""")
    def layernorm8(X_, T, eps_s):
        X = X_
        A(f"""v_add_f32 v{T}, v{X}, v{X+1}
v_add_f32 v{T+1}, v{X+2}, v{X+3}
v_add_f32 v{T+2}, v{X+4}, v{X+5}
v_add_f32 v{T+3}, v{X+6}, v{X+7}
v_add_f32 v{T}, v{T}, v{T+1}
v_add_f32 v{T+2}, v{T+2}, v{T+3}
v_add_f32 v{T}, v{T}, v{T+2}""")
        allreduce("v_add_f32", [T])
        A(f"v_readlane_b32 s71, v{T}, 63")
        A(f"v_mov_b32 v{T+1}, 0x3b000000\nv_mul_f32 v{T}, s71, v{T+1}")
        A(f"v_cvt_pk_bf16_f32 v{T+2}, v{T}, v{T}")
        for k in range(8): A(f"v_sub_f32 v{T+4+k}, v{X+k}, v{T}")
        A(f"v_and_b32 v{T+2}, 0xffff0000, v{T+2}")
        A(f"v_mul_f32 v{T+3}, v{T+4}, v{T+4}\nv_mul_f32 v{T}, v{T+5}, v{T+5}")
        for k in range(2, 8, 2):
            A(f"v_fmac_f32 v{T+3}, v{T+4+k}, v{T+4+k}\nv_fmac_f32 v{T}, v{T+5+k}, v{T+5+k}")
        A(f"v_add_f32 v{T+3}, v{T+3}, v{T}")
        steps = ["row_ror:8 row_mask:0xf", "row_ror:4 row_mask:0xf", "row_ror:2 row_mask:0xf", "row_ror:1 row_mask:0xf", "row_bcast:15 row_mask:0xa", "row_bcast:31 row_mask:0xc"]
        fill = [f"v_sub_f32 v{X+k}, v{X+k}, v{T+2}" for k in range(8)] + [f"v_cvt_pk_bf16_f32 v{T+4+k}, v{X+2*k}, v{X+2*k+1}" for k in range(4)]
        for si, st in enumerate(steps):
            A(fill[2 * si]); A(fill[2 * si + 1])
            A(f"v_add_f32_dpp v{T+3}, v{T+3}, v{T+3} {st} bank_mask:0xf")
        unpack(X, X + 1, T + 4)
        A(f"v_readlane_b32 s71, v{T+3}, 63")
        unpack(X + 2, X + 3, T + 5)
        A(f"v_mul_f32 v{T}, s71, v{T+1}")
        unpack(X + 4, X + 5, T + 6)
        A(f"v_cvt_pk_bf16_f32 v{T}, v{T}, v{T}")
        unpack(X + 6, X + 7, T + 7)
        A(f"v_and_b32 v{T}, 0xffff0000, v{T}")
        A(f"v_add_f32 v{T}, {eps_s}, v{T}")
        A(f"v_cvt_pk_bf16_f32 v{T}, v{T}, v{T}\nv_and_b32 v{T}, 0xffff0000, v{T}")
        A(f"v_sqrt_f32 v{T}, v{T}")
        A(f"v_cvt_pk_bf16_f32 v{T}, v{T}, v{T}\nv_and_b32 v{T}, 0xffff0000, v{T}")
        A(f"v_rcp_f32 v{T}, v{T}")
        for k in range(8): A(f"v_mul_f32 v{X+k}, v{X+k}, v{T}")
        for k in range(4): A(f"v_cvt_pk_bf16_f32 v{T+4+k}, v{X+2*k}, v{X+2*k+1}")
        for k in range(4): unpack(X + 2 * k, X + 2 * k + 1, T + 4 + k)

    hdr = open("adaLN_cond__mha_block_cached__glu_gated_swiglu__decode.s.ref").read().split("\n")
    for l in hdr:
        if l.startswith("; @launch"): break
        A.raw(l)
    A.raw(f"; @launch grid=(256,1,1) block=(512,1,1) lds={LDS_BYTES}")
    A.raw('.amdgcn_target "amdgcn-amd-amdhsa--gfx950"\n.text')
    A.raw("""; One persistent launch, 256 workgroups x 8 waves (one workgroup per CU).
;  (word 0 of d_ws + constant), so stale contents are never taken for data.""")
    A.raw(f".globl {KNAME}\n.p2align 8\n.type {KNAME},@function\n{KNAME}:")
    A("s_cmp_ge_u32 s2, 256\ns_cbranch_scc1 L_bail")
    A("s_load_dwordx16 s[16:31], s[0:1], 0\ns_load_dwordx8 s[32:39], s[0:1], 64\ns_load_dwordx4 s[40:43], s[0:1], 96")
    if diag:
        for i in range(12): A(f"s_mov_b32 s{80+i}, 0")
        A("s_memrealtime s[78:79]")
    A(f"""v_and_b32 v1, 63, v0
v_lshrrev_b32 v2, 6, v0
v_readfirstlane_b32 s3, v2
s_mov_b32 s98, {TMO*4}
s_mov_b32 s99, 0
s_and_b32 s4, s2, 7
s_lshr_b32 s5, s2, 3
s_lshr_b32 s8, s2, 7
s_lshr_b32 s6, s2, 4
s_and_b32 s6, s6, 7
s_lshl_b32 s6, s6, 2
s_bfe_u32 s7, s2, 0x20001
s_add_u32 s6, s6, s7
s_and_b32 s9, s5, 1
s_lshl_b32 s9, s9, 1
s_and_b32 s7, s2, 1
s_add_u32 s9, s9, s7
s_lshl_b32 s7, s8, 2
s_add_u32 s7, s7, s9
v_and_b32 v2, 15, v1
v_lshrrev_b32 v3, 4, v1
v_bfe_u32 v4, v1, 2, 2
v_and_b32 v5, 3, v1
s_cmp_ge_u32 s3, 4
s_cbranch_scc1 L_service""")
    RING = 256 - 4 * R
    QOP, MSK, DB, OA, SR = 8, 24, 28, 36, 40
    assert RING >= SR + NS
    VK, VV = 6, 7
    base = [0, NB[0], NB[0] + NB[1], NB[0] + NB[1] + NB[2]]
    basef = [0, NBF[0], NBF[0] + NBF[1], NBF[0] + NBF[1] + NBF[2]]
    A(f"""s_lshl_b32 s12, s3, 12
v_lshlrev_b32 v{VK}, 8, v4
v_lshl_add_u32 v{VK}, v3, 6, v{VK}
v_lshl_add_u32 v{VK}, v5, 4, v{VK}
v_add_u32 v{VK}, s12, v{VK}
v_lshlrev_b32 v{VV}, 4, v1
v_add_u32 v{VV}, s12, v{VV}
s_lshl_b32 s13, s2, 19
s_and_b32 s13, s13, 0xff800000
s_lshl_b32 s14, s6, 21
s_and_b32 s14, s14, 0x600000
s_add_u32 s13, s13, s14
s_lshr_b32 s12, s4, 1
s_mul_i32 s12, s12, 11
s_lshr_b32 s15, s2, 4
s_add_u32 s12, s12, s15
s_max_u32 s15, s15, 10
s_add_u32 s12, s12, s15
s_mov_b32 s14, {base[0] | base[1] << 16:#x}
s_mov_b32 s15, {base[2] | base[3] << 16:#x}
s_mov_b32 s75, {NB[0] | NB[1] << 8 | NB[2] << 16 | NB[3] << 24:#x}
s_lshr_b32 s64, s2, 4
s_cmp_lt_u32 s64, 11
s_cselect_b32 s12, s12, 99
s_cmp_lt_u32 s12, 53
s_cselect_b32 s14, {basef[0] | basef[1] << 16:#x}, s14
s_cselect_b32 s15, {basef[2] | basef[3] << 16:#x}, s15
s_cselect_b32 s75, {NBF[0] | NBF[1] << 8 | NBF[2] << 16 | NBF[3] << 24:#x}, s75
s_lshl_b32 s12, s9, 4
s_lshr_b64 s[14:15], s[14:15], s12
s_and_b32 s14, s14, 0xffff
s_lshl_b32 s14, s14, 12
s_add_u32 s13, s13, s14
s_lshl_b32 s12, s9, 3
s_lshr_b32 s75, s75, s12
s_and_b32 s75, s75, 0xff
s_lshl_b32 s74, s75, 12
s_mov_b32 s64, 0
s_mov_b32 s65, 0
s_waitcnt lgkmcnt(0)""")
    if diag: A("s_mov_b32 s80, s78")
    srd(44, 18, "s74", "s13")
    srd(48, 20, "s74", "s13")
    import copy
    class St: pass
    S = St()
    S.issued = []; S.known = 0; S.slot_of = {}; S.free = [RING + 4 * k for k in range(R)][::-1]
    VS = [208 + 4 * k for k in range(8)]
    S.n = R + X; S.l = R; S.done = None; S.NP = 4 * min(VARS)
    def kv_load(i, lds=False):
        NP = S.NP
        if i >= NP:
            S.slot_of[i] = VS[(i - NP) & 7]; S.free.remove(S.slot_of[i])
        elif not lds:
            S.slot_of[i] = [x for x in S.free if x not in VS or i < 4 * min(VARS) - 20][-1]; S.free.remove(S.slot_of[i])
        slot = S.slot_of.get(i)
        j = i % NP
        va, sr, so = (VK, 44, "s64") if i < NP else (VV, 48, "s65")
        if lds:
            if j & 3 == 0: A(f"s_add_u32 m0, s73, {(i - R) * 1024}")
            A(f"buffer_load_dwordx4 v{va}, s[{sr}:{sr+3}], {so} offen offset:{(j&3)*1024} {kvpol} lds")
        else:
            A(f"buffer_load_dwordx4 v[{slot}:{slot+3}], v{va}, s[{sr}:{sr+3}], {so} offen offset:{(j&3)*1024} {kvpol if i < NP else vpol}")
        if j & 3 == 3: A(f"s_addk_i32 {so}, 0x4000")
        S.issued.append(i)
    def wait_out(n):
        if len(S.issued) - S.known > n:
            A(f"s_waitcnt vmcnt({n})")
            S.known = len(S.issued) - n
    def wait_piece(p):
        wait_out(len(S.issued) - 1 - S.issued.index(p))
    assert R % 4 == 0 and X % 4 == 0
    for i in range(CAP0): kv_load(i)
    A("s_load_dword s11, s[42:43], 0")
    A(f"""v_and_b32 v28, 1, v1
v_cmp_eq_u32 vcc, 1, v28
v_mov_b32 v29, 0xffff
v_mov_b32 v30, 0xffff0000
v_cndmask_b32 v29, v29, v30, vcc
v_lshrrev_b32 v28, 1, v2""")
    for r in range(4):
        A(f"v_cmp_eq_u32 vcc, {r}, v28\nv_cndmask_b32 v{MSK+r}, 0, v29, vcc")
    srd(52, 42, WS_END)
    roles()
    A(f"""v_lshrrev_b32 v37, 2, v2
v_lshlrev_b32 v36, 6, v3
v_lshl_add_u32 v36, v37, 4, v36
v_add_u32 v36, {L_Q}, v36
s_mul_i32 s73, s3, {X*1024}
s_add_u32 s73, s73, {L_EXT}
v_lshlrev_b32 v38, 4, v1
v_add_u32 v38, s73, v38
s_sub_u32 s75, s75, s3
s_add_u32 s75, s75, 3
s_lshr_b32 s75, s75, 2
v_mov_b32 v{SR+NS-1}, 0xff800000
v_mov_b32 v{SR+NS-2}, 0xff800000""")
    assert 4 * min(VARS) > 16 * (NS - 2)
    for i in range(CAP0, R):
        wait_out(CAP0 - 1)
        kv_load(i)
    if X:
        A(f"s_mov_b32 m0, s73\ns_mov_b32 s12, {X//4 - 1}\nL_dma:")
        for j in range(4):
            A(f"s_waitcnt vmcnt({CAP0-1})\nbuffer_load_dwordx4 v{VK}, s[44:47], s64 offen offset:{j*1024} {kvpol} lds")
        A("s_addk_i32 s64, 0x4000\ns_add_u32 m0, m0, 0x1000\ns_sub_u32 s12, s12, 1\ns_cbranch_scc0 L_dma")
        S.issued.extend(range(R, R + X)); S.known = len(S.issued) - CAP0
    A("s_waitcnt lgkmcnt(0)")
    A("s_add_u32 s10, s11, 0x9e3779b9")
    stamp(1)
    A("s_barrier")
    stamp(2)
    A(f"ds_read_b128 v[{DB}:{DB+3}], v36")
    A("s_waitcnt lgkmcnt(0)")
    for t in range(4):
        A(f"v_cmp_eq_u32 vcc, {t}, v5")
        for r in range(4): A(f"v_cndmask_b32 v{QOP+4*t+r}, 0, v{DB+r}, vcc")
    def post_ops(G):
        u = G & 3; Sg = SR + (G >> 2); D = DB + 4 * (G & 1)
        ops = [f"v_mov_b32_dpp v{Sg}, v{D+u} quad_perm:[0,1,2,3] row_mask:0xf bank_mask:{1<<u:#x}"]
        for b in range(4):
            if b == u: continue
            ops.append(f"v_add_f32_dpp v{Sg}, v{D+b}, v{Sg} row_ror:{4 * ((u - b) % 4)} row_mask:0xf bank_mask:{1<<u:#x}")
        return ops
    def cap(c):
        return CAP2 if (CAP2 and c >= S.NP + SW) else CAP
    def prefill(c):
        while S.n < 2 * S.NP and S.n - c <= cap(c) and S.free:
            wait_out(cap(c) - 1)
            kv_load(S.n)
            S.n += 1
            S.done = c
    def refill(c):
        S.free.append(S.slot_of[c])
        if S.done == c: return
        issued_now = False
        if S.n < 2 * S.NP and (S.n - c <= CAP or c % shr == shr - 1):
            wait_out(CAP - 1)
            kv_load(S.n)
            S.n += 1
            issued_now = True
        if S.l < R + X and len(S.free) >= 2 and (not issued_now or shr < 3):
            p = S.l; slot = S.slot_of[p] = S.free.pop(0)
            assert True
            wait_piece(p)
            A(f"ds_read_b128 v[{slot}:{slot+3}], v38 offset:{(p-R)*1024}")
            S.l = p + 1
    def k_step(i):
        slot = S.slot_of[i]
        G = i >> 2; t = i & 3; D = DB + 4 * (G & 1)
        if i == R: A("s_waitcnt lgkmcnt(0)\ns_barrier"); assert S.l == R + X
        wait_piece(i)
        prefill(i)
        mfma32(D, slot, QOP + 4 * t, t == 0)
        po = post_ops(G - 1) if (G > 0 and t >= 2) else None
        if po: A(po[2 * (t - 2)])
        refill(i)
        if po: A(po[2 * (t - 2) + 1])
    ic = 0
    while S.n < S.NP - 1:
        k_step(ic); ic += 1
    assert ic > R
    for v in VARS[1:]:
        A(f"s_cmp_eq_u32 s75, {v}\ns_cbranch_scc1 L_var{v}")
    snap = copy.deepcopy(S.__dict__); hist = list(A.hist)
    T0 = 8; AB = 8
    def sel(i):
        P = SR + (i >> 4); c = i & 15; a = AB + 4 * (i & 1)
        for r in range(4):
            A(f"v_and_b32_dpp v{a+r}, v{P}, v{MSK+r} row_newbcast:{c} row_mask:0xf bank_mask:0xf")
    def ml_loads(hf):
        A(f"""s_load_dwordx16 s[16:31], s[96:97], {hf*128} glc
s_load_dwordx8 s[32:39], s[96:97], {hf*128+64} glc
s_load_dwordx8 s[56:63], s[96:97], {hf*128+96} glc""")
    for v in VARS:
        S.__dict__.update(copy.deepcopy(snap)); A.hist = list(hist)
        NP = S.NP = 4 * v
        ns = (NP + 15) // 16
        A(f"L_var{v}:")
        for i in range(ic, NP): k_step(i)
        for o in post_ops(NP // 4 - 1): A(o)
        assert S.n == NP + CAP, (S.n, NP)
        if v != VARS[-1]: A("s_branch L_soft")
    A("L_soft:\ns_nop 1")
    ns = NS
    stamp(3)
    A(f"s_mov_b32 s12, {SCALE:#x}\ns_mov_b32 s13, {LOG2E:#x}")
    def round_pairs():
        for k in range(0, ns, 2):
            A(f"v_cvt_pk_bf16_f32 v{T0+k//2}, v{SR+k}, v{SR+min(k+1, ns-1)}")
        for k in range(0, ns, 2):
            if k + 1 < ns: unpack(SR + k, SR + k + 1, T0 + k // 2)
            else: A(f"v_lshlrev_b32 v{SR+k}, 16, v{T0+k//2}")
    round_pairs()
    for k in range(ns): A(f"v_mul_f32 v{SR+k}, s12, v{SR+k}")
    round_pairs()
    A(f"v_max3_f32 v{T0}, v{SR}, v{SR+1}, v{SR+2}\nv_max3_f32 v{T0+1}, v{SR+3}, v{SR+4}, v{SR+5}\nv_max3_f32 v{T0}, v{T0}, v{SR+6}, v{SR+7}")
    if ns > 8: A(f"v_max_f32 v{T0+1}, v{T0+1}, v{SR+8}")
    A(f"v_max_f32 v{T0}, v{T0}, v{T0+1}")
    allreduce("v_max_f32", [T0])
    A(f"v_readlane_b32 s73, v{T0}, 63")
    for k in range(ns): A(f"v_subrev_f32 v{SR+k}, s73, v{SR+k}")
    for k in range(ns): A(f"v_mul_f32 v{SR+k}, s13, v{SR+k}")
    for k in range(ns): A(f"v_exp_f32 v{SR+k}, v{SR+k}")
    A(f"""v_add_f32 v{T0}, v{SR}, v{SR+1}
v_add_f32 v{T0+1}, v{SR+2}, v{SR+3}
v_add_f32 v{T0+2}, v{SR+4}, v{SR+5}
v_add_f32 v{T0+3}, v{SR+6}, v{SR+7}
v_add_f32 v{T0}, v{T0}, v{T0+1}
v_add_f32 v{T0+2}, v{T0+2}, v{T0+3}""")
    if ns > 8: A(f"v_add_f32 v{T0}, v{T0}, v{SR+8}")
    A(f"v_add_f32 v18, v{T0}, v{T0+2}")
    for k in range(ns): A(f"v_cvt_pk_bf16_f32 v{SR+k}, v{SR+k}, v{SR+k}")
    allreduce("v_add_f32", [18])
    A(f"""v_mov_b32 v16, s73
v_mov_b32 v17, s10
v_mov_b32 v19, s10
s_lshl_b32 s12, s8, 5
s_add_u32 s12, s12, s6
s_lshl_b32 s12, s12, 8
s_add_u32 s12, s12, {WS_ML}
s_add_u32 s96, s42, s12
s_addc_u32 s97, s43, 0
s_lshl_b32 s13, s9, 6
s_add_u32 s12, s12, s13
s_lshl_b32 s13, s3, 4
s_add_u32 s12, s12, s13
v_mov_b32 v20, {OOB:#x}
v_mov_b32 v21, 0
v_cmp_eq_u32 vcc, 63, v1
v_cndmask_b32 v20, v20, v21, vcc
v_lshlrev_b32 v22, 3, v1
v_add_u32 v22, {L_DUM}, v22
buffer_store_dwordx4 v[16:19], v20, s[52:55], s12 offen sc1
s_mul_i32 s12, s3, {OSTR}
s_add_u32 s12, s12, {L_O}
v_lshlrev_b32 v28, 4, v2
v_lshl_add_u32 v28, v3, 3, v28
v_add_u32 v28, s12, v28
v_cmp_gt_u32 vcc, 32, v1
v_cndmask_b32 v28, v22, v28, vcc
v_mov_b32 v{OA}, 0
v_mov_b32 v{OA+1}, 0
v_mov_b32 v{OA+2}, 0
v_mov_b32 v{OA+3}, 0
s_mov_b64 s[44:45], s[16:17]
s_mov_b64 s[46:47], s[38:39]
s_sub_u32 s75, s75, 1
s_mov_b32 s72, 0
s_mov_b32 s70, {TMO}
s_mov_b32 s13, {LOG2E:#x}
v_mov_b32 v30, s73
v_mov_b32 v31, 0""")
    stamp(4)
    sel(0)
    A(".p2align 6\nL_vloop:") if False else A("L_vloop:")
    for p_ in range(16):
        a = AB + 4 * (p_ & 1); n_ = p_ + CAP
        A(f"s_waitcnt vmcnt({CAP-1})")
        A(f"buffer_load_dwordx4 v[{VS[n_&7]}:{VS[n_&7]+3}], v{VV}, s[48:51], s65 offen offset:{(n_&3)*1024} {vpol}")
        if n_ & 3 == 3: A("s_addk_i32 s65, 0x4000")
        mfma32(OA, a, VS[p_ & 7], False)
        if p_ & 3 == 3: A("s_sub_u32 s75, s75, 1\ns_cbranch_scc1 L_vend")
        sel(p_ + 1)
    for k in range(ns - 1): A(f"v_mov_b32 v{SR+k}, v{SR+k+1}")
    A(f"""s_add_u32 s72, s72, 1
s_sub_u32 s12, s72, {MLI}
s_cmp_le_u32 s12, 2
s_cbranch_scc1 L_mlx
s_branch L_vloop""")
    A("""L_vend:
s_nop 5""")
    for r in range(4): A(f"v_mul_f32 v{OA+r}, v30, v{OA+r}")
    A(f"v_cvt_pk_bf16_f32 v32, v{OA}, v{OA+1}\nv_cvt_pk_bf16_f32 v33, v{OA+2}, v{OA+3}")
    A("ds_write_b64 v28, v[32:33]")
    A("s_cmp_eq_u32 s98, 0\ns_waitcnt lgkmcnt(0)\ns_cbranch_scc1 L_tail")
    stamp(5)
    A("s_barrier")
    stamp(6)
    if "t" in abl: A("s_branch L_fin")
    A("""L_tail:
s_cmp_eq_u32 s76, 4
s_cbranch_scc1 L_stepB
s_cmp_lg_u32 s76, 1
s_cbranch_scc1 L_fin""")
    WA = [64 + 4 * k for k in range(16)]; HB = [128 + 4 * k for k in range(16)]
    SB, C1, XX = 16, 24, 32
    A(f"""v_lshlrev_b32 v9, 9, v3
v_lshl_add_u32 v9, v4, 6, v9
v_and_b32 v11, 1, v1
v_lshl_add_u32 v9, v11, 3, v9
v_lshrrev_b32 v10, 1, v5
v_lshl_add_u32 v9, v10, 15, v9
s_lshl_b32 s12, s3, 4
s_add_u32 s14, s12, {L_EXT}
v_add_u32 v9, s14, v9""")
    for ks in range(16):
        for jh in range(2):
            A(f"ds_read_b64_tr_b16 v[{WA[ks]+2*jh}:{WA[ks]+2*jh+1}], v9 offset:{ks*2048+jh*256}")
    A(f"""v_mov_b32 v57, s10
v_lshlrev_b32 v12, 10, v11
v_lshl_add_u32 v12, v3, 4, v12
v_add_u32 v12, {L_H2}, v12
v_lshlrev_b32 v13, 6, v11
v_and_b32 v14, 1, v3
v_lshl_add_u32 v13, v14, 3, v13
v_lshrrev_b32 v14, 1, v3
v_lshl_add_u32 v13, v14, 2, v13
s_add_u32 s12, s12, {L_HH}
v_add_u32 v13, s12, v13
v_lshlrev_b32 v14, 2, v1
v_add_u32 v14, {L_DUM}, v14
s_min_u32 s14, s98, 2
v_cmp_gt_u32 vcc, s14, v2
v_cndmask_b32 v13, v14, v13, vcc
s_mov_b32 s68, {EPS:#x}
s_mov_b32 s69, {LOG2E:#x}
s_mov_b32 s70, s98
v_mov_b32 v15, {L_FL}
s_lshl_b32 s12, s3, 2
s_add_u32 s12, s12, {L_FL}
s_cmp_eq_u32 s98, 0
s_cselect_b32 s12, {L_DUM}, s12
v_mov_b32 v56, s12
s_sub_u32 s13, s3, 1
s_cmp_ge_u32 s13, 2
s_cbranch_scc1 L_c_h2s
s_lshl_b32 s14, s13, 11
s_add_u32 s14, s14, {WS_G + 4096}
s_add_u32 s15, s14, 4096
v_lshlrev_b32 v8, 5, v1
L_c_sbcb:""")
    for k, (so, of) in enumerate((("s14", 0), ("s14", 16), ("s15", 0), ("s15", 16))):
        A(f"buffer_load_dwordx4 v[{40+4*k}:{43+4*k}], v8, s[52:55], {so} offen offset:{of} sc1")
    A("s_waitcnt vmcnt(0)")
    tagcheck([42, 43, 46, 47, 50, 51, 54, 55], 57)
    poll_dry("L_c_sbcb")
    for k, rr in enumerate((40, 41, 44, 45)): unpack(SB + 2 * k, SB + 2 * k + 1, rr)
    for k, rr in enumerate((48, 49, 52, 53)): unpack(C1 + 2 * k, C1 + 2 * k + 1, rr)
    for k in range(8): A(f"v_add_f32 v{C1+k}, 1.0, v{C1+k}")
    for k in range(4): A(f"v_cvt_pk_bf16_f32 v{40+k}, v{C1+2*k}, v{C1+2*k+1}")
    for k in range(4): unpack(C1 + 2 * k, C1 + 2 * k + 1, 40 + k)
    A(f"""s_lshl_b32 s14, s13, 10
s_add_u32 s15, s14, {L_H2}
s_cmp_eq_u32 s98, 0
s_cselect_b32 s15, {L_DUM}, s15
s_lshl_b32 s14, s13, 12
s_add_u32 s14, s14, {WS_X1}
s_lshr_b32 s12, s4, 1
s_lshl_b32 s12, s12, {13 if xrep else 31}
s_andn2_b32 s12, s12, 0x80000000
s_add_u32 s14, s14, s12
v_lshlrev_b32 v8, 4, v1
v_add_u32 v10, s15, v8
v_lshrrev_b32 v8, 1, v1
v_lshlrev_b32 v8, 7, v8
v_lshl_add_u32 v8, v11, 5, v8
s_mov_b32 s12, 0x05040100
s_waitcnt lgkmcnt(0)""")
    stamp(7)
    def x1_loads(b):
        A(f"buffer_load_dwordx4 v[{b}:{b+3}], v8, s[52:55], s14 offen sc1\nbuffer_load_dwordx4 v[{b+4}:{b+7}], v8, s[52:55], s14 offen offset:16 sc1")
    def x1_check(b, extra):
        A(f"s_waitcnt vmcnt({extra})")
        for k in range(4): A(f"v_perm_b32 v{40+k}, v{b+2*k+1}, v{b+2*k}, s12")
        for k in range(4):
            A(f"v_sad_u8 v44, v{40+k}, v57, {'0' if k == 0 else 'v44'}")
            A(f"v_and_b32 v{XX+2*k}, 0xffff0000, v{b+2*k}\nv_and_b32 v{XX+2*k+1}, 0xffff0000, v{b+2*k+1}")
        A("v_cmp_ne_u32 vcc, 0, v44")
    A("s_mov_b32 s70, s98")
    if not ppx:
        if xsleep: A(f"s_branch L_c_x1\nL_c_x1s:\ns_sleep {xsleep}")
        A("L_c_x1:"); x1_loads(192); x1_check(192, 0); poll_dry("L_c_x1s" if xsleep else "L_c_x1")
    else:
        x1_loads(192)
        A(f"s_sleep {stag}\nL_c_x1:"); x1_loads(200); x1_check(192, 2)
        A("s_cbranch_vccz L_c_got")
        x1_loads(192); x1_check(200, 2)
        poll_dry("L_c_x1")
        A("L_c_got:")
    stamp(8)
    if not fastc:
        layernorm8(XX, 44, "s68")
        for k in range(8): A(f"v_mul_f32 v{XX+k}, v{XX+k}, v{C1+k}")
        for k in range(4): A(f"v_cvt_pk_bf16_f32 v{44+k}, v{XX+2*k}, v{XX+2*k+1}")
        for k in range(4): unpack(XX + 2 * k, XX + 2 * k + 1, 44 + k)
        for k in range(8): A(f"v_add_f32 v{XX+k}, v{XX+k}, v{SB+k}")
        for k in range(4): A(f"v_cvt_pk_bf16_f32 v{44+k}, v{XX+2*k}, v{XX+2*k+1}")
    else:
        A(f"v_readfirstlane_b32 s71, v{XX}")
        Dd = 44
        for k in range(8): A(f"v_subrev_f32 v{Dd+k}, s71, v{XX+k}")
        A(f"""v_add_f32 v40, v{Dd}, v{Dd+1}
v_mul_f32 v41, v{Dd}, v{Dd}
v_add_f32 v42, v{Dd+2}, v{Dd+3}
v_mul_f32 v43, v{Dd+1}, v{Dd+1}
v_add_f32 v52, v{Dd+4}, v{Dd+5}
v_fmac_f32 v41, v{Dd+2}, v{Dd+2}
v_add_f32 v53, v{Dd+6}, v{Dd+7}
v_fmac_f32 v43, v{Dd+3}, v{Dd+3}
v_add_f32 v40, v40, v42
v_fmac_f32 v41, v{Dd+4}, v{Dd+4}
v_add_f32 v52, v52, v53
v_fmac_f32 v43, v{Dd+5}, v{Dd+5}
v_fmac_f32 v41, v{Dd+6}, v{Dd+6}
v_fmac_f32 v43, v{Dd+7}, v{Dd+7}
v_add_f32 v40, v40, v52
v_add_f32 v41, v41, v43""")
        allreduce("v_add_f32", [40, 41])
        A(f"""v_readlane_b32 s72, v40, 63
v_readlane_b32 s73, v41, 63
v_mov_b32 v42, 0x3b000000
v_mul_f32 v40, s72, v42
v_mul_f32 v41, s73, v42
v_add_f32 v43, s71, v40
v_fma_f32 v41, -v40, v40, v41
v_cvt_pk_bf16_f32 v43, v43, v43
v_max_f32 v41, 0, v41
v_and_b32 v43, 0xffff0000, v43
v_cvt_pk_bf16_f32 v41, v41, v41
v_sub_f32 v{XX}, v{XX}, v43
v_and_b32 v41, 0xffff0000, v41
v_sub_f32 v{XX+1}, v{XX+1}, v43
v_add_f32 v41, s68, v41
v_sub_f32 v{XX+2}, v{XX+2}, v43
v_cvt_pk_bf16_f32 v41, v41, v41
v_sub_f32 v{XX+3}, v{XX+3}, v43
v_and_b32 v41, 0xffff0000, v41
v_sub_f32 v{XX+4}, v{XX+4}, v43
v_sqrt_f32 v41, v41
v_sub_f32 v{XX+5}, v{XX+5}, v43
v_sub_f32 v{XX+6}, v{XX+6}, v43
v_cvt_pk_bf16_f32 v41, v41, v41
v_sub_f32 v{XX+7}, v{XX+7}, v43
v_and_b32 v41, 0xffff0000, v41""")
        for k in range(4): A(f"v_mul_f32 v{XX+k}, v{XX+k}, v{C1+k}")
        A("v_rcp_f32 v41, v41")
        for k in range(4, 8): A(f"v_mul_f32 v{XX+k}, v{XX+k}, v{C1+k}")
        for k in range(8): A(f"v_fma_f32 v{XX+k}, v{XX+k}, v41, v{SB+k}")
        for k in range(4): A(f"v_cvt_pk_bf16_f32 v{44+k}, v{XX+2*k}, v{XX+2*k+1}")
    A("ds_write_b128 v10, v[44:47]\nds_write_b32 v56, v57\ns_mov_b32 s70, s98\ns_branch L_c_h2")
    A("L_c_h2s:\ns_sleep 1")
    A("L_c_h2:\nds_read2_b32 v[44:45], v15 offset0:1 offset1:2\ns_waitcnt lgkmcnt(0)")
    tagcheck([44, 45], 57)
    poll_dry("L_c_h2s")
    for ks in range(16): A(f"ds_read_b128 v[{HB[ks]}:{HB[ks]+3}], v12 offset:{ks*64}")
    for ks in range(16):
        A(f"s_waitcnt lgkmcnt({15-ks})")
        mfma32(40, WA[ks], HB[ks], ks == 0)
    A("v_permlane32_swap_b32 v40, v42\nv_permlane32_swap_b32 v41, v43")
    A("v_cvt_pk_bf16_f32 v44, v40, v41\nv_cvt_pk_bf16_f32 v45, v42, v43")
    unpack(40, 41, 44); unpack(42, 43, 45)
    A("""v_mul_f32 v44, s69, v40
v_mul_f32 v45, s69, v41
v_exp_f32 v44, -v44
v_exp_f32 v45, -v45
v_add_f32 v44, 1.0, v44
v_add_f32 v45, 1.0, v45
v_rcp_f32 v44, v44
v_rcp_f32 v45, v45
v_mul_f32 v40, v40, v44
v_mul_f32 v41, v41, v45
v_cvt_pk_bf16_f32 v44, v40, v41""")
    unpack(40, 41, 44)
    A("""v_mul_f32 v40, v40, v42
v_mul_f32 v41, v41, v43
v_cvt_pk_bf16_f32 v44, v40, v41
ds_write_b32 v13, v44
ds_write_b32 v56, v57 offset:16""")
    stamp(9)
    A("L_fin:\ns_cmp_eq_u32 s98, 0\ns_cbranch_scc1 L_dryret")
    finish()
    A("L_stepB:")
    A("s_cmp_lg_u32 s3, 0\ns_cbranch_scc1 L_fin")
    srd(56, 44, 2048)
    srd(60, 46, 2048)
    A(f"""s_lshl_b32 s14, s77, 6
s_add_u32 s14, s14, {WS_G}
s_add_u32 s13, s14, {3*4096}
s_lshl_b32 s15, s77, 5
s_lshl_b32 s72, s77, 13
s_add_u32 s72, s72, {WS_Y}
s_add_u32 s75, s72, 4096
s_lshl_b32 s73, s77, 7
s_add_u32 s73, s73, {WS_X1}
s_mul_i32 s74, s77, 3072
s_add_u32 s74, s74, {WS_OP}
v_lshlrev_b32 v8, 4, v5
v_lshlrev_b32 v9, 4, v1
v_lshlrev_b32 v12, 3, v5
v_lshl_add_u32 v13, v3, 1, v12
v_mov_b32 v10, {OOB:#x}
v_cmp_gt_u32 vcc, 44, v1
v_cndmask_b32 v14, v10, v9, vcc
v_cmp_gt_u32 vcc, 4, v1
v_cndmask_b32 v12, v10, v12, vcc
v_cmp_eq_u32 vcc, 0, v1
v_cndmask_b32 v10, v10, v1, vcc
v_mov_b32 v11, s10
v_and_b32 v15, 1, v3
v_lshlrev_b32 v15, 4, v15
v_sub_u32 v15, 16, v15
s_mov_b32 s12, 0x03020706
s_mov_b32 s68, 0x0c0c0400
v_and_b32 v38, 0xffff, v11
v_lshrrev_b32 v39, 16, v11
v_cmp_gt_u32 vcc, 44, v1
v_cndmask_b32 v40, 0, v38, vcc
v_cndmask_b32 v41, 0, v39, vcc
v_mov_b32 v42, 0xffff0000
v_cmp_eq_u32 vcc, 16, v15
v_cndmask_b32 v43, v39, v38, vcc
v_or_b32 v12, s99, v12
v_or_b32 v10, s99, v10
v_lshlrev_b32 v44, 13, v4
v_lshl_add_u32 v44, v5, 4, v44
v_mov_b32 v45, {OOB:#x}
v_cmp_gt_u32 vcc, {16 if xrep else 4}, v1
v_cndmask_b32 v44, v45, v44, vcc
v_or_b32 v44, s99, v44
s_mov_b32 s70, s98
buffer_load_ushort v16, v13, s[56:59], s15 offen""")
    A("L_b_ga:")
    A("buffer_load_dwordx4 v[20:23], v8, s[52:55], s14 offen sc1\nbuffer_load_dwordx4 v[24:27], v8, s[52:55], s13 offen sc1\ns_waitcnt vmcnt(0)")
    tagcheck([22, 23, 26, 27], 11)
    poll_dry("L_b_ga")
    A("""v_cmp_gt_u32 vcc, 32, v1
v_cndmask_b32 v17, v21, v20, vcc
v_cndmask_b32 v18, v25, v24, vcc
v_lshlrev_b32 v17, v15, v17
v_lshlrev_b32 v18, v15, v18
v_and_b32 v17, 0xffff0000, v17
v_and_b32 v18, 0xffff0000, v18
v_lshlrev_b32 v16, 16, v16""")
    A("s_mov_b32 s70, s98")
    def gatherN(lbl, n, so0, so1, lastv):
        def loads(base):
            for i in range(n):
                A(f"buffer_load_dwordx4 v[{base+4*i}:{base+3+4*i}], v{lastv if i == n - 1 else 9}, s[52:55], {so0 if i < 4 else so1} offen offset:{(i&3)*1024} sc1")
        def check(base, extra):
            for i in range(n):
                r = base + 4 * i
                lo, hi = (40, 41) if (i == n - 1 and lastv != 9) else (38, 39)
                A(f"s_waitcnt vmcnt({n-1-i+extra})")
                A(f"v_perm_b32 v36, v{r+1}, v{r}, s68\nv_perm_b32 v37, v{r+3}, v{r+2}, s68")
                if i: A(f"v_add_f32 v32, v{base if i == 1 else 32}, v{r}\nv_add_f32 v33, v{base+1 if i == 1 else 33}, v{r+1}")
                A(f"v_sad_u8 v28, v36, v{lo}, {'0' if i == 0 else 'v28'}")
                if i: A(f"v_add_f32 v34, v{base+2 if i == 1 else 34}, v{r+2}\nv_add_f32 v35, v{base+3 if i == 1 else 35}, v{r+3}")
                A(f"v_sad_u8 v28, v37, v{hi}, v28")
            A("v_cmp_ne_u32 vcc, 0, v28")
        if not (pp if n == 8 else ppd):
            A(f"{lbl}:"); loads(64); check(64, 0); poll_dry(lbl)
        else:
            done = A.newlabel("L_got")
            A(f"{lbl}:"); loads(64)
            A(f"s_sleep {stag}")
            A(f"{lbl}_l:"); loads(128); check(64, n)
            A(f"s_cbranch_vccz {done}")
            loads(64); check(128, n)
            poll_dry(f"{lbl}_l")
            A(f"{done}:")
    def red16(G, Xr):
        A("""v_permlane32_swap_b32 v32, v34
v_permlane32_swap_b32 v33, v35
v_add_f32 v32, v32, v34
v_add_f32 v33, v33, v35
v_permlane16_swap_b32 v32, v33
v_add_f32 v32, v32, v33
v_add_f32_dpp v32, v32, v32 row_ror:4 row_mask:0xf bank_mask:0xf
v_add_f32_dpp v32, v32, v32 row_ror:8 row_mask:0xf bank_mask:0xf
v_cvt_pk_bf16_f32 v32, v32, v32
v_and_b32 v32, 0xffff0000, v32""")
        A(f"""v_mul_f32 v32, v32, v{G}
v_cvt_pk_bf16_f32 v32, v32, v32
v_and_b32 v32, 0xffff0000, v32
v_add_f32 v32, v32, v{Xr}
v_cvt_pk_bf16_f32 v30, v32, v32""")
    stamp(7)
    gatherN("L_b_y", 8, "s72", "s75", 9)
    stamp(8)
    red16(17, 16)
    A("""v_bfi_b32 v32, v42, v30, v43
v_bfi_b32 v33, v42, v30, v43
v_permlane16_swap_b32 v32, v33
v_mov_b32 v34, v32
v_mov_b32 v35, v33
v_permlane32_swap_b32 v32, v34
v_permlane32_swap_b32 v33, v35
buffer_store_dwordx4 v[32:35], v44, s[52:55], s73 offen sc1""")
    stamp(9)
    A("v_and_b32 v16, 0xffff0000, v30")
    A("s_mov_b32 s70, s98")
    if dsleep: A(f"s_cmp_eq_u32 s98, 0\ns_cbranch_scc1 L_d_op\ns_sleep {dsleep}")
    gatherN("L_d_op", 3, "s74", "s74", 14)
    stamp(10)
    red16(18, 16)
    A("""v_mov_b32 v32, v30
v_mov_b32 v33, v30
v_permlane16_swap_b32 v32, v33
v_perm_b32 v32, v32, v33, s12
v_mov_b32 v33, v32
v_permlane32_swap_b32 v32, v33""")
    A("buffer_store_dwordx2 v[32:33], v12, s[60:63], s15 offen")
    A("s_cmp_lg_u32 s77, 0\ns_cbranch_scc1 L_fin3")
    A("buffer_store_dword v11, v10, s[52:55], 0 offen sc1")
    A("L_fin3:\ns_branch L_fin")
    A("L_service:")
    if prio: A(f"s_setprio {prio}")
    W, TT, BB = 64, 192, 32
    roles()
    A(f"""s_sub_u32 s12, s3, 4
s_lshl_b32 s13, s12, 13
v_lshlrev_b32 v13, 4, v1
v_add_u32 v7, s13, v13
v_lshlrev_b32 v8, 11, v3
v_lshl_add_u32 v8, v4, 8, v8
v_lshl_add_u32 v8, v5, 3, v8
v_add_u32 v8, s13, v8
v_mov_b32 v31, {OOB:#x}
s_mov_b32 s68, {EPS:#x}
s_mov_b32 s69, {LOG2E:#x}
s_waitcnt lgkmcnt(0)""")
    if diag: A("s_mov_b32 s80, s78")
    A("s_load_dword s11, s[42:43], 0")
    srd(52, 42, WS_END)
    if "q" in abl: A("s_cmp_eq_u32 s3, 4\ns_cbranch_scc1 L_s_bar1")
    if "u" in abl: A("s_cmp_eq_u32 s3, 7\ns_cbranch_scc1 L_s_bar1")
    A("""s_cmp_eq_u32 s3, 4
s_cbranch_scc1 L_s_q
s_cmp_eq_u32 s3, 5
s_cbranch_scc1 L_s_warm
s_cmp_eq_u32 s3, 6
s_cbranch_scc1 L_s_bar1
s_cmp_eq_u32 s76, 4
s_cbranch_scc1 L_s_bar1""")
    srd(48, 36, 512 * 6144)
    srd(60, 34, 2048)
    A(f"""s_lshr_b32 s13, s72, 2
s_and_b32 s14, s72, 3
s_lshl_b32 s65, s13, 7
s_mul_i32 s64, s14, {128*6144}
s_add_u32 s65, s65, s64
s_lshl_b32 s64, s14, 8
v_lshrrev_b32 v9, 3, v1
v_mul_u32_u24 v9, 6144, v9
v_and_b32 v11, 7, v1
v_lshl_add_u32 v9, v11, 4, v9
v_lshrrev_b32 v11, 5, v1
v_and_b32 v12, 31, v1
v_lshlrev_b32 v12, 3, v12
v_lshl_add_u32 v14, v11, 10, v12
buffer_load_dwordx2 v[16:17], v14, s[60:63], s64 offen""")
    for i in range(16):
        if i >= SMD: A(f"s_waitcnt vmcnt({SMD-1})")
        A(f"buffer_load_dwordx4 v[{TT+4*i}:{TT+4*i+3}], v9, s[48:51], s65 offen {tpol}")
        if i < 15: A(f"s_add_u32 s65, s65, {8*6144:#x}")
        if i == min(SMD, 16) - 1:
            A(f"""v_lshl_add_u32 v15, v11, 8, v12
v_add_u32 v15, {L_SC}, v15
v_lshlrev_b32 v11, 10, v3
v_lshl_add_u32 v11, v4, 7, v11
v_lshl_add_u32 v11, v5, 3, v11
v_add_u32 v11, {3*8192}, v11
v_and_b32 v28, 1, v4
v_lshlrev_b32 v12, 8, v28
v_lshl_add_u32 v12, v3, 4, v12
v_add_u32 v12, {L_SC}, v12
s_waitcnt vmcnt({i+1})""")
            unpack(20, 21, 16); unpack(22, 23, 17)
            for k in range(4): A(f"v_mul_f32 v{24+k}, s69, v{20+k}")
            for k in range(4): A(f"v_exp_f32 v{24+k}, -v{24+k}")
            for k in range(4): A(f"v_add_f32 v{24+k}, 1.0, v{24+k}")
            for k in range(4): A(f"v_rcp_f32 v{24+k}, v{24+k}")
            for k in range(4): A(f"v_mul_f32 v{20+k}, v{20+k}, v{24+k}")
            A("v_cvt_pk_bf16_f32 v16, v20, v21\nv_cvt_pk_bf16_f32 v17, v22, v23\nds_write_b64 v15, v[16:17]")
            for ks in range(4): A(f"ds_read_b128 v[{BB+4*ks}:{BB+4*ks+3}], v12 offset:{ks*64}")
    for ks in range(4):
        for i in range(4 * ks, 4 * ks + 4):
            A(f"s_waitcnt vmcnt({15 - i})")
            A(f"ds_write_b128 v7, v[{TT+4*i}:{TT+4*i+3}] offset:{(i&7)*1024}")
        for tt in range(4):
            for jh in range(2):
                d = TT + (ks * 4 + tt) * 4 + jh * 2
                A(f"ds_read_b64_tr_b16 v[{d}:{d+1}], v11 offset:{(ks&1)*4096+jh*512+tt*32}")
    for ks in range(4):
        A(f"s_waitcnt lgkmcnt({0 if ks == 3 else 12})")
        for tt in range(4): mfma32(48 + 4 * tt, TT + (ks * 4 + tt) * 4, BB + 4 * ks, ks == 0)
    A("s_add_u32 s10, s11, 0x9e3779b9")
    for tt in range(1, 4):
        A(f"v_cmp_eq_u32 vcc, {tt}, v5")
        for r in range(4): A(f"v_cndmask_b32 v{48+r}, v{48+r}, v{48+4*tt+r}, vcc")
    A(f"""v_cmp_gt_u32 vcc, 8, v2
v_mov_b32 v52, s10
v_cndmask_b32 v48, v51, v48, vcc
v_cndmask_b32 v49, v52, v49, vcc
v_cndmask_b32 v50, v52, v50, vcc
v_mov_b32 v51, s10
s_lshl_b32 s13, s72, 10
s_add_u32 s13, s13, {WS_MP}
buffer_store_dwordx4 v[48:51], v13, s[52:55], s13 offen sc1""")
    stamp(1)
    A("s_branch L_s_bar1")
    A(f"""L_s_warm:
s_getpc_b64 s[66:67]
L_pc:
s_sub_u32 s66, s66, L_pc-{KNAME}
s_subb_u32 s67, s67, 0
s_and_b32 s13, s5, {wmask}
s_mul_i32 s13, s13, {WUP*1024}
v_add_u32 v14, s13, v13""")
    for k in range(WUP):
        if k >= 4: A("s_waitcnt vmcnt(3)")
        A(f"v_min_u32 v15, L_codeend-{KNAME}-16, v14\nglobal_load_dwordx4 v[20:23], v15, s[66:67]\nv_add_u32 v14, 1024, v14")
    A("s_branch L_s_bar1")
    A("L_s_q:")
    srd(44, 22, 512 * 8192)
    srd(56, 16, 2048)
    A(f"""v_lshlrev_b32 v6, 13, v3
v_lshl_add_u32 v6, v2, 4, v6
s_lshl_b32 s64, s6, 8
s_lshl_b32 s13, s7, 19
s_add_u32 s64, s64, s13
buffer_load_dwordx4 v[24:27], v13, s[56:59], 0 offen
buffer_load_dwordx4 v[28:31], v13, s[56:59], 0 offen offset:1024""")
    for i in range(16):
        if i >= SQ: A(f"s_waitcnt vmcnt({SQ-1})")
        A(f"buffer_load_dwordx4 v[{W+4*i}:{W+4*i+3}], v6, s[44:47], s64 offen {tpol}")
        if i < 15: A("s_add_u32 s64, s64, 0x8000")
    A(f"""v_and_b32 v63, 7, v1
v_lshrrev_b32 v16, 5, v1
v_and_b32 v19, 1, v3
v_lshlrev_b32 v14, 15, v16
v_lshl_add_u32 v14, v5, 8, v14
v_lshl_add_u32 v14, v19, 6, v14
v_lshl_add_u32 v14, v4, 4, v14
v_bfe_u32 v17, v1, 3, 2
v_lshlrev_b32 v6, 10, v16
v_lshl_add_u32 v6, v17, 8, v6
v_lshl_add_u32 v6, v63, 4, v6
v_lshlrev_b32 v23, 5, v63
v_lshl_add_u32 v23, v17, 3, v23
v_lshl_add_u32 v23, v16, 2, v23
v_add_u32 v23, {L_Q}, v23
v_lshlrev_b32 v18, 3, v2
v_lshl_add_u32 v18, v16, 2, v18
v_lshl_add_u32 v11, v19, 7, v18
v_add_u32 v11, {L_HL}, v11
v_lshl_add_u32 v15, v19, 10, v18
s_lshl_b32 s13, s7, 7
s_add_u32 s13, s13, {L_H2}
v_add_u32 v15, s13, v15
v_bfe_u32 v12, v1, 3, 1
v_lshlrev_b32 v12, 7, v12
v_lshl_add_u32 v12, v3, 4, v12
v_add_u32 v12, {L_HL}, v12
s_waitcnt vmcnt(16)""")
    for b in range(2):
        for k in range(4): unpack(BB + 2 * k, BB + 2 * k + 1, 24 + 4 * b + k)
        layernorm8(BB, BB + 8, "s68")
        A(f"v_add_u32 v16, {L_H2 + 1024*b}, v13\nds_write_b128 v16, v[{BB+12}:{BB+15}]")
    A(f"ds_read_b32 v22, v15\nv_mov_b32 v31, {OOB:#x}")
    for ks in range(2):
        for i in range(8 * ks, 8 * ks + 8):
            A(f"s_waitcnt vmcnt({15 - i})")
            A(f"ds_write_b128 v7, v[{W+4*i}:{W+4*i+3}] offset:{(i&7)*1024}")
        for tt in range(8):
            for jh in range(2):
                d = W + (ks * 8 + tt) * 4 + jh * 2
                A(f"ds_read_b64_tr_b16 v[{d}:{d+1}], v8 offset:{jh*1024+tt*32}")
    A(f"""s_waitcnt lgkmcnt(0)
s_add_u32 s10, s11, 0x9e3779b9
s_lshl_b32 s13, s7, 12
s_add_u32 s13, s13, {WS_MP}
v_mov_b32 v24, s10
v_lshrrev_b32 v60, 1, v13
v_lshrrev_b32 v61, 1, v6
s_lshl_b32 s95, s6, 13
s_lshl_b32 s64, s7, 10
s_add_u32 s64, s64, s95
s_lshr_b32 s92, s64, 1
s_add_u32 s92, s92, {WS_QP8}
s_add_u32 s64, s64, {WS_QP}
s_lshl_b32 s65, s8, 7
s_add_u32 s95, s95, s65
s_lshr_b32 s93, s95, 1
s_add_u32 s93, s93, {WS_QP8}
s_add_u32 s95, s95, {WS_QP}
s_add_u32 s65, s95, 4096
s_mov_b32 s70, {TMO}""")
    unpack(26, 27, 22)
    stamp(1)
    scalar_wait("L_sp1", "s13", [c * 32768 + rq * 1024 + 780 for c in range(2) for rq in range(4)])
    A("L_q_mp:")
    for rq in range(4): A(f"buffer_load_dwordx4 v[{BB+4*rq}:{BB+4*rq+3}], v14, s[52:55], s13 offen offset:{rq*1024} {gpol}")
    for rq in range(4): A(f"buffer_load_dwordx2 v[{48+2*rq}:{49+2*rq}], v14, s[52:55], s13 offen offset:{rq*1024+128} {gpol}")
    A("s_waitcnt vmcnt(0)")
    tagcheck([BB + 3, BB + 7, BB + 11, BB + 15, 49, 51, 53, 55], 24)
    poll_tail("L_q_mp")
    stamp(2)
    def sum4():
        for r in range(3): A(f"v_add_f32 v{BB+r}, v{BB+r}, v{BB+4+r}")
        A(f"v_add_f32 v{BB+3}, v48, v50")
        for r in range(3): A(f"v_add_f32 v{BB+8+r}, v{BB+8+r}, v{BB+12+r}")
        A(f"v_add_f32 v{BB+11}, v52, v54")
        for r in range(4): A(f"v_add_f32 v{BB+r}, v{BB+r}, v{BB+8+r}")
        A(f"v_permlane32_swap_b32 v{BB}, v{BB+2}\nv_permlane32_swap_b32 v{BB+1}, v{BB+3}")
    sum4()
    A(f"v_cvt_pk_bf16_f32 v20, v{BB}, v{BB+1}\nv_cvt_pk_bf16_f32 v21, v{BB+2}, v{BB+3}")
    unpack(18, 19, 21)
    unpack(16, 17, 20)
    A("v_add_f32 v18, 1.0, v18\nv_add_f32 v19, 1.0, v19\nv_cvt_pk_bf16_f32 v21, v18, v19")
    unpack(18, 19, 21)
    A("v_mul_f32 v18, v18, v26\nv_mul_f32 v19, v19, v27\nv_cvt_pk_bf16_f32 v21, v18, v19")
    unpack(18, 19, 21)
    A("v_add_f32 v18, v18, v16\nv_add_f32 v19, v19, v17\nv_cvt_pk_bf16_f32 v21, v18, v19")
    A("ds_write_b32 v11, v21")
    A(f"ds_read_b128 v[{BB}:{BB+3}], v12\nds_read_b128 v[{BB+4}:{BB+7}], v12 offset:64")
    for ks in range(2):
        A(f"s_waitcnt lgkmcnt({1-ks})")
        for tt in range(8): mfma32(TT + 4 * tt, W + (ks * 8 + tt) * 4, BB + 4 * ks, ks == 0)
    A("v_cmp_eq_u32 s[66:67], 1, v63")
    for tt in range(1, 8):
        cur = "s[66:67]" if tt & 1 else "vcc"
        nx = "vcc" if tt & 1 else "s[66:67]"
        if tt < 7: A(f"v_cmp_eq_u32 {nx}, {tt+1}, v63")
        for r in range(4): A(f"v_cndmask_b32 v{TT+r}, v{TT+r}, v{TT+4*tt+r}, {cur}")
    A(f"""v_mov_b32 v{TT+4}, v{TT+3}
v_mov_b32 v{TT+3}, s10
v_mov_b32 v{TT+5}, s10
buffer_store_dwordx4 v[{TT}:{TT+3}], v13, s[52:55], s64 offen sc1
buffer_store_dwordx2 v[{TT+4}:{TT+5}], v60, s[52:55], s92 offen sc1
s_mov_b32 s70, {TMO}""")
    stamp(3)
    scalar_wait("L_sp2", "s95", [r * 1024 + 780 for r in range(8)])
    A("L_q_qp:")
    for m in range(4): A(f"buffer_load_dwordx4 v[{BB+4*m}:{BB+4*m+3}], v6, s[52:55], {'s95' if m < 2 else 's65'} offen offset:{(m&1)*2048} {gpol}")
    for m in range(4): A(f"buffer_load_dwordx2 v[{48+2*m}:{49+2*m}], v61, s[52:55], s93 offen offset:{m*1024} {gpol}")
    A("s_waitcnt vmcnt(0)")
    tagcheck([BB + 3, BB + 7, BB + 11, BB + 15, 49, 51, 53, 55], 24)
    poll_tail("L_q_qp")
    stamp(4)
    sum4()
    A(f"v_add_f32 v{BB}, v{BB}, v{BB+2}\nv_add_f32 v{BB+1}, v{BB+1}, v{BB+3}\nv_cvt_pk_bf16_f32 v20, v{BB}, v{BB+1}")
    A("ds_write_b32 v23, v20")
    A("L_s_bar1:")
    A("s_waitcnt lgkmcnt(0)\ns_add_u32 s10, s11, 0x9e3779b9")
    A("s_barrier\ns_barrier")
    A(f"v_lshlrev_b32 v14, 2, v1\nv_and_b32 v14, 28, v14\nv_add_u32 v14, {L_FL}, v14\nv_mov_b32 v15, s11\nds_write_b32 v14, v15")
    if "c" in abl: A("s_branch L_s_wo")
    if dry:
        A(f"""s_cmp_lg_u32 s3, 7
s_cbranch_scc1 L_nodry
s_mov_b32 s98, 0
s_mov_b32 s99, {OOB:#x}
s_mov_b64 s[44:45], s[16:17]
s_mov_b64 s[46:47], s[38:39]
s_cmp_eq_u32 s76, 4
s_cselect_b32 s3, 0, 1
v_lshlrev_b32 v28, 3, v1
v_add_u32 v28, {L_DUM}, v28
s_branch L_vend
L_dryret:
s_mov_b32 s3, 7
s_mov_b32 s12, 3
s_mov_b32 s98, {TMO*4}
s_mov_b32 s99, 0
v_mov_b32 v31, {OOB:#x}
v_lshlrev_b32 v13, 4, v1
v_lshlrev_b32 v8, 11, v3
v_lshl_add_u32 v8, v4, 8, v8
v_lshl_add_u32 v8, v5, 3, v8
v_add_u32 v8, {3*8192}, v8
s_waitcnt vmcnt(0) lgkmcnt(0)
L_nodry:""")
    else:
        A("L_dryret:")
    A(f"""s_cmp_lg_u32 s76, 4
s_cbranch_scc1 L_s_wo
s_cmp_lg_u32 s3, 6
s_cbranch_scc1 L_s_wo
v_lshlrev_b32 v14, 15, v3
v_lshl_add_u32 v14, v4, 10, v14
v_lshl_add_u32 v14, v5, 8, v14
s_and_b32 s13, s77, 28
s_lshl_b32 s13, s13, 10
s_lshr_b32 s14, s77, 5
s_lshl_b32 s14, s14, 6
s_add_u32 s13, s13, s14
s_and_b32 s14, s77, 3
s_lshl_b32 s14, s14, 4
s_add_u32 s13, s13, s14
s_add_u32 s13, s13, {WS_MP + 65536}
v_lshlrev_b32 v15, 12, v3
v_lshl_add_u32 v15, v5, 4, v15
v_cmp_eq_u32 vcc, 0, v4
v_cndmask_b32 v15, v31, v15, vcc
s_lshl_b32 s14, s77, 6
s_add_u32 s14, s14, {WS_G}
v_mov_b32 v24, s10
s_mov_b32 s70, {TMO}
L_s_g4p:
buffer_load_dwordx4 v[16:19], v14, s[52:55], s13 offen {gpol}
buffer_load_dwordx2 v[20:21], v14, s[52:55], s13 offen offset:128 {gpol}
s_waitcnt vmcnt(0)""")
    tagcheck([19, 21], 24)
    poll_tail("L_s_g4p", sleep=8)
    for c in ("row_ror:4", "row_ror:8"):
        for r in (16, 17, 18, 20): A(f"v_add_f32_dpp v{r}, v{r}, v{r} {c} row_mask:0xf bank_mask:0xf")
    A("""v_cvt_pk_bf16_f32 v16, v16, v17
v_cvt_pk_bf16_f32 v17, v18, v20
v_mov_b32 v18, s10
v_mov_b32 v19, s10
buffer_store_dwordx4 v[16:19], v15, s[52:55], s14 offen sc1""")
    if x1pre:
        A(f"""v_cmp_gt_u32 vcc, 8, v1
v_cndmask_b32 v15, v31, v13, vcc
v_mov_b32 v20, s11
v_mov_b32 v21, s11
v_mov_b32 v22, s11
v_mov_b32 v23, s11
s_lshl_b32 s13, s77, 7
s_add_u32 s13, s13, {WS_X1}
buffer_store_dwordx4 v[20:23], v15, s[52:55], s13 offen sc1""")
    A("L_s_wo:")
    A("s_load_dwordx2 s[24:25], s[0:1], 32")
    A(f"""v_lshlrev_b32 v14, 10, v3
v_lshl_add_u32 v14, v2, 4, v14
s_lshl_b32 s64, s6, 17
s_lshl_b32 s13, s12, 8
s_add_u32 s64, s64, s13
v_lshlrev_b32 v30, 4, v3
v_cmp_eq_u32 vcc, 0, v2
v_cndmask_b32 v30, v31, v30, vcc
s_lshl_b32 s74, s8, 18
s_lshl_b32 s13, s12, 16
s_add_u32 s74, s74, s13
s_lshl_b32 s13, s6, 2
s_add_u32 s13, s13, s9
s_lshl_b32 s13, s13, 6
s_add_u32 s74, s74, s13
s_add_u32 s74, s74, {WS_Y}
s_waitcnt vmcnt(0) lgkmcnt(0)""")
    if "w" in abl: A("s_branch L_s_now")
    srd(44, 24, 4096 * 1024)
    def wo_stage(i):
        A(f"ds_write_b128 v7, v[{W+4*i}:{W+4*i+3}] offset:{(i&7)*1024}")
        if i & 7 == 7:
            ks = i >> 3
            for tt in range(8):
                for jh in range(2):
                    d = W + (ks * 8 + tt) * 4 + jh * 2
                    A(f"ds_read_b64_tr_b16 v[{d}:{d+1}], v8 offset:{jh*1024+tt*32}")
    for i in range(32):
        if i >= SD:
            A(f"s_waitcnt vmcnt({SD-1})")
        A(f"buffer_load_dwordx4 v[{W+4*i}:{W+4*i+3}], v14, s[44:47], s64 offen {wpol}")
        if i < 31: A("s_addk_i32 s64, 0x1000")
        if i >= SD: wo_stage(i - SD)
    for i in range(max(0, 32 - SD), 32):
        A(f"s_waitcnt vmcnt({31 - i})")
        wo_stage(i)
    A("L_s_now:")
    stamp(5)
    if "f" in abl: A("s_branch L_s_noffn")
    W2 = 208
    A("s_cmp_lg_u32 s76, 1\ns_cbranch_scc1 L_s_noffn")
    A("s_load_dwordx4 s[28:31], s[0:1], 48")
    srd(44, 32, 1376 * 1024)
    A("s_lshl_b32 s64, s77, 15\ns_lshl_b32 s13, s12, 8\ns_add_u32 s64, s64, s13")
    for i in range(8):
        if i >= SF: A(f"s_waitcnt vmcnt({SF-1})")
        A(f"buffer_load_dwordx4 v[{W2+4*i}:{W2+4*i+3}], v14, s[44:47], s64 offen {tpol}\ns_addk_i32 s64, 0x1000")
    A(f"""v_lshrrev_b32 v9, 2, v1
v_mul_u32_u24 v9, 2752, v9
v_lshl_add_u32 v9, v5, 4, v9
s_and_b32 s13, s12, 1
s_mul_i32 s64, s13, {256*2752}
s_lshl_b32 s14, s77, 6
s_add_u32 s64, s64, s14
s_lshl_b32 s65, s12, 14
s_add_u32 s65, s65, {L_EXT}
s_waitcnt lgkmcnt(0)
s_cmp_lt_u32 s12, 2
s_cselect_b32 s44, s28, s30
s_cselect_b32 s45, s29, s31
s_mov_b32 s46, {512*2752:#x}""")
    for i in range(8):
        A(f"s_waitcnt vmcnt({7 - i})\nds_write_b128 v7, v[{W2+4*i}:{W2+4*i+3}] offset:{i*1024}")
    for tt in range(8):
        for jh in range(2):
            A(f"ds_read_b64_tr_b16 v[{W2+4*tt+2*jh}:{W2+4*tt+2*jh+1}], v8 offset:{jh*1024+tt*32}")
    for i in range(16):
        if i >= SF: A(f"s_waitcnt vmcnt({SF-1})")
        A(f"s_mov_b32 m0, s65\nbuffer_load_dwordx4 v9, s[44:47], s64 offen {fpol} lds\ns_add_u32 s64, s64, {16*2752:#x}\ns_addk_i32 s65, 0x400")
    A("L_s_noffn:")
    A(f"""v_mul_u32_u24 v15, {OSTR}, v5
v_lshl_add_u32 v15, v3, 4, v15
v_add_u32 v15, {L_O}, v15
v_and_b32 v10, 1, v1
v_lshlrev_b32 v29, 4, v3
s_mov_b32 s13, {32*3072}
v_mul_lo_u32 v11, v10, s13
v_add_u32 v29, v29, v11
v_cmp_gt_u32 vcc, 2, v2
v_cndmask_b32 v29, v31, v29, vcc
s_mul_i32 s75, s12, {8*3072}
s_lshl_b32 s13, s77, 6
s_add_u32 s75, s75, s13
s_add_u32 s75, s75, {WS_OP}
v_lshlrev_b32 v28, 6, v10
v_lshl_add_u32 v28, v3, 4, v28
v_add_u32 v28, {L_HH}, v28
v_mov_b32 v20, {L_FL}
v_mov_b32 v21, s10
v_mov_b32 v22, 0xffffff00
s_lshr_b32 s92, s10, 8
s_lshr_b32 s93, s10, 16
s_lshr_b32 s94, s10, 24
s_waitcnt vmcnt(0) lgkmcnt(0)""")
    if dry:
        A(f"""s_mov_b32 s98, 0
s_mov_b32 s70, 0
s_mov_b32 s64, s74
s_mov_b32 s65, s75
v_mov_b32 v10, v29
v_mov_b32 v11, v30
v_mov_b32 v29, v31
v_mov_b32 v30, v31
s_branch L_stepA
L_dryret2:
s_mov_b32 s74, s64
s_mov_b32 s75, s65
v_mov_b32 v29, v10
v_mov_b32 v30, v11
s_waitcnt vmcnt(0) lgkmcnt(0)""")
    A(f"s_mov_b32 s98, {TMO*4}\ns_mov_b32 s70, {TMO*4}")
    stamp(6)
    A("s_barrier\nL_stepA:")
    stamp(7)
    if "t" in abl: A("s_branch L_fin2")
    OB, DY = 192, 32
    TAGB = ["s10", "s92", "s93", "s94"]
    for ks in range(4): A(f"ds_read_b128 v[{OB+4*ks}:{OB+4*ks+3}], v15 offset:{ks*64}")
    def ypost(tt):
        D = DY + 4 * tt
        ops = [f"v_add_f32_dpp v{D+r}, v{D+r}, v{D+r} quad_perm:[1,0,3,2] row_mask:0xf bank_mask:0xf" for r in range(4)]
        ops += [f"v_add_f32_dpp v{D+r}, v{D+r}, v{D+r} quad_perm:[2,3,0,1] row_mask:0xf bank_mask:0xf" for r in range(4)]
        ops += [f"v_bfi_b32 v{D+r}, v22, v{D+r}, {TAGB[r]}" for r in range(4)]
        ops += [f"buffer_store_dwordx4 v[{D}:{D+3}], v30, s[52:55], s74 offen sc1" + ("\ns_addk_i32 s74, 0x2000" if tt < 7 else "")]
        return ops
    for tt in range(8):
        D = DY + 4 * tt
        for ks in range(4):
            if tt == 0: A(f"s_waitcnt lgkmcnt({3-ks})")
            mfma32(D, W + (ks * 8 + tt) * 4, OB + 4 * ks, ks == 0)
            if tt >= 2:
                po = ypost(tt - 2)
                for o in po[3 * ks: 3 * ks + 3]: A(o)
                if ks == 3: A(po[12])
    for tt in (6, 7):
        for o in ypost(tt): A(o)
    stamp(8)
    A("s_cmp_lg_u32 s76, 1\ns_cbranch_scc1 L_fin2")
    A("""L_f2:
ds_read_b128 v[24:27], v20 offset:16
ds_read_b128 v[16:19], v28
s_waitcnt lgkmcnt(0)""")
    tagcheck([24, 25, 26, 27], 21)
    poll_dry("L_f2")
    stamp(9)
    def opost(tt):
        D = DY + 4 * tt
        for r in range(4): A(f"v_bfi_b32 v{D+r}, v22, v{D+r}, {TAGB[r]}")
        A(f"buffer_store_dwordx4 v[{D}:{D+3}], v29, s[52:55], s75 offen sc1\ns_addk_i32 s75, 0xc00")
    for tt in range(8):
        mfma32(DY + 4 * tt, W2 + 4 * tt, 16, True)
        if tt >= 2: opost(tt - 2)
    opost(6); opost(7)
    stamp(10)
    A("L_fin2:")
    if dry: A("s_cmp_eq_u32 s98, 0\ns_cbranch_scc1 L_dryret2")
    finish()
    for st in stubs: A(st)
    regs = [16, 20, 24, 28, 32, 36, 56, 60]
    A(f"""L_mlx:
s_cmp_eq_u32 s12, 0
s_cbranch_scc1 L_ml0
s_sub_u32 s14, s12, 1
s_lshl_b32 s14, s14, 7
s_add_u32 s94, s96, s14
s_addc_u32 s95, s97, 0
s_branch L_fchk
L_fpoll:
s_load_dwordx16 s[16:31], s[94:95], 0 glc
s_load_dwordx8 s[32:39], s[94:95], 64 glc
s_load_dwordx8 s[56:63], s[94:95], 96 glc
L_fchk:
s_waitcnt lgkmcnt(0)
s_mov_b32 s15, 0""")
    for g in regs:
        A(f"s_xor_b32 s14, s{g+1}, s10\ns_or_b32 s15, s15, s14\ns_xor_b32 s14, s{g+3}, s10\ns_or_b32 s15, s15, s14")
    A("s_sub_u32 s70, s70, 1\ns_cbranch_scc1 L_bail\ns_cmp_lg_u32 s15, 0\ns_cbranch_scc1 L_fpoll")
    A("v_mov_b32 v29, v30")
    for g in regs: A(f"v_max_f32 v30, s{g}, v30")
    A("v_sub_f32 v29, v29, v30")
    for k, g in enumerate(regs): A(f"v_sub_f32 v{16+k}, s{g}, v30")
    A("v_mul_f32 v29, s13, v29")
    for k in range(8): A(f"v_mul_f32 v{16+k}, s13, v{16+k}")
    A("v_exp_f32 v29, v29")
    for k in range(8): A(f"v_exp_f32 v{16+k}, v{16+k}")
    A("v_mul_f32 v31, v31, v29")
    for k, g in enumerate(regs): A(f"v_fmac_f32 v31, s{g+2}, v{16+k}")
    A("s_cmp_eq_u32 s12, 2\ns_cbranch_scc1 L_ml2")
    ml_loads(1)
    A("s_branch L_vloop\nL_ml0:")
    ml_loads(0)
    A("""s_branch L_vloop
L_ml2:
v_sub_f32 v30, s73, v30
v_rcp_f32 v31, v31
v_mul_f32 v30, s13, v30
v_exp_f32 v30, v30
s_nop 0
v_mul_f32 v30, v30, v31
s_branch L_vloop""")

    if diag:
        A("L_dump:")
        A("s_memrealtime s[78:79]\ns_waitcnt lgkmcnt(0)\ns_mov_b32 s91, s78")
        A("v_mov_b32 v8, 0")
        for i in range(12): A(f"v_writelane_b32 v8, s{80+i}, {i}")
        if dbg:
            A("""s_cmp_ge_u32 s3, 4
s_cbranch_scc1 L_bail
s_load_dwordx2 s[40:41], s[0:1], 96
s_not_b32 s12, s80
s_not_b32 s13, s85
s_cmp_eq_u32 s76, 4
s_cselect_b32 s14, s88, 0
s_cselect_b32 s15, s90, 0
v_mov_b32 v8, 0
v_writelane_b32 v8, s12, 0
v_writelane_b32 v8, s80, 1
v_writelane_b32 v8, s81, 2
v_writelane_b32 v8, s82, 3
v_writelane_b32 v8, s83, 4
v_writelane_b32 v8, s13, 5
v_writelane_b32 v8, s85, 6
v_writelane_b32 v8, s14, 7
v_writelane_b32 v8, s15, 8
v_writelane_b32 v8, s91, 9
s_waitcnt lgkmcnt(0)""")
            srd(56, 40, 40)
            A("v_lshlrev_b32 v9, 2, v1\nbuffer_atomic_umax v8, v9, s[56:59], 0 offen sc1")
        else:
            A(f"""s_lshl_b32 s12, s2, 3
s_add_u32 s12, s12, s3
s_lshl_b32 s12, s12, 8
s_add_u32 s12, s12, {WS_STAMP}
s_mov_b32 s54, 0x300000
v_lshlrev_b32 v9, 2, v1
buffer_store_dword v8, v9, s[52:55], s12 offen""")
    A("L_bail:\ns_endpgm")
    A.raw("L_codeend:")
    A.raw(f""".section .rodata,"a"
.p2align 6
.amdhsa_kernel {KNAME}
  .amdhsa_next_free_vgpr 256
  .amdhsa_next_free_sgpr 102
  .amdhsa_accum_offset 256
  .amdhsa_group_segment_fixed_size 0
  .amdhsa_kernarg_size 112
  .amdhsa_user_sgpr_count 2
  .amdhsa_user_sgpr_kernarg_segment_ptr 1
  .amdhsa_system_sgpr_workgroup_id_x 1
  .amdhsa_float_denorm_mode_32 3
.end_amdhsa_kernel""")
    return A.text()

if __name__ == "__main__":
    out = sys.argv[1]
    kw = json.loads(sys.argv[2]) if len(sys.argv) > 2 else {}
    open(out, "w").write(gen(**kw))
```

```python
import sys, json
sys.path.insert(0, "dev")
from asmlib import Asm

KNAME = "adaLN_cond__mha_block_cached__glu_gated_swiglu__decode_kernel"

WS_G, WS_X1, WS_ML, WS_QP, WS_QP8, WS_Y, WS_OP, WS_MP = 0x1000, 0x6000, 0x8000, 0x10000, 0x50000, 0x70000, 0xf0000, 0x150000
WS_X1 = 0x180000
WS_END = 0x188000
WS_STAMP = 0x200000
OSTR = 272
LOG2E = 0x3fb8aa3b
SCALE = 0x3db504f3
EPS = 0x3727c5ac
OOB = 0x7ff00000
TMO = 1 << 18

def gen(R=48, X=28, CAP0=5, CAP=5, diag=False, NB=(128, 128, 128, 128), NBF=(120, 132, 128, 132), SD=3, SMD=8, SQ=16, FP=60, shr=3,
        dsleep=0, wpol="", fpol="", gpol="sc1", tpol="nt", kvpol="nt", prio=3, SF=3, abl="", bsleep=0, csleep=0, cpol="sc1", dbg=0, WUP=1, CAP2=None, SW=64, fastc=1, f2sleep=0, dry=0, x1pre=0, pp=1, stag=6, ppx=0, ppd=0, xrep=1, xsleep=0, wmask=31, MLI=3, vpol="nt", CAPV=None, CAPE=6):
    A = Asm()
    NBF = NBF or NB
    assert sum(NB) == 512 and sum(NBF) == 512
    VARS = sorted({(n - w + 3) // 4 for n in list(NB) + list(NBF) for w in range(4)})
    NS = (4 * max(VARS) + 15) // 16
    L_EXT = 32768
    SM = L_EXT + 4096 * X
    SM = max(SM, L_EXT + 65536)
    L_HL, L_SC, L_Q, L_HH, L_FL, L_O, L_DUM, L_H2 = SM, SM + 256, SM + 768, SM + 1024, SM + 1152, SM + 1184, SM + 2272, SM + 3296
    LDS_BYTES = L_H2 + 2048
    assert LDS_BYTES <= 163840

    def stamp(idx):
        if not diag: return
        A("s_memrealtime s[78:79]\ns_waitcnt lgkmcnt(0)")
        A(f"s_mov_b32 s{80+idx}, s78")
    def srd(d, base, nrec, off_lo=None):
        if off_lo is None:
            A(f"s_mov_b32 s{d}, s{base}\ns_mov_b32 s{d+1}, s{base+1}")
        else:
            A(f"s_add_u32 s{d}, s{base}, {off_lo}\ns_addc_u32 s{d+1}, s{base+1}, 0")
        A(f"s_mov_b32 s{d+2}, {nrec if isinstance(nrec, str) else hex(nrec)}\ns_mov_b32 s{d+3}, 0x20000")
    def finish():
        A("s_branch L_dump" if diag else "s_endpgm")
    def poll_tail(lbl, cnt="s70", sleep=0):
        A(f"s_sub_u32 {cnt}, {cnt}, 1\ns_cbranch_scc1 L_bail")
        if sleep:
            ok = A.newlabel("L_ok")
            A(f"s_cbranch_vccz {ok}\ns_sleep {sleep}\ns_branch {lbl}\n{ok}:")
        else:
            A(f"s_cbranch_vccnz {lbl}")
    stubs = []
    def poll_dry(lbl):
        out = A.newlabel("L_out"); to = A.newlabel("L_to")
        A(f"s_sub_u32 s70, s70, 1\ns_cbranch_scc1 {to}\ns_cbranch_vccnz {lbl}\n{out}:")
        stubs.append(f"{to}:\ns_cmp_eq_u32 s98, 0\ns_cbranch_scc1 {out}\ns_endpgm")
    def unpack(lo, hi, src):
        A(f"v_lshlrev_b32 v{lo}, 16, v{src}\nv_and_b32 v{hi}, 0xffff0000, v{src}")
    def allreduce(op, regs):
        for c in ("row_ror:8", "row_ror:4", "row_ror:2", "row_ror:1"):
            for r in regs:
                A(f"{op}_dpp v{r}, v{r}, v{r} {c} row_mask:0xf bank_mask:0xf")
        for r in regs:
            A(f"{op}_dpp v{r}, v{r}, v{r} row_bcast:15 row_mask:0xa bank_mask:0xf")
        for r in regs:
            A(f"{op}_dpp v{r}, v{r}, v{r} row_bcast:31 row_mask:0xc bank_mask:0xf")
    def mfma32(D, a, b, first):
        A(f"v_mfma_f32_16x16x32_bf16 v[{D}:{D+3}], v[{a}:{a+3}], v[{b}:{b+3}], " + ("0" if first else f"v[{D}:{D+3}]"))
    def tagcheck(regs, tagv):
        for i, rr in enumerate(regs):
            if i == 0: A(f"v_cmp_ne_u32 vcc, v{tagv}, v{rr}")
            else: A(f"v_cmp_ne_u32 s[66:67], v{tagv}, v{rr}\ns_or_b64 vcc, vcc, s[66:67]")
    def scalar_wait(lbl, soff, offs):
        A(f"s_add_u32 s96, s42, {soff}\ns_addc_u32 s97, s43, 0\ns_mov_b32 s71, 64")
        A(f"{lbl}:")
        for i, o in enumerate(offs): A(f"s_load_dword s{16+i}, s[96:97], {o} glc")
        A("s_waitcnt lgkmcnt(0)")
        for i in range(len(offs)): A(f"s_xor_b32 s{16+i}, s{16+i}, s10")
        for i in range(1, len(offs)): A(f"s_or_b32 s16, s16, s{16+i}")
        A(f"s_sub_u32 s71, s71, 1\ns_cbranch_scc1 {lbl}x\ns_cmp_lg_u32 s16, 0\ns_cbranch_scc1 {lbl}\n{lbl}x:")
    def roles():
        l = A.newlabel("L_role")
        A(f"""s_lshr_b32 s12, s2, 4
s_lshl_b32 s77, s4, 3
s_and_b32 s13, s12, 7
s_add_u32 s77, s77, s13
s_mov_b32 s72, s77
s_lshr_b32 s76, s12, 3
s_lshl_b32 s76, s76, 2
s_cmp_ge_u32 s9, 2
s_cbranch_scc1 {l}
s_lshl_b32 s72, s4, 4
s_add_u32 s72, s72, s12
s_add_u32 s72, s72, 64
s_lshr_b32 s77, s4, 1
s_mul_i32 s77, s77, 11
s_add_u32 s77, s77, s12
s_cmp_lt_u32 s77, 43
s_cselect_b32 s76, 1, 0
s_cmp_lt_u32 s12, 11
s_cselect_b32 s76, s76, 0
s_cmp_eq_u32 s9, 0
s_cselect_b32 s76, s76, 0
{l}:""")
    def layernorm8(X_, T, eps_s):
        X = X_
        A(f"""v_add_f32 v{T}, v{X}, v{X+1}
v_add_f32 v{T+1}, v{X+2}, v{X+3}
v_add_f32 v{T+2}, v{X+4}, v{X+5}
v_add_f32 v{T+3}, v{X+6}, v{X+7}
v_add_f32 v{T}, v{T}, v{T+1}
v_add_f32 v{T+2}, v{T+2}, v{T+3}
v_add_f32 v{T}, v{T}, v{T+2}""")
        allreduce("v_add_f32", [T])
        A(f"v_readlane_b32 s71, v{T}, 63")
        A(f"v_mov_b32 v{T+1}, 0x3b000000\nv_mul_f32 v{T}, s71, v{T+1}")
        A(f"v_cvt_pk_bf16_f32 v{T+2}, v{T}, v{T}")
        for k in range(8): A(f"v_sub_f32 v{T+4+k}, v{X+k}, v{T}")
        A(f"v_and_b32 v{T+2}, 0xffff0000, v{T+2}")
        A(f"v_mul_f32 v{T+3}, v{T+4}, v{T+4}\nv_mul_f32 v{T}, v{T+5}, v{T+5}")
        for k in range(2, 8, 2):
            A(f"v_fmac_f32 v{T+3}, v{T+4+k}, v{T+4+k}\nv_fmac_f32 v{T}, v{T+5+k}, v{T+5+k}")
        A(f"v_add_f32 v{T+3}, v{T+3}, v{T}")
        steps = ["row_ror:8 row_mask:0xf", "row_ror:4 row_mask:0xf", "row_ror:2 row_mask:0xf", "row_ror:1 row_mask:0xf", "row_bcast:15 row_mask:0xa", "row_bcast:31 row_mask:0xc"]
        fill = [f"v_sub_f32 v{X+k}, v{X+k}, v{T+2}" for k in range(8)] + [f"v_cvt_pk_bf16_f32 v{T+4+k}, v{X+2*k}, v{X+2*k+1}" for k in range(4)]
        for si, st in enumerate(steps):
            A(fill[2 * si]); A(fill[2 * si + 1])
            A(f"v_add_f32_dpp v{T+3}, v{T+3}, v{T+3} {st} bank_mask:0xf")
        unpack(X, X + 1, T + 4)
        A(f"v_readlane_b32 s71, v{T+3}, 63")
        unpack(X + 2, X + 3, T + 5)
        A(f"v_mul_f32 v{T}, s71, v{T+1}")
        unpack(X + 4, X + 5, T + 6)
        A(f"v_cvt_pk_bf16_f32 v{T}, v{T}, v{T}")
        unpack(X + 6, X + 7, T + 7)
        A(f"v_and_b32 v{T}, 0xffff0000, v{T}")
        A(f"v_add_f32 v{T}, {eps_s}, v{T}")
        A(f"v_cvt_pk_bf16_f32 v{T}, v{T}, v{T}\nv_and_b32 v{T}, 0xffff0000, v{T}")
        A(f"v_sqrt_f32 v{T}, v{T}")
        A(f"v_cvt_pk_bf16_f32 v{T}, v{T}, v{T}\nv_and_b32 v{T}, 0xffff0000, v{T}")
        A(f"v_rcp_f32 v{T}, v{T}")
        for k in range(8): A(f"v_mul_f32 v{X+k}, v{X+k}, v{T}")
        for k in range(4): A(f"v_cvt_pk_bf16_f32 v{T+4+k}, v{X+2*k}, v{X+2*k+1}")
        for k in range(4): unpack(X + 2 * k, X + 2 * k + 1, T + 4 + k)

    hdr = open("adaLN_cond__mha_block_cached__glu_gated_swiglu__decode.s.ref").read().split("\n")
    for l in hdr:
        if l.startswith("; @launch"): break
        A.raw(l)
    A.raw(f"; @launch grid=(256,1,1) block=(512,1,1) lds={LDS_BYTES}")
    A.raw('.amdgcn_target "amdgcn-amd-amdhsa--gfx950"\n.text')
    A.raw("""; One persistent launch, 256 workgroups x 8 waves (one workgroup per CU).
;  (word 0 of d_ws + constant), so stale contents are never taken for data.""")
    A.raw(f".globl {KNAME}\n.p2align 8\n.type {KNAME},@function\n{KNAME}:")
    A("s_cmp_ge_u32 s2, 256\ns_cbranch_scc1 L_bail")
    A("s_load_dwordx16 s[16:31], s[0:1], 0\ns_load_dwordx8 s[32:39], s[0:1], 64\ns_load_dwordx4 s[40:43], s[0:1], 96")
    if diag:
        for i in range(12): A(f"s_mov_b32 s{80+i}, 0")
        A("s_memrealtime s[78:79]")
    A(f"""v_and_b32 v1, 63, v0
v_lshrrev_b32 v2, 6, v0
v_readfirstlane_b32 s3, v2
s_mov_b32 s98, {TMO*4}
s_mov_b32 s99, 0
s_and_b32 s4, s2, 7
s_lshr_b32 s5, s2, 3
s_lshr_b32 s8, s2, 7
s_lshr_b32 s6, s2, 4
s_and_b32 s6, s6, 7
s_lshl_b32 s6, s6, 2
s_bfe_u32 s7, s2, 0x20001
s_add_u32 s6, s6, s7
s_and_b32 s9, s5, 1
s_lshl_b32 s9, s9, 1
s_and_b32 s7, s2, 1
s_add_u32 s9, s9, s7
s_lshl_b32 s7, s8, 2
s_add_u32 s7, s7, s9
v_and_b32 v2, 15, v1
v_lshrrev_b32 v3, 4, v1
v_bfe_u32 v4, v1, 2, 2
v_and_b32 v5, 3, v1
s_cmp_ge_u32 s3, 4
s_cbranch_scc1 L_service""")
    RING = 256 - 4 * R
    QOP, MSK, DB, OA, SR = 8, 24, 28, 36, 40
    assert RING >= SR + NS
    VK, VV = 6, 7
    base = [0, NB[0], NB[0] + NB[1], NB[0] + NB[1] + NB[2]]
    basef = [0, NBF[0], NBF[0] + NBF[1], NBF[0] + NBF[1] + NBF[2]]
    A(f"""s_lshl_b32 s12, s3, 12
v_lshlrev_b32 v{VK}, 8, v4
v_lshl_add_u32 v{VK}, v3, 6, v{VK}
v_lshl_add_u32 v{VK}, v5, 4, v{VK}
v_add_u32 v{VK}, s12, v{VK}
v_lshlrev_b32 v{VV}, 4, v1
v_add_u32 v{VV}, s12, v{VV}
s_lshl_b32 s13, s2, 19
s_and_b32 s13, s13, 0xff800000
s_lshl_b32 s14, s6, 21
s_and_b32 s14, s14, 0x600000
s_add_u32 s13, s13, s14
s_lshr_b32 s12, s4, 1
s_mul_i32 s12, s12, 11
s_lshr_b32 s15, s2, 4
s_add_u32 s12, s12, s15
s_max_u32 s15, s15, 10
s_add_u32 s12, s12, s15
s_mov_b32 s14, {base[0] | base[1] << 16:#x}
s_mov_b32 s15, {base[2] | base[3] << 16:#x}
s_mov_b32 s75, {NB[0] | NB[1] << 8 | NB[2] << 16 | NB[3] << 24:#x}
s_lshr_b32 s64, s2, 4
s_cmp_lt_u32 s64, 11
s_cselect_b32 s12, s12, 99
s_cmp_lt_u32 s12, 53
s_cselect_b32 s14, {basef[0] | basef[1] << 16:#x}, s14
s_cselect_b32 s15, {basef[2] | basef[3] << 16:#x}, s15
s_cselect_b32 s75, {NBF[0] | NBF[1] << 8 | NBF[2] << 16 | NBF[3] << 24:#x}, s75
s_lshl_b32 s12, s9, 4
s_lshr_b64 s[14:15], s[14:15], s12
s_and_b32 s14, s14, 0xffff
s_lshl_b32 s14, s14, 12
s_add_u32 s13, s13, s14
s_lshl_b32 s12, s9, 3
s_lshr_b32 s75, s75, s12
s_and_b32 s75, s75, 0xff
s_lshl_b32 s74, s75, 12
s_mov_b32 s64, 0
s_mov_b32 s65, 0
s_waitcnt lgkmcnt(0)""")
    if diag: A("s_mov_b32 s80, s78")
    srd(44, 18, "s74", "s13")
    srd(48, 20, "s74", "s13")
    import copy
    class St: pass
    S = St()
    S.issued = []; S.known = 0; S.slot_of = {}; S.free = [RING + 4 * k for k in range(R)][::-1]
    VS = [208 + 4 * k for k in range(8)]
    CAPV = CAPV or CAP
    LAG = max(CAP, CAPV, CAPE or 0)
    S.n = R + X; S.l = R; S.done = None; S.NP = 4 * min(VARS)
    def kv_load(i, lds=False):
        NP = S.NP
        if i >= NP:
            S.slot_of[i] = VS[(i - NP) & 7]; S.free.remove(S.slot_of[i])
        elif not lds:
            S.slot_of[i] = [x for x in S.free if x not in VS or i < 4 * min(VARS) - 20][-1]; S.free.remove(S.slot_of[i])
        slot = S.slot_of.get(i)
        j = i % NP
        va, sr, so = (VK, 44, "s64") if i < NP else (VV, 48, "s65")
        if lds:
            if j & 3 == 0: A(f"s_add_u32 m0, s73, {(i - R) * 1024}")
            A(f"buffer_load_dwordx4 v{va}, s[{sr}:{sr+3}], {so} offen offset:{(j&3)*1024} {kvpol} lds")
        else:
            A(f"buffer_load_dwordx4 v[{slot}:{slot+3}], v{va}, s[{sr}:{sr+3}], {so} offen offset:{(j&3)*1024} {kvpol if i < NP else vpol}")
        if j & 3 == 3: A(f"s_addk_i32 {so}, 0x4000")
        S.issued.append(i)
    def wait_out(n):
        if len(S.issued) - S.known > n:
            A(f"s_waitcnt vmcnt({n})")
            S.known = len(S.issued) - n
    def wait_piece(p):
        wait_out(len(S.issued) - 1 - S.issued.index(p))
    assert R % 4 == 0 and X % 4 == 0
    for i in range(CAP0): kv_load(i)
    A("s_load_dword s11, s[42:43], 0")
    A(f"""v_and_b32 v28, 1, v1
v_cmp_eq_u32 vcc, 1, v28
v_mov_b32 v29, 0xffff
v_mov_b32 v30, 0xffff0000
v_cndmask_b32 v29, v29, v30, vcc
v_lshrrev_b32 v28, 1, v2""")
    for r in range(4):
        A(f"v_cmp_eq_u32 vcc, {r}, v28\nv_cndmask_b32 v{MSK+r}, 0, v29, vcc")
    srd(52, 42, WS_END)
    roles()
    A(f"""v_lshrrev_b32 v37, 2, v2
v_lshlrev_b32 v36, 6, v3
v_lshl_add_u32 v36, v37, 4, v36
v_add_u32 v36, {L_Q}, v36
s_mul_i32 s73, s3, {X*1024}
s_add_u32 s73, s73, {L_EXT}
v_lshlrev_b32 v38, 4, v1
v_add_u32 v38, s73, v38
s_sub_u32 s75, s75, s3
s_add_u32 s75, s75, 3
s_lshr_b32 s75, s75, 2
v_mov_b32 v{SR+NS-1}, 0xff800000
v_mov_b32 v{SR+NS-2}, 0xff800000""")
    assert 4 * min(VARS) > 16 * (NS - 2)
    for i in range(CAP0, R):
        wait_out(CAP0 - 1)
        kv_load(i)
    if X:
        A(f"s_mov_b32 m0, s73\ns_mov_b32 s12, {X//4 - 1}\nL_dma:")
        for j in range(4):
            A(f"s_waitcnt vmcnt({CAP0-1})\nbuffer_load_dwordx4 v{VK}, s[44:47], s64 offen offset:{j*1024} {kvpol} lds")
        A("s_addk_i32 s64, 0x4000\ns_add_u32 m0, m0, 0x1000\ns_sub_u32 s12, s12, 1\ns_cbranch_scc0 L_dma")
        S.issued.extend(range(R, R + X)); S.known = len(S.issued) - CAP0
    A("s_waitcnt lgkmcnt(0)")
    A("s_add_u32 s10, s11, 0x9e3779b9")
    stamp(1)
    A("s_barrier")
    stamp(2)
    A(f"ds_read_b128 v[{DB}:{DB+3}], v36")
    A("s_waitcnt lgkmcnt(0)")
    for t in range(4):
        A(f"v_cmp_eq_u32 vcc, {t}, v5")
        for r in range(4): A(f"v_cndmask_b32 v{QOP+4*t+r}, 0, v{DB+r}, vcc")
    def post_ops(G):
        u = G & 3; Sg = SR + (G >> 2); D = DB + 4 * (G & 1)
        ops = [f"v_mov_b32_dpp v{Sg}, v{D+u} quad_perm:[0,1,2,3] row_mask:0xf bank_mask:{1<<u:#x}"]
        for b in range(4):
            if b == u: continue
            ops.append(f"v_add_f32_dpp v{Sg}, v{D+b}, v{Sg} row_ror:{4 * ((u - b) % 4)} row_mask:0xf bank_mask:{1<<u:#x}")
        return ops
    def cap(c):
        return CAP2 if (CAP2 and c >= S.NP + SW) else CAP
    def prefill(c):
        while S.n < 2 * S.NP and S.n - c <= LAG and S.free:
            wait_out(cap(c) - 1)
            kv_load(S.n)
            S.n += 1
            S.done = c
    def refill(c):
        S.free.append(S.slot_of[c])
        if S.done == c: return
        issued_now = False
        if S.n < 2 * S.NP and (S.n - c <= LAG or c % shr == shr - 1):
            wait_out(CAP - 1)
            kv_load(S.n)
            S.n += 1
            issued_now = True
        if S.l < R + X and len(S.free) >= 2 and (not issued_now or shr < 3):
            p = S.l; slot = S.slot_of[p] = S.free.pop(0)
            assert True
            wait_piece(p)
            A(f"ds_read_b128 v[{slot}:{slot+3}], v38 offset:{(p-R)*1024}")
            S.l = p + 1
    def k_step(i):
        slot = S.slot_of[i]
        G = i >> 2; t = i & 3; D = DB + 4 * (G & 1)
        if i == R: A("s_waitcnt lgkmcnt(0)\ns_barrier"); assert S.l == R + X
        wait_piece(i)
        prefill(i)
        mfma32(D, slot, QOP + 4 * t, t == 0)
        po = post_ops(G - 1) if (G > 0 and t >= 2) else None
        if po: A(po[2 * (t - 2)])
        refill(i)
        if po: A(po[2 * (t - 2) + 1])
    ic = 0
    while S.n < S.NP - 1:
        k_step(ic); ic += 1
    assert ic > R
    for v in VARS[1:]:
        A(f"s_cmp_eq_u32 s75, {v}\ns_cbranch_scc1 L_var{v}")
    snap = copy.deepcopy(S.__dict__); hist = list(A.hist)
    T0 = 8; AB = 8
    def sel(i):
        P = SR + (i >> 4); c = i & 15; a = AB + 4 * (i & 1)
        for r in range(4):
            A(f"v_and_b32_dpp v{a+r}, v{P}, v{MSK+r} row_newbcast:{c} row_mask:0xf bank_mask:0xf")
    def ml_loads(hf):
        A(f"""s_load_dwordx16 s[16:31], s[96:97], {hf*128} glc
s_load_dwordx8 s[32:39], s[96:97], {hf*128+64} glc
s_load_dwordx8 s[56:63], s[96:97], {hf*128+96} glc""")
    for v in VARS:
        S.__dict__.update(copy.deepcopy(snap)); A.hist = list(hist)
        NP = S.NP = 4 * v
        ns = (NP + 15) // 16
        A(f"L_var{v}:")
        for i in range(ic, NP): k_step(i)
        for o in post_ops(NP // 4 - 1): A(o)
        assert S.n == NP + LAG, (S.n, NP)
        if v != VARS[-1]: A("s_branch L_soft")
    A("L_soft:\ns_nop 1")
    ns = NS
    stamp(3)
    A(f"s_mov_b32 s12, {SCALE:#x}\ns_mov_b32 s13, {LOG2E:#x}")
    def round_pairs():
        for k in range(0, ns, 2):
            A(f"v_cvt_pk_bf16_f32 v{T0+k//2}, v{SR+k}, v{SR+min(k+1, ns-1)}")
        for k in range(0, ns, 2):
            if k + 1 < ns: unpack(SR + k, SR + k + 1, T0 + k // 2)
            else: A(f"v_lshlrev_b32 v{SR+k}, 16, v{T0+k//2}")
    round_pairs()
    for k in range(ns): A(f"v_mul_f32 v{SR+k}, s12, v{SR+k}")
    round_pairs()
    A(f"v_max3_f32 v{T0}, v{SR}, v{SR+1}, v{SR+2}\nv_max3_f32 v{T0+1}, v{SR+3}, v{SR+4}, v{SR+5}\nv_max3_f32 v{T0}, v{T0}, v{SR+6}, v{SR+7}")
    if ns > 8: A(f"v_max_f32 v{T0+1}, v{T0+1}, v{SR+8}")
    A(f"v_max_f32 v{T0}, v{T0}, v{T0+1}")
    allreduce("v_max_f32", [T0])
    A(f"v_readlane_b32 s73, v{T0}, 63")
    for k in range(ns): A(f"v_subrev_f32 v{SR+k}, s73, v{SR+k}")
    for k in range(ns): A(f"v_mul_f32 v{SR+k}, s13, v{SR+k}")
    for k in range(ns): A(f"v_exp_f32 v{SR+k}, v{SR+k}")
    A(f"""v_add_f32 v{T0}, v{SR}, v{SR+1}
v_add_f32 v{T0+1}, v{SR+2}, v{SR+3}
v_add_f32 v{T0+2}, v{SR+4}, v{SR+5}
v_add_f32 v{T0+3}, v{SR+6}, v{SR+7}
v_add_f32 v{T0}, v{T0}, v{T0+1}
v_add_f32 v{T0+2}, v{T0+2}, v{T0+3}""")
    if ns > 8: A(f"v_add_f32 v{T0}, v{T0}, v{SR+8}")
    A(f"v_add_f32 v18, v{T0}, v{T0+2}")
    for k in range(ns): A(f"v_cvt_pk_bf16_f32 v{SR+k}, v{SR+k}, v{SR+k}")
    allreduce("v_add_f32", [18])
    A(f"""v_mov_b32 v16, s73
v_mov_b32 v17, s10
v_mov_b32 v19, s10
s_lshl_b32 s12, s8, 5
s_add_u32 s12, s12, s6
s_lshl_b32 s12, s12, 8
s_add_u32 s12, s12, {WS_ML}
s_add_u32 s96, s42, s12
s_addc_u32 s97, s43, 0
s_lshl_b32 s13, s9, 6
s_add_u32 s12, s12, s13
s_lshl_b32 s13, s3, 4
s_add_u32 s12, s12, s13
v_mov_b32 v20, {OOB:#x}
v_mov_b32 v21, 0
v_cmp_eq_u32 vcc, 63, v1
v_cndmask_b32 v20, v20, v21, vcc
v_lshlrev_b32 v22, 3, v1
v_add_u32 v22, {L_DUM}, v22
buffer_store_dwordx4 v[16:19], v20, s[52:55], s12 offen sc1
s_mul_i32 s12, s3, {OSTR}
s_add_u32 s12, s12, {L_O}
v_lshlrev_b32 v28, 4, v2
v_lshl_add_u32 v28, v3, 3, v28
v_add_u32 v28, s12, v28
v_cmp_gt_u32 vcc, 32, v1
v_cndmask_b32 v28, v22, v28, vcc
v_mov_b32 v{OA}, 0
v_mov_b32 v{OA+1}, 0
v_mov_b32 v{OA+2}, 0
v_mov_b32 v{OA+3}, 0
s_mov_b64 s[44:45], s[16:17]
s_mov_b64 s[46:47], s[38:39]
s_sub_u32 s75, s75, 1
s_mov_b32 s72, 0
s_mov_b32 s70, {TMO}
s_mov_b32 s13, {LOG2E:#x}
v_mov_b32 v30, s73
v_mov_b32 v31, 0""")
    stamp(4)
    sel(0)
    def vbody(lbl, N, last):
        A(f"{lbl}:")
        for p_ in range(16):
            a = AB + 4 * (p_ & 1); n_ = p_ + LAG
            A(f"s_waitcnt vmcnt({N-1})")
            A(f"buffer_load_dwordx4 v[{VS[n_&7]}:{VS[n_&7]+3}], v{VV}, s[48:51], s65 offen offset:{(n_&3)*1024} {vpol}")
            if n_ & 3 == 3: A("s_addk_i32 s65, 0x4000")
            mfma32(OA, a, VS[p_ & 7], False)
            if p_ & 3 == 3: A("s_sub_u32 s75, s75, 1\ns_cbranch_scc1 L_vend")
            sel(p_ + 1)
        for k in range(ns - 1): A(f"v_mov_b32 v{SR+k}, v{SR+k+1}")
        if last:
            A(f"s_branch {lbl}")
        else:
            A(f"""s_add_u32 s72, s72, 1
s_sub_u32 s12, s72, {MLI}
s_cmp_le_u32 s12, 2
s_cbranch_scc1 L_mlx
s_branch L_vloop""")
    vbody("L_vloop", CAPV, False)
    if CAPE: vbody("L_vloop2", CAPE, True)
    A("""L_vend:
s_nop 5""")
    for r in range(4): A(f"v_mul_f32 v{OA+r}, v30, v{OA+r}")
    A(f"v_cvt_pk_bf16_f32 v32, v{OA}, v{OA+1}\nv_cvt_pk_bf16_f32 v33, v{OA+2}, v{OA+3}")
    A("ds_write_b64 v28, v[32:33]")
    A("s_cmp_eq_u32 s98, 0\ns_waitcnt lgkmcnt(0)\ns_cbranch_scc1 L_tail")
    stamp(5)
    A("s_barrier")
    stamp(6)
    if "t" in abl: A("s_branch L_fin")
    A("""L_tail:
s_cmp_eq_u32 s76, 4
s_cbranch_scc1 L_stepB
s_cmp_lg_u32 s76, 1
s_cbranch_scc1 L_fin""")
    WA = [64 + 4 * k for k in range(16)]; HB = [128 + 4 * k for k in range(16)]
    SB, C1, XX = 16, 24, 32
    A(f"""v_lshlrev_b32 v9, 9, v3
v_lshl_add_u32 v9, v4, 6, v9
v_and_b32 v11, 1, v1
v_lshl_add_u32 v9, v11, 3, v9
v_lshrrev_b32 v10, 1, v5
v_lshl_add_u32 v9, v10, 15, v9
s_lshl_b32 s12, s3, 4
s_add_u32 s14, s12, {L_EXT}
v_add_u32 v9, s14, v9""")
    for ks in range(16):
        for jh in range(2):
            A(f"ds_read_b64_tr_b16 v[{WA[ks]+2*jh}:{WA[ks]+2*jh+1}], v9 offset:{ks*2048+jh*256}")
    A(f"""v_mov_b32 v57, s10
v_lshlrev_b32 v12, 10, v11
v_lshl_add_u32 v12, v3, 4, v12
v_add_u32 v12, {L_H2}, v12
v_lshlrev_b32 v13, 6, v11
v_and_b32 v14, 1, v3
v_lshl_add_u32 v13, v14, 3, v13
v_lshrrev_b32 v14, 1, v3
v_lshl_add_u32 v13, v14, 2, v13
s_add_u32 s12, s12, {L_HH}
v_add_u32 v13, s12, v13
v_lshlrev_b32 v14, 2, v1
v_add_u32 v14, {L_DUM}, v14
s_min_u32 s14, s98, 2
v_cmp_gt_u32 vcc, s14, v2
v_cndmask_b32 v13, v14, v13, vcc
s_mov_b32 s68, {EPS:#x}
s_mov_b32 s69, {LOG2E:#x}
s_mov_b32 s70, s98
v_mov_b32 v15, {L_FL}
s_lshl_b32 s12, s3, 2
s_add_u32 s12, s12, {L_FL}
s_cmp_eq_u32 s98, 0
s_cselect_b32 s12, {L_DUM}, s12
v_mov_b32 v56, s12
s_sub_u32 s13, s3, 1
s_cmp_ge_u32 s13, 2
s_cbranch_scc1 L_c_h2s
s_lshl_b32 s14, s13, 11
s_add_u32 s14, s14, {WS_G + 4096}
s_add_u32 s15, s14, 4096
v_lshlrev_b32 v8, 5, v1
L_c_sbcb:""")
    for k, (so, of) in enumerate((("s14", 0), ("s14", 16), ("s15", 0), ("s15", 16))):
        A(f"buffer_load_dwordx4 v[{40+4*k}:{43+4*k}], v8, s[52:55], {so} offen offset:{of} sc1")
    A("s_waitcnt vmcnt(0)")
    tagcheck([42, 43, 46, 47, 50, 51, 54, 55], 57)
    poll_dry("L_c_sbcb")
    for k, rr in enumerate((40, 41, 44, 45)): unpack(SB + 2 * k, SB + 2 * k + 1, rr)
    for k, rr in enumerate((48, 49, 52, 53)): unpack(C1 + 2 * k, C1 + 2 * k + 1, rr)
    for k in range(8): A(f"v_add_f32 v{C1+k}, 1.0, v{C1+k}")
    for k in range(4): A(f"v_cvt_pk_bf16_f32 v{40+k}, v{C1+2*k}, v{C1+2*k+1}")
    for k in range(4): unpack(C1 + 2 * k, C1 + 2 * k + 1, 40 + k)
    A(f"""s_lshl_b32 s14, s13, 10
s_add_u32 s15, s14, {L_H2}
s_cmp_eq_u32 s98, 0
s_cselect_b32 s15, {L_DUM}, s15
s_lshl_b32 s14, s13, 12
s_add_u32 s14, s14, {WS_X1}
s_lshr_b32 s12, s4, 1
s_lshl_b32 s12, s12, {13 if xrep else 31}
s_andn2_b32 s12, s12, 0x80000000
s_add_u32 s14, s14, s12
v_lshlrev_b32 v8, 4, v1
v_add_u32 v10, s15, v8
v_lshrrev_b32 v8, 1, v1
v_lshlrev_b32 v8, 7, v8
v_lshl_add_u32 v8, v11, 5, v8
s_mov_b32 s12, 0x05040100
s_waitcnt lgkmcnt(0)""")
    stamp(7)
    def x1_loads(b):
        A(f"buffer_load_dwordx4 v[{b}:{b+3}], v8, s[52:55], s14 offen sc1\nbuffer_load_dwordx4 v[{b+4}:{b+7}], v8, s[52:55], s14 offen offset:16 sc1")
    def x1_check(b, extra):
        A(f"s_waitcnt vmcnt({extra})")
        for k in range(4): A(f"v_perm_b32 v{40+k}, v{b+2*k+1}, v{b+2*k}, s12")
        for k in range(4):
            A(f"v_sad_u8 v44, v{40+k}, v57, {'0' if k == 0 else 'v44'}")
            A(f"v_and_b32 v{XX+2*k}, 0xffff0000, v{b+2*k}\nv_and_b32 v{XX+2*k+1}, 0xffff0000, v{b+2*k+1}")
        A("v_cmp_ne_u32 vcc, 0, v44")
    A("s_mov_b32 s70, s98")
    if not ppx:
        if xsleep: A(f"s_branch L_c_x1\nL_c_x1s:\ns_sleep {xsleep}")
        A("L_c_x1:"); x1_loads(192); x1_check(192, 0); poll_dry("L_c_x1s" if xsleep else "L_c_x1")
    else:
        x1_loads(192)
        A(f"s_sleep {stag}\nL_c_x1:"); x1_loads(200); x1_check(192, 2)
        A("s_cbranch_vccz L_c_got")
        x1_loads(192); x1_check(200, 2)
        poll_dry("L_c_x1")
        A("L_c_got:")
    stamp(8)
    if not fastc:
        layernorm8(XX, 44, "s68")
        for k in range(8): A(f"v_mul_f32 v{XX+k}, v{XX+k}, v{C1+k}")
        for k in range(4): A(f"v_cvt_pk_bf16_f32 v{44+k}, v{XX+2*k}, v{XX+2*k+1}")
        for k in range(4): unpack(XX + 2 * k, XX + 2 * k + 1, 44 + k)
        for k in range(8): A(f"v_add_f32 v{XX+k}, v{XX+k}, v{SB+k}")
        for k in range(4): A(f"v_cvt_pk_bf16_f32 v{44+k}, v{XX+2*k}, v{XX+2*k+1}")
    else:
        A(f"v_readfirstlane_b32 s71, v{XX}")
        Dd = 44
        for k in range(8): A(f"v_subrev_f32 v{Dd+k}, s71, v{XX+k}")
        A(f"""v_add_f32 v40, v{Dd}, v{Dd+1}
v_mul_f32 v41, v{Dd}, v{Dd}
v_add_f32 v42, v{Dd+2}, v{Dd+3}
v_mul_f32 v43, v{Dd+1}, v{Dd+1}
v_add_f32 v52, v{Dd+4}, v{Dd+5}
v_fmac_f32 v41, v{Dd+2}, v{Dd+2}
v_add_f32 v53, v{Dd+6}, v{Dd+7}
v_fmac_f32 v43, v{Dd+3}, v{Dd+3}
v_add_f32 v40, v40, v42
v_fmac_f32 v41, v{Dd+4}, v{Dd+4}
v_add_f32 v52, v52, v53
v_fmac_f32 v43, v{Dd+5}, v{Dd+5}
v_fmac_f32 v41, v{Dd+6}, v{Dd+6}
v_fmac_f32 v43, v{Dd+7}, v{Dd+7}
v_add_f32 v40, v40, v52
v_add_f32 v41, v41, v43""")
        allreduce("v_add_f32", [40, 41])
        A(f"""v_readlane_b32 s72, v40, 63
v_readlane_b32 s73, v41, 63
v_mov_b32 v42, 0x3b000000
v_mul_f32 v40, s72, v42
v_mul_f32 v41, s73, v42
v_add_f32 v43, s71, v40
v_fma_f32 v41, -v40, v40, v41
v_cvt_pk_bf16_f32 v43, v43, v43
v_max_f32 v41, 0, v41
v_and_b32 v43, 0xffff0000, v43
v_cvt_pk_bf16_f32 v41, v41, v41
v_sub_f32 v{XX}, v{XX}, v43
v_and_b32 v41, 0xffff0000, v41
v_sub_f32 v{XX+1}, v{XX+1}, v43
v_add_f32 v41, s68, v41
v_sub_f32 v{XX+2}, v{XX+2}, v43
v_cvt_pk_bf16_f32 v41, v41, v41
v_sub_f32 v{XX+3}, v{XX+3}, v43
v_and_b32 v41, 0xffff0000, v41
v_sub_f32 v{XX+4}, v{XX+4}, v43
v_sqrt_f32 v41, v41
v_sub_f32 v{XX+5}, v{XX+5}, v43
v_sub_f32 v{XX+6}, v{XX+6}, v43
v_cvt_pk_bf16_f32 v41, v41, v41
v_sub_f32 v{XX+7}, v{XX+7}, v43
v_and_b32 v41, 0xffff0000, v41""")
        for k in range(4): A(f"v_mul_f32 v{XX+k}, v{XX+k}, v{C1+k}")
        A("v_rcp_f32 v41, v41")
        for k in range(4, 8): A(f"v_mul_f32 v{XX+k}, v{XX+k}, v{C1+k}")
        for k in range(8): A(f"v_fma_f32 v{XX+k}, v{XX+k}, v41, v{SB+k}")
        for k in range(4): A(f"v_cvt_pk_bf16_f32 v{44+k}, v{XX+2*k}, v{XX+2*k+1}")
    A("ds_write_b128 v10, v[44:47]\nds_write_b32 v56, v57\ns_mov_b32 s70, s98\ns_branch L_c_h2")
    A("L_c_h2s:\ns_sleep 1")
    A("L_c_h2:\nds_read2_b32 v[44:45], v15 offset0:1 offset1:2\ns_waitcnt lgkmcnt(0)")
    tagcheck([44, 45], 57)
    poll_dry("L_c_h2s")
    for ks in range(16): A(f"ds_read_b128 v[{HB[ks]}:{HB[ks]+3}], v12 offset:{ks*64}")
    for ks in range(16):
        A(f"s_waitcnt lgkmcnt({15-ks})")
        mfma32(40, WA[ks], HB[ks], ks == 0)
    A("v_permlane32_swap_b32 v40, v42\nv_permlane32_swap_b32 v41, v43")
    A("v_cvt_pk_bf16_f32 v44, v40, v41\nv_cvt_pk_bf16_f32 v45, v42, v43")
    unpack(40, 41, 44); unpack(42, 43, 45)
    A("""v_mul_f32 v44, s69, v40
v_mul_f32 v45, s69, v41
v_exp_f32 v44, -v44
v_exp_f32 v45, -v45
v_add_f32 v44, 1.0, v44
v_add_f32 v45, 1.0, v45
v_rcp_f32 v44, v44
v_rcp_f32 v45, v45
v_mul_f32 v40, v40, v44
v_mul_f32 v41, v41, v45
v_cvt_pk_bf16_f32 v44, v40, v41""")
    unpack(40, 41, 44)
    A("""v_mul_f32 v40, v40, v42
v_mul_f32 v41, v41, v43
v_cvt_pk_bf16_f32 v44, v40, v41
ds_write_b32 v13, v44
ds_write_b32 v56, v57 offset:16""")
    stamp(9)
    A("L_fin:\ns_cmp_eq_u32 s98, 0\ns_cbranch_scc1 L_dryret")
    finish()
    A("L_stepB:")
    A("s_cmp_lg_u32 s3, 0\ns_cbranch_scc1 L_fin")
    srd(56, 44, 2048)
    srd(60, 46, 2048)
    A(f"""s_lshl_b32 s14, s77, 6
s_add_u32 s14, s14, {WS_G}
s_add_u32 s13, s14, {3*4096}
s_lshl_b32 s15, s77, 5
s_lshl_b32 s72, s77, 13
s_add_u32 s72, s72, {WS_Y}
s_add_u32 s75, s72, 4096
s_lshl_b32 s73, s77, 7
s_add_u32 s73, s73, {WS_X1}
s_mul_i32 s74, s77, 3072
s_add_u32 s74, s74, {WS_OP}
v_lshlrev_b32 v8, 4, v5
v_lshlrev_b32 v9, 4, v1
v_lshlrev_b32 v12, 3, v5
v_lshl_add_u32 v13, v3, 1, v12
v_mov_b32 v10, {OOB:#x}
v_cmp_gt_u32 vcc, 44, v1
v_cndmask_b32 v14, v10, v9, vcc
v_cmp_gt_u32 vcc, 4, v1
v_cndmask_b32 v12, v10, v12, vcc
v_cmp_eq_u32 vcc, 0, v1
v_cndmask_b32 v10, v10, v1, vcc
v_mov_b32 v11, s10
v_and_b32 v15, 1, v3
v_lshlrev_b32 v15, 4, v15
v_sub_u32 v15, 16, v15
s_mov_b32 s12, 0x03020706
s_mov_b32 s68, 0x0c0c0400
v_and_b32 v38, 0xffff, v11
v_lshrrev_b32 v39, 16, v11
v_cmp_gt_u32 vcc, 44, v1
v_cndmask_b32 v40, 0, v38, vcc
v_cndmask_b32 v41, 0, v39, vcc
v_mov_b32 v42, 0xffff0000
v_cmp_eq_u32 vcc, 16, v15
v_cndmask_b32 v43, v39, v38, vcc
v_or_b32 v12, s99, v12
v_or_b32 v10, s99, v10
v_lshlrev_b32 v44, 13, v4
v_lshl_add_u32 v44, v5, 4, v44
v_mov_b32 v45, {OOB:#x}
v_cmp_gt_u32 vcc, {16 if xrep else 4}, v1
v_cndmask_b32 v44, v45, v44, vcc
v_or_b32 v44, s99, v44
s_mov_b32 s70, s98
buffer_load_ushort v16, v13, s[56:59], s15 offen""")
    A("L_b_ga:")
    A("buffer_load_dwordx4 v[20:23], v8, s[52:55], s14 offen sc1\nbuffer_load_dwordx4 v[24:27], v8, s[52:55], s13 offen sc1\ns_waitcnt vmcnt(0)")
    tagcheck([22, 23, 26, 27], 11)
    poll_dry("L_b_ga")
    A("""v_cmp_gt_u32 vcc, 32, v1
v_cndmask_b32 v17, v21, v20, vcc
v_cndmask_b32 v18, v25, v24, vcc
v_lshlrev_b32 v17, v15, v17
v_lshlrev_b32 v18, v15, v18
v_and_b32 v17, 0xffff0000, v17
v_and_b32 v18, 0xffff0000, v18
v_lshlrev_b32 v16, 16, v16""")
    A("s_mov_b32 s70, s98")
    def gatherN(lbl, n, so0, so1, lastv):
        def loads(base):
            for i in range(n):
                A(f"buffer_load_dwordx4 v[{base+4*i}:{base+3+4*i}], v{lastv if i == n - 1 else 9}, s[52:55], {so0 if i < 4 else so1} offen offset:{(i&3)*1024} sc1")
        def check(base, extra):
            for i in range(n):
                r = base + 4 * i
                lo, hi = (40, 41) if (i == n - 1 and lastv != 9) else (38, 39)
                A(f"s_waitcnt vmcnt({n-1-i+extra})")
                A(f"v_perm_b32 v36, v{r+1}, v{r}, s68\nv_perm_b32 v37, v{r+3}, v{r+2}, s68")
                if i: A(f"v_add_f32 v32, v{base if i == 1 else 32}, v{r}\nv_add_f32 v33, v{base+1 if i == 1 else 33}, v{r+1}")
                A(f"v_sad_u8 v28, v36, v{lo}, {'0' if i == 0 else 'v28'}")
                if i: A(f"v_add_f32 v34, v{base+2 if i == 1 else 34}, v{r+2}\nv_add_f32 v35, v{base+3 if i == 1 else 35}, v{r+3}")
                A(f"v_sad_u8 v28, v37, v{hi}, v28")
            A("v_cmp_ne_u32 vcc, 0, v28")
        if not (pp if n == 8 else ppd):
            A(f"{lbl}:"); loads(64); check(64, 0); poll_dry(lbl)
        else:
            done = A.newlabel("L_got")
            A(f"{lbl}:"); loads(64)
            A(f"s_sleep {stag}")
            A(f"{lbl}_l:"); loads(128); check(64, n)
            A(f"s_cbranch_vccz {done}")
            loads(64); check(128, n)
            poll_dry(f"{lbl}_l")
            A(f"{done}:")
    def red16(G, Xr):
        A("""v_permlane32_swap_b32 v32, v34
v_permlane32_swap_b32 v33, v35
v_add_f32 v32, v32, v34
v_add_f32 v33, v33, v35
v_permlane16_swap_b32 v32, v33
v_add_f32 v32, v32, v33
v_add_f32_dpp v32, v32, v32 row_ror:4 row_mask:0xf bank_mask:0xf
v_add_f32_dpp v32, v32, v32 row_ror:8 row_mask:0xf bank_mask:0xf
v_cvt_pk_bf16_f32 v32, v32, v32
v_and_b32 v32, 0xffff0000, v32""")
        A(f"""v_mul_f32 v32, v32, v{G}
v_cvt_pk_bf16_f32 v32, v32, v32
v_and_b32 v32, 0xffff0000, v32
v_add_f32 v32, v32, v{Xr}
v_cvt_pk_bf16_f32 v30, v32, v32""")
    stamp(7)
    gatherN("L_b_y", 8, "s72", "s75", 9)
    stamp(8)
    red16(17, 16)
    A("""v_bfi_b32 v32, v42, v30, v43
v_bfi_b32 v33, v42, v30, v43
v_permlane16_swap_b32 v32, v33
v_mov_b32 v34, v32
v_mov_b32 v35, v33
v_permlane32_swap_b32 v32, v34
v_permlane32_swap_b32 v33, v35
buffer_store_dwordx4 v[32:35], v44, s[52:55], s73 offen sc1""")
    stamp(9)
    A("v_and_b32 v16, 0xffff0000, v30")
    A("s_mov_b32 s70, s98")
    if dsleep: A(f"s_cmp_eq_u32 s98, 0\ns_cbranch_scc1 L_d_op\ns_sleep {dsleep}")
    gatherN("L_d_op", 3, "s74", "s74", 14)
    stamp(10)
    red16(18, 16)
    A("""v_mov_b32 v32, v30
v_mov_b32 v33, v30
v_permlane16_swap_b32 v32, v33
v_perm_b32 v32, v32, v33, s12
v_mov_b32 v33, v32
v_permlane32_swap_b32 v32, v33""")
    A("buffer_store_dwordx2 v[32:33], v12, s[60:63], s15 offen")
    A("s_cmp_lg_u32 s77, 0\ns_cbranch_scc1 L_fin3")
    A("buffer_store_dword v11, v10, s[52:55], 0 offen sc1")
    A("L_fin3:\ns_branch L_fin")
    A("L_service:")
    if prio: A(f"s_setprio {prio}")
    W, TT, BB = 64, 192, 32
    roles()
    A(f"""s_sub_u32 s12, s3, 4
s_lshl_b32 s13, s12, 13
v_lshlrev_b32 v13, 4, v1
v_add_u32 v7, s13, v13
v_lshlrev_b32 v8, 11, v3
v_lshl_add_u32 v8, v4, 8, v8
v_lshl_add_u32 v8, v5, 3, v8
v_add_u32 v8, s13, v8
v_mov_b32 v31, {OOB:#x}
s_mov_b32 s68, {EPS:#x}
s_mov_b32 s69, {LOG2E:#x}
s_waitcnt lgkmcnt(0)""")
    if diag: A("s_mov_b32 s80, s78")
    A("s_load_dword s11, s[42:43], 0")
    srd(52, 42, WS_END)
    if "q" in abl: A("s_cmp_eq_u32 s3, 4\ns_cbranch_scc1 L_s_bar1")
    if "u" in abl: A("s_cmp_eq_u32 s3, 7\ns_cbranch_scc1 L_s_bar1")
    A("""s_cmp_eq_u32 s3, 4
s_cbranch_scc1 L_s_q
s_cmp_eq_u32 s3, 5
s_cbranch_scc1 L_s_warm
s_cmp_eq_u32 s3, 6
s_cbranch_scc1 L_s_bar1
s_cmp_eq_u32 s76, 4
s_cbranch_scc1 L_s_bar1""")
    srd(48, 36, 512 * 6144)
    srd(60, 34, 2048)
    A(f"""s_lshr_b32 s13, s72, 2
s_and_b32 s14, s72, 3
s_lshl_b32 s65, s13, 7
s_mul_i32 s64, s14, {128*6144}
s_add_u32 s65, s65, s64
s_lshl_b32 s64, s14, 8
v_lshrrev_b32 v9, 3, v1
v_mul_u32_u24 v9, 6144, v9
v_and_b32 v11, 7, v1
v_lshl_add_u32 v9, v11, 4, v9
v_lshrrev_b32 v11, 5, v1
v_and_b32 v12, 31, v1
v_lshlrev_b32 v12, 3, v12
v_lshl_add_u32 v14, v11, 10, v12
buffer_load_dwordx2 v[16:17], v14, s[60:63], s64 offen""")
    for i in range(16):
        if i >= SMD: A(f"s_waitcnt vmcnt({SMD-1})")
        A(f"buffer_load_dwordx4 v[{TT+4*i}:{TT+4*i+3}], v9, s[48:51], s65 offen {tpol}")
        if i < 15: A(f"s_add_u32 s65, s65, {8*6144:#x}")
        if i == min(SMD, 16) - 1:
            A(f"""v_lshl_add_u32 v15, v11, 8, v12
v_add_u32 v15, {L_SC}, v15
v_lshlrev_b32 v11, 10, v3
v_lshl_add_u32 v11, v4, 7, v11
v_lshl_add_u32 v11, v5, 3, v11
v_add_u32 v11, {3*8192}, v11
v_and_b32 v28, 1, v4
v_lshlrev_b32 v12, 8, v28
v_lshl_add_u32 v12, v3, 4, v12
v_add_u32 v12, {L_SC}, v12
s_waitcnt vmcnt({i+1})""")
            unpack(20, 21, 16); unpack(22, 23, 17)
            for k in range(4): A(f"v_mul_f32 v{24+k}, s69, v{20+k}")
            for k in range(4): A(f"v_exp_f32 v{24+k}, -v{24+k}")
            for k in range(4): A(f"v_add_f32 v{24+k}, 1.0, v{24+k}")
            for k in range(4): A(f"v_rcp_f32 v{24+k}, v{24+k}")
            for k in range(4): A(f"v_mul_f32 v{20+k}, v{20+k}, v{24+k}")
            A("v_cvt_pk_bf16_f32 v16, v20, v21\nv_cvt_pk_bf16_f32 v17, v22, v23\nds_write_b64 v15, v[16:17]")
            for ks in range(4): A(f"ds_read_b128 v[{BB+4*ks}:{BB+4*ks+3}], v12 offset:{ks*64}")
    for ks in range(4):
        for i in range(4 * ks, 4 * ks + 4):
            A(f"s_waitcnt vmcnt({15 - i})")
            A(f"ds_write_b128 v7, v[{TT+4*i}:{TT+4*i+3}] offset:{(i&7)*1024}")
        for tt in range(4):
            for jh in range(2):
                d = TT + (ks * 4 + tt) * 4 + jh * 2
                A(f"ds_read_b64_tr_b16 v[{d}:{d+1}], v11 offset:{(ks&1)*4096+jh*512+tt*32}")
    for ks in range(4):
        A(f"s_waitcnt lgkmcnt({0 if ks == 3 else 12})")
        for tt in range(4): mfma32(48 + 4 * tt, TT + (ks * 4 + tt) * 4, BB + 4 * ks, ks == 0)
    A("s_add_u32 s10, s11, 0x9e3779b9")
    for tt in range(1, 4):
        A(f"v_cmp_eq_u32 vcc, {tt}, v5")
        for r in range(4): A(f"v_cndmask_b32 v{48+r}, v{48+r}, v{48+4*tt+r}, vcc")
    A(f"""v_cmp_gt_u32 vcc, 8, v2
v_mov_b32 v52, s10
v_cndmask_b32 v48, v51, v48, vcc
v_cndmask_b32 v49, v52, v49, vcc
v_cndmask_b32 v50, v52, v50, vcc
v_mov_b32 v51, s10
s_lshl_b32 s13, s72, 10
s_add_u32 s13, s13, {WS_MP}
buffer_store_dwordx4 v[48:51], v13, s[52:55], s13 offen sc1""")
    stamp(1)
    A("s_branch L_s_bar1")
    A(f"""L_s_warm:
s_getpc_b64 s[66:67]
L_pc:
s_sub_u32 s66, s66, L_pc-{KNAME}
s_subb_u32 s67, s67, 0
s_and_b32 s13, s5, {wmask}
s_mul_i32 s13, s13, {WUP*1024}
v_add_u32 v14, s13, v13""")
    for k in range(WUP):
        if k >= 4: A("s_waitcnt vmcnt(3)")
        A(f"v_min_u32 v15, L_codeend-{KNAME}-16, v14\nglobal_load_dwordx4 v[20:23], v15, s[66:67]\nv_add_u32 v14, 1024, v14")
    A("s_branch L_s_bar1")
    A("L_s_q:")
    srd(44, 22, 512 * 8192)
    srd(56, 16, 2048)
    A(f"""v_lshlrev_b32 v6, 13, v3
v_lshl_add_u32 v6, v2, 4, v6
s_lshl_b32 s64, s6, 8
s_lshl_b32 s13, s7, 19
s_add_u32 s64, s64, s13
buffer_load_dwordx4 v[24:27], v13, s[56:59], 0 offen
buffer_load_dwordx4 v[28:31], v13, s[56:59], 0 offen offset:1024""")
    for i in range(16):
        if i >= SQ: A(f"s_waitcnt vmcnt({SQ-1})")
        A(f"buffer_load_dwordx4 v[{W+4*i}:{W+4*i+3}], v6, s[44:47], s64 offen {tpol}")
        if i < 15: A("s_add_u32 s64, s64, 0x8000")
    A(f"""v_and_b32 v63, 7, v1
v_lshrrev_b32 v16, 5, v1
v_and_b32 v19, 1, v3
v_lshlrev_b32 v14, 15, v16
v_lshl_add_u32 v14, v5, 8, v14
v_lshl_add_u32 v14, v19, 6, v14
v_lshl_add_u32 v14, v4, 4, v14
v_bfe_u32 v17, v1, 3, 2
v_lshlrev_b32 v6, 10, v16
v_lshl_add_u32 v6, v17, 8, v6
v_lshl_add_u32 v6, v63, 4, v6
v_lshlrev_b32 v23, 5, v63
v_lshl_add_u32 v23, v17, 3, v23
v_lshl_add_u32 v23, v16, 2, v23
v_add_u32 v23, {L_Q}, v23
v_lshlrev_b32 v18, 3, v2
v_lshl_add_u32 v18, v16, 2, v18
v_lshl_add_u32 v11, v19, 7, v18
v_add_u32 v11, {L_HL}, v11
v_lshl_add_u32 v15, v19, 10, v18
s_lshl_b32 s13, s7, 7
s_add_u32 s13, s13, {L_H2}
v_add_u32 v15, s13, v15
v_bfe_u32 v12, v1, 3, 1
v_lshlrev_b32 v12, 7, v12
v_lshl_add_u32 v12, v3, 4, v12
v_add_u32 v12, {L_HL}, v12
s_waitcnt vmcnt(16)""")
    for b in range(2):
        for k in range(4): unpack(BB + 2 * k, BB + 2 * k + 1, 24 + 4 * b + k)
        layernorm8(BB, BB + 8, "s68")
        A(f"v_add_u32 v16, {L_H2 + 1024*b}, v13\nds_write_b128 v16, v[{BB+12}:{BB+15}]")
    A(f"ds_read_b32 v22, v15\nv_mov_b32 v31, {OOB:#x}")
    for ks in range(2):
        for i in range(8 * ks, 8 * ks + 8):
            A(f"s_waitcnt vmcnt({15 - i})")
            A(f"ds_write_b128 v7, v[{W+4*i}:{W+4*i+3}] offset:{(i&7)*1024}")
        for tt in range(8):
            for jh in range(2):
                d = W + (ks * 8 + tt) * 4 + jh * 2
                A(f"ds_read_b64_tr_b16 v[{d}:{d+1}], v8 offset:{jh*1024+tt*32}")
    A(f"""s_waitcnt lgkmcnt(0)
s_add_u32 s10, s11, 0x9e3779b9
s_lshl_b32 s13, s7, 12
s_add_u32 s13, s13, {WS_MP}
v_mov_b32 v24, s10
v_lshrrev_b32 v60, 1, v13
v_lshrrev_b32 v61, 1, v6
s_lshl_b32 s95, s6, 13
s_lshl_b32 s64, s7, 10
s_add_u32 s64, s64, s95
s_lshr_b32 s92, s64, 1
s_add_u32 s92, s92, {WS_QP8}
s_add_u32 s64, s64, {WS_QP}
s_lshl_b32 s65, s8, 7
s_add_u32 s95, s95, s65
s_lshr_b32 s93, s95, 1
s_add_u32 s93, s93, {WS_QP8}
s_add_u32 s95, s95, {WS_QP}
s_add_u32 s65, s95, 4096
s_mov_b32 s70, {TMO}""")
    unpack(26, 27, 22)
    stamp(1)
    scalar_wait("L_sp1", "s13", [c * 32768 + rq * 1024 + 780 for c in range(2) for rq in range(4)])
    A("L_q_mp:")
    for rq in range(4): A(f"buffer_load_dwordx4 v[{BB+4*rq}:{BB+4*rq+3}], v14, s[52:55], s13 offen offset:{rq*1024} {gpol}")
    for rq in range(4): A(f"buffer_load_dwordx2 v[{48+2*rq}:{49+2*rq}], v14, s[52:55], s13 offen offset:{rq*1024+128} {gpol}")
    A("s_waitcnt vmcnt(0)")
    tagcheck([BB + 3, BB + 7, BB + 11, BB + 15, 49, 51, 53, 55], 24)
    poll_tail("L_q_mp")
    stamp(2)
    def sum4():
        for r in range(3): A(f"v_add_f32 v{BB+r}, v{BB+r}, v{BB+4+r}")
        A(f"v_add_f32 v{BB+3}, v48, v50")
        for r in range(3): A(f"v_add_f32 v{BB+8+r}, v{BB+8+r}, v{BB+12+r}")
        A(f"v_add_f32 v{BB+11}, v52, v54")
        for r in range(4): A(f"v_add_f32 v{BB+r}, v{BB+r}, v{BB+8+r}")
        A(f"v_permlane32_swap_b32 v{BB}, v{BB+2}\nv_permlane32_swap_b32 v{BB+1}, v{BB+3}")
    sum4()
    A(f"v_cvt_pk_bf16_f32 v20, v{BB}, v{BB+1}\nv_cvt_pk_bf16_f32 v21, v{BB+2}, v{BB+3}")
    unpack(18, 19, 21)
    unpack(16, 17, 20)
    A("v_add_f32 v18, 1.0, v18\nv_add_f32 v19, 1.0, v19\nv_cvt_pk_bf16_f32 v21, v18, v19")
    unpack(18, 19, 21)
    A("v_mul_f32 v18, v18, v26\nv_mul_f32 v19, v19, v27\nv_cvt_pk_bf16_f32 v21, v18, v19")
    unpack(18, 19, 21)
    A("v_add_f32 v18, v18, v16\nv_add_f32 v19, v19, v17\nv_cvt_pk_bf16_f32 v21, v18, v19")
    A("ds_write_b32 v11, v21")
    A(f"ds_read_b128 v[{BB}:{BB+3}], v12\nds_read_b128 v[{BB+4}:{BB+7}], v12 offset:64")
    for ks in range(2):
        A(f"s_waitcnt lgkmcnt({1-ks})")
        for tt in range(8): mfma32(TT + 4 * tt, W + (ks * 8 + tt) * 4, BB + 4 * ks, ks == 0)
    A("v_cmp_eq_u32 s[66:67], 1, v63")
    for tt in range(1, 8):
        cur = "s[66:67]" if tt & 1 else "vcc"
        nx = "vcc" if tt & 1 else "s[66:67]"
        if tt < 7: A(f"v_cmp_eq_u32 {nx}, {tt+1}, v63")
        for r in range(4): A(f"v_cndmask_b32 v{TT+r}, v{TT+r}, v{TT+4*tt+r}, {cur}")
    A(f"""v_mov_b32 v{TT+4}, v{TT+3}
v_mov_b32 v{TT+3}, s10
v_mov_b32 v{TT+5}, s10
buffer_store_dwordx4 v[{TT}:{TT+3}], v13, s[52:55], s64 offen sc1
buffer_store_dwordx2 v[{TT+4}:{TT+5}], v60, s[52:55], s92 offen sc1
s_mov_b32 s70, {TMO}""")
    stamp(3)
    scalar_wait("L_sp2", "s95", [r * 1024 + 780 for r in range(8)])
    A("L_q_qp:")
    for m in range(4): A(f"buffer_load_dwordx4 v[{BB+4*m}:{BB+4*m+3}], v6, s[52:55], {'s95' if m < 2 else 's65'} offen offset:{(m&1)*2048} {gpol}")
    for m in range(4): A(f"buffer_load_dwordx2 v[{48+2*m}:{49+2*m}], v61, s[52:55], s93 offen offset:{m*1024} {gpol}")
    A("s_waitcnt vmcnt(0)")
    tagcheck([BB + 3, BB + 7, BB + 11, BB + 15, 49, 51, 53, 55], 24)
    poll_tail("L_q_qp")
    stamp(4)
    sum4()
    A(f"v_add_f32 v{BB}, v{BB}, v{BB+2}\nv_add_f32 v{BB+1}, v{BB+1}, v{BB+3}\nv_cvt_pk_bf16_f32 v20, v{BB}, v{BB+1}")
    A("ds_write_b32 v23, v20")
    A("L_s_bar1:")
    A("s_waitcnt lgkmcnt(0)\ns_add_u32 s10, s11, 0x9e3779b9")
    A("s_barrier\ns_barrier")
    A(f"v_lshlrev_b32 v14, 2, v1\nv_and_b32 v14, 28, v14\nv_add_u32 v14, {L_FL}, v14\nv_mov_b32 v15, s11\nds_write_b32 v14, v15")
    if "c" in abl: A("s_branch L_s_wo")
    if dry:
        A(f"""s_cmp_lg_u32 s3, 7
s_cbranch_scc1 L_nodry
s_mov_b32 s98, 0
s_mov_b32 s99, {OOB:#x}
s_mov_b64 s[44:45], s[16:17]
s_mov_b64 s[46:47], s[38:39]
s_cmp_eq_u32 s76, 4
s_cselect_b32 s3, 0, 1
v_lshlrev_b32 v28, 3, v1
v_add_u32 v28, {L_DUM}, v28
s_branch L_vend
L_dryret:
s_mov_b32 s3, 7
s_mov_b32 s12, 3
s_mov_b32 s98, {TMO*4}
s_mov_b32 s99, 0
v_mov_b32 v31, {OOB:#x}
v_lshlrev_b32 v13, 4, v1
v_lshlrev_b32 v8, 11, v3
v_lshl_add_u32 v8, v4, 8, v8
v_lshl_add_u32 v8, v5, 3, v8
v_add_u32 v8, {3*8192}, v8
s_waitcnt vmcnt(0) lgkmcnt(0)
L_nodry:""")
    else:
        A("L_dryret:")
    A(f"""s_cmp_lg_u32 s76, 4
s_cbranch_scc1 L_s_wo
s_cmp_lg_u32 s3, 6
s_cbranch_scc1 L_s_wo
v_lshlrev_b32 v14, 15, v3
v_lshl_add_u32 v14, v4, 10, v14
v_lshl_add_u32 v14, v5, 8, v14
s_and_b32 s13, s77, 28
s_lshl_b32 s13, s13, 10
s_lshr_b32 s14, s77, 5
s_lshl_b32 s14, s14, 6
s_add_u32 s13, s13, s14
s_and_b32 s14, s77, 3
s_lshl_b32 s14, s14, 4
s_add_u32 s13, s13, s14
s_add_u32 s13, s13, {WS_MP + 65536}
v_lshlrev_b32 v15, 12, v3
v_lshl_add_u32 v15, v5, 4, v15
v_cmp_eq_u32 vcc, 0, v4
v_cndmask_b32 v15, v31, v15, vcc
s_lshl_b32 s14, s77, 6
s_add_u32 s14, s14, {WS_G}
v_mov_b32 v24, s10
s_mov_b32 s70, {TMO}
L_s_g4p:
buffer_load_dwordx4 v[16:19], v14, s[52:55], s13 offen {gpol}
buffer_load_dwordx2 v[20:21], v14, s[52:55], s13 offen offset:128 {gpol}
s_waitcnt vmcnt(0)""")
    tagcheck([19, 21], 24)
    poll_tail("L_s_g4p", sleep=8)
    for c in ("row_ror:4", "row_ror:8"):
        for r in (16, 17, 18, 20): A(f"v_add_f32_dpp v{r}, v{r}, v{r} {c} row_mask:0xf bank_mask:0xf")
    A("""v_cvt_pk_bf16_f32 v16, v16, v17
v_cvt_pk_bf16_f32 v17, v18, v20
v_mov_b32 v18, s10
v_mov_b32 v19, s10
buffer_store_dwordx4 v[16:19], v15, s[52:55], s14 offen sc1""")
    if x1pre:
        A(f"""v_cmp_gt_u32 vcc, 8, v1
v_cndmask_b32 v15, v31, v13, vcc
v_mov_b32 v20, s11
v_mov_b32 v21, s11
v_mov_b32 v22, s11
v_mov_b32 v23, s11
s_lshl_b32 s13, s77, 7
s_add_u32 s13, s13, {WS_X1}
buffer_store_dwordx4 v[20:23], v15, s[52:55], s13 offen sc1""")
    A("L_s_wo:")
    A("s_load_dwordx2 s[24:25], s[0:1], 32")
    A(f"""v_lshlrev_b32 v14, 10, v3
v_lshl_add_u32 v14, v2, 4, v14
s_lshl_b32 s64, s6, 17
s_lshl_b32 s13, s12, 8
s_add_u32 s64, s64, s13
v_lshlrev_b32 v30, 4, v3
v_cmp_eq_u32 vcc, 0, v2
v_cndmask_b32 v30, v31, v30, vcc
s_lshl_b32 s74, s8, 18
s_lshl_b32 s13, s12, 16
s_add_u32 s74, s74, s13
s_lshl_b32 s13, s6, 2
s_add_u32 s13, s13, s9
s_lshl_b32 s13, s13, 6
s_add_u32 s74, s74, s13
s_add_u32 s74, s74, {WS_Y}
s_waitcnt vmcnt(0) lgkmcnt(0)""")
    if "w" in abl: A("s_branch L_s_now")
    srd(44, 24, 4096 * 1024)
    def wo_stage(i):
        A(f"ds_write_b128 v7, v[{W+4*i}:{W+4*i+3}] offset:{(i&7)*1024}")
        if i & 7 == 7:
            ks = i >> 3
            for tt in range(8):
                for jh in range(2):
                    d = W + (ks * 8 + tt) * 4 + jh * 2
                    A(f"ds_read_b64_tr_b16 v[{d}:{d+1}], v8 offset:{jh*1024+tt*32}")
    for i in range(32):
        if i >= SD:
            A(f"s_waitcnt vmcnt({SD-1})")
        A(f"buffer_load_dwordx4 v[{W+4*i}:{W+4*i+3}], v14, s[44:47], s64 offen {wpol}")
        if i < 31: A("s_addk_i32 s64, 0x1000")
        if i >= SD: wo_stage(i - SD)
    for i in range(max(0, 32 - SD), 32):
        A(f"s_waitcnt vmcnt({31 - i})")
        wo_stage(i)
    A("L_s_now:")
    stamp(5)
    if "f" in abl: A("s_branch L_s_noffn")
    W2 = 208
    A("s_cmp_lg_u32 s76, 1\ns_cbranch_scc1 L_s_noffn")
    A("s_load_dwordx4 s[28:31], s[0:1], 48")
    srd(44, 32, 1376 * 1024)
    A("s_lshl_b32 s64, s77, 15\ns_lshl_b32 s13, s12, 8\ns_add_u32 s64, s64, s13")
    for i in range(8):
        if i >= SF: A(f"s_waitcnt vmcnt({SF-1})")
        A(f"buffer_load_dwordx4 v[{W2+4*i}:{W2+4*i+3}], v14, s[44:47], s64 offen {tpol}\ns_addk_i32 s64, 0x1000")
    A(f"""v_lshrrev_b32 v9, 2, v1
v_mul_u32_u24 v9, 2752, v9
v_lshl_add_u32 v9, v5, 4, v9
s_and_b32 s13, s12, 1
s_mul_i32 s64, s13, {256*2752}
s_lshl_b32 s14, s77, 6
s_add_u32 s64, s64, s14
s_lshl_b32 s65, s12, 14
s_add_u32 s65, s65, {L_EXT}
s_waitcnt lgkmcnt(0)
s_cmp_lt_u32 s12, 2
s_cselect_b32 s44, s28, s30
s_cselect_b32 s45, s29, s31
s_mov_b32 s46, {512*2752:#x}""")
    for i in range(8):
        A(f"s_waitcnt vmcnt({7 - i})\nds_write_b128 v7, v[{W2+4*i}:{W2+4*i+3}] offset:{i*1024}")
    for tt in range(8):
        for jh in range(2):
            A(f"ds_read_b64_tr_b16 v[{W2+4*tt+2*jh}:{W2+4*tt+2*jh+1}], v8 offset:{jh*1024+tt*32}")
    for i in range(16):
        if i >= SF: A(f"s_waitcnt vmcnt({SF-1})")
        A(f"s_mov_b32 m0, s65\nbuffer_load_dwordx4 v9, s[44:47], s64 offen {fpol} lds\ns_add_u32 s64, s64, {16*2752:#x}\ns_addk_i32 s65, 0x400")
    A("L_s_noffn:")
    A(f"""v_mul_u32_u24 v15, {OSTR}, v5
v_lshl_add_u32 v15, v3, 4, v15
v_add_u32 v15, {L_O}, v15
v_and_b32 v10, 1, v1
v_lshlrev_b32 v29, 4, v3
s_mov_b32 s13, {32*3072}
v_mul_lo_u32 v11, v10, s13
v_add_u32 v29, v29, v11
v_cmp_gt_u32 vcc, 2, v2
v_cndmask_b32 v29, v31, v29, vcc
s_mul_i32 s75, s12, {8*3072}
s_lshl_b32 s13, s77, 6
s_add_u32 s75, s75, s13
s_add_u32 s75, s75, {WS_OP}
v_lshlrev_b32 v28, 6, v10
v_lshl_add_u32 v28, v3, 4, v28
v_add_u32 v28, {L_HH}, v28
v_mov_b32 v20, {L_FL}
v_mov_b32 v21, s10
v_mov_b32 v22, 0xffffff00
s_lshr_b32 s92, s10, 8
s_lshr_b32 s93, s10, 16
s_lshr_b32 s94, s10, 24
s_waitcnt vmcnt(0) lgkmcnt(0)""")
    if dry:
        A(f"""s_mov_b32 s98, 0
s_mov_b32 s70, 0
s_mov_b32 s64, s74
s_mov_b32 s65, s75
v_mov_b32 v10, v29
v_mov_b32 v11, v30
v_mov_b32 v29, v31
v_mov_b32 v30, v31
s_branch L_stepA
L_dryret2:
s_mov_b32 s74, s64
s_mov_b32 s75, s65
v_mov_b32 v29, v10
v_mov_b32 v30, v11
s_waitcnt vmcnt(0) lgkmcnt(0)""")
    A(f"s_mov_b32 s98, {TMO*4}\ns_mov_b32 s70, {TMO*4}")
    stamp(6)
    A("s_barrier\nL_stepA:")
    stamp(7)
    if "t" in abl: A("s_branch L_fin2")
    OB, DY = 192, 32
    TAGB = ["s10", "s92", "s93", "s94"]
    for ks in range(4): A(f"ds_read_b128 v[{OB+4*ks}:{OB+4*ks+3}], v15 offset:{ks*64}")
    def ypost(tt):
        D = DY + 4 * tt
        ops = [f"v_add_f32_dpp v{D+r}, v{D+r}, v{D+r} quad_perm:[1,0,3,2] row_mask:0xf bank_mask:0xf" for r in range(4)]
        ops += [f"v_add_f32_dpp v{D+r}, v{D+r}, v{D+r} quad_perm:[2,3,0,1] row_mask:0xf bank_mask:0xf" for r in range(4)]
        ops += [f"v_bfi_b32 v{D+r}, v22, v{D+r}, {TAGB[r]}" for r in range(4)]
        ops += [f"buffer_store_dwordx4 v[{D}:{D+3}], v30, s[52:55], s74 offen sc1" + ("\ns_addk_i32 s74, 0x2000" if tt < 7 else "")]
        return ops
    for tt in range(8):
        D = DY + 4 * tt
        for ks in range(4):
            if tt == 0: A(f"s_waitcnt lgkmcnt({3-ks})")
            mfma32(D, W + (ks * 8 + tt) * 4, OB + 4 * ks, ks == 0)
            if tt >= 2:
                po = ypost(tt - 2)
                for o in po[3 * ks: 3 * ks + 3]: A(o)
                if ks == 3: A(po[12])
    for tt in (6, 7):
        for o in ypost(tt): A(o)
    stamp(8)
    A("s_cmp_lg_u32 s76, 1\ns_cbranch_scc1 L_fin2")
    A("""L_f2:
ds_read_b128 v[24:27], v20 offset:16
ds_read_b128 v[16:19], v28
s_waitcnt lgkmcnt(0)""")
    tagcheck([24, 25, 26, 27], 21)
    poll_dry("L_f2")
    stamp(9)
    def opost(tt):
        D = DY + 4 * tt
        for r in range(4): A(f"v_bfi_b32 v{D+r}, v22, v{D+r}, {TAGB[r]}")
        A(f"buffer_store_dwordx4 v[{D}:{D+3}], v29, s[52:55], s75 offen sc1\ns_addk_i32 s75, 0xc00")
    for tt in range(8):
        mfma32(DY + 4 * tt, W2 + 4 * tt, 16, True)
        if tt >= 2: opost(tt - 2)
    opost(6); opost(7)
    stamp(10)
    A("L_fin2:")
    if dry: A("s_cmp_eq_u32 s98, 0\ns_cbranch_scc1 L_dryret2")
    finish()
    for st in stubs: A(st)
    regs = [16, 20, 24, 28, 32, 36, 56, 60]
    A(f"""L_mlx:
s_cmp_eq_u32 s12, 0
s_cbranch_scc1 L_ml0
s_sub_u32 s14, s12, 1
s_lshl_b32 s14, s14, 7
s_add_u32 s94, s96, s14
s_addc_u32 s95, s97, 0
s_branch L_fchk
L_fpoll:
s_load_dwordx16 s[16:31], s[94:95], 0 glc
s_load_dwordx8 s[32:39], s[94:95], 64 glc
s_load_dwordx8 s[56:63], s[94:95], 96 glc
L_fchk:
s_waitcnt lgkmcnt(0)
s_mov_b32 s15, 0""")
    for g in regs:
        A(f"s_xor_b32 s14, s{g+1}, s10\ns_or_b32 s15, s15, s14\ns_xor_b32 s14, s{g+3}, s10\ns_or_b32 s15, s15, s14")
    A("s_sub_u32 s70, s70, 1\ns_cbranch_scc1 L_bail\ns_cmp_lg_u32 s15, 0\ns_cbranch_scc1 L_fpoll")
    A("v_mov_b32 v29, v30")
    for g in regs: A(f"v_max_f32 v30, s{g}, v30")
    A("v_sub_f32 v29, v29, v30")
    for k, g in enumerate(regs): A(f"v_sub_f32 v{16+k}, s{g}, v30")
    A("v_mul_f32 v29, s13, v29")
    for k in range(8): A(f"v_mul_f32 v{16+k}, s13, v{16+k}")
    A("v_exp_f32 v29, v29")
    for k in range(8): A(f"v_exp_f32 v{16+k}, v{16+k}")
    A("v_mul_f32 v31, v31, v29")
    for k, g in enumerate(regs): A(f"v_fmac_f32 v31, s{g+2}, v{16+k}")
    A("s_cmp_eq_u32 s12, 2\ns_cbranch_scc1 L_ml2")
    ml_loads(1)
    A("s_branch L_vloop\nL_ml0:")
    ml_loads(0)
    A(f"""s_branch L_vloop
L_ml2:
v_sub_f32 v30, s73, v30
v_rcp_f32 v31, v31
v_mul_f32 v30, s13, v30
v_exp_f32 v30, v30
s_nop 0
v_mul_f32 v30, v30, v31
s_branch {"L_vloop2" if CAPE else "L_vloop"}""")

    if diag:
        A("L_dump:")
        A("s_memrealtime s[78:79]\ns_waitcnt lgkmcnt(0)\ns_mov_b32 s91, s78")
        A("v_mov_b32 v8, 0")
        for i in range(12): A(f"v_writelane_b32 v8, s{80+i}, {i}")
        if dbg:
            A("""s_cmp_ge_u32 s3, 4
s_cbranch_scc1 L_bail
s_load_dwordx2 s[40:41], s[0:1], 96
s_not_b32 s12, s80
s_not_b32 s13, s85
s_cmp_eq_u32 s76, 4
s_cselect_b32 s14, s88, 0
s_cselect_b32 s15, s90, 0
v_mov_b32 v8, 0
v_writelane_b32 v8, s12, 0
v_writelane_b32 v8, s80, 1
v_writelane_b32 v8, s81, 2
v_writelane_b32 v8, s82, 3
v_writelane_b32 v8, s83, 4
v_writelane_b32 v8, s13, 5
v_writelane_b32 v8, s85, 6
v_writelane_b32 v8, s14, 7
v_writelane_b32 v8, s15, 8
v_writelane_b32 v8, s91, 9
s_waitcnt lgkmcnt(0)""")
            srd(56, 40, 40)
            A("v_lshlrev_b32 v9, 2, v1\nbuffer_atomic_umax v8, v9, s[56:59], 0 offen sc1")
        else:
            A(f"""s_lshl_b32 s12, s2, 3
s_add_u32 s12, s12, s3
s_lshl_b32 s12, s12, 8
s_add_u32 s12, s12, {WS_STAMP}
s_mov_b32 s54, 0x300000
v_lshlrev_b32 v9, 2, v1
buffer_store_dword v8, v9, s[52:55], s12 offen""")
    A("L_bail:\ns_endpgm")
    A.raw("L_codeend:")
    A.raw(f""".section .rodata,"a"
.p2align 6
.amdhsa_kernel {KNAME}
  .amdhsa_next_free_vgpr 256
  .amdhsa_next_free_sgpr 102
  .amdhsa_accum_offset 256
  .amdhsa_group_segment_fixed_size 0
  .amdhsa_kernarg_size 112
  .amdhsa_user_sgpr_count 2
  .amdhsa_user_sgpr_kernarg_segment_ptr 1
  .amdhsa_system_sgpr_workgroup_id_x 1
  .amdhsa_float_denorm_mode_32 3
.end_amdhsa_kernel""")
    return A.text()

if __name__ == "__main__":
    out = sys.argv[1]
    kw = json.loads(sys.argv[2]) if len(sys.argv) > 2 else {}
    open(out, "w").write(gen(**kw))
```
